```python
import torch

def _softmax(x, axis=-1):
    return torch.softmax(x, dim=axis)
def _gelu(x):
    return torch.nn.functional.gelu(x, approximate="tanh")
def _silu(x):
    return torch.nn.functional.silu(x)
def _sigmoid(x):
    return torch.sigmoid(x)
def _layernorm(x, axis=-1, eps=1e-5):
    m = x.mean(dim=axis, keepdim=True)
    v = x.var(dim=axis, keepdim=True, unbiased=False)
    return (x - m) / torch.sqrt(v + eps)
def _scatter_add(tgt, idx, src, axis=0):
    return tgt.clone().index_add_(axis, idx, src)
def _segment_sum(src, seg, n):
    out = torch.zeros((n,) + src.shape[1:], dtype=src.dtype)
    return out.index_add_(0, seg, src)
def _pad(x, pw):
    flat = tuple(v for pair in reversed(pw) for v in pair)
    return torch.nn.functional.pad(x, flat)

kernel_name = 'interleave_layers__sliding_local_dilated__sliding_local_dilated__prompt'

def setup_inputs():

    _w = (lambda a: (lambda t: t.to(torch.bfloat16) if t.is_floating_point() else t)(torch.as_tensor(a)))
    def _A_setup():
        B, S, D = 1, 2048, 576
        return {
            "x": _w((lambda *s: torch.randn(*s, dtype=torch.bfloat16) * 0.05)(B, S, D)),
            "wqkv": _w((lambda *s: torch.randn(*s, dtype=torch.bfloat16) * 0.05)(D, 3 * D)),
            "wo": _w((lambda *s: torch.randn(*s, dtype=torch.bfloat16) * 0.05)(D, D)),
        }
    _A_in = _A_setup()

    def _B_setup():
        B, S, D = 1, 2048, 576
        return {
            "x": _w((lambda *s: torch.randn(*s, dtype=torch.bfloat16) * 0.05)(B, S, D)),
            "wqkv": _w((lambda *s: torch.randn(*s, dtype=torch.bfloat16) * 0.05)(D, 3 * D)),
            "wo": _w((lambda *s: torch.randn(*s, dtype=torch.bfloat16) * 0.05)(D, D)),
        }
    _B_in = _B_setup()

    return {
        "A_x": _A_in["x"],
        "A_wqkv": _A_in["wqkv"],
        "A_wo": _A_in["wo"],
        "B_x": _B_in["x"],
        "B_wqkv": _B_in["wqkv"],
        "B_wo": _B_in["wo"],
    }

def reference(A_x, A_wqkv, A_wo, B_x, B_wqkv, B_wo):
    def _A_ref(x, wqkv, wo):
        B, S, D = x.shape
        H = 32; Dh = D // H
        W, dil = 8, 2
        qkv = (lambda x, *d: x.permute(*d))((x @ wqkv).reshape(B, S, 3, H, Dh), 2, 0, 3, 1, 4)
        q, k, v = qkv[0], qkv[1], qkv[2]
        scale = Dh ** -0.5
        pos = torch.arange(S)
        off = torch.arange(W) * dil
        idx = pos[:, None] - off[None, :]
        mask = idx >= 0
        idx_c = torch.where(mask, idx, 0).reshape(-1)
        kg = k[:, :, idx_c, :].reshape(B, H, S, W, Dh)
        vg = v[:, :, idx_c, :].reshape(B, H, S, W, Dh)
        logits = torch.einsum("bhsd,bhswd->bhsw", q, kg) * scale
        logits = torch.where(mask[None, None, :, :], logits, -1e9)
        attn = _softmax(logits, axis=-1)
        o = torch.einsum("bhsw,bhswd->bhsd", attn, vg)
        return (lambda x, *d: x.permute(*d))(o, 0, 2, 1, 3).reshape(B, S, D) @ wo

    def _B_ref(x, wqkv, wo):
        B, S, D = x.shape
        H = 32; Dh = D // H
        W, dil = 8, 2
        qkv = (lambda x, *d: x.permute(*d))((x @ wqkv).reshape(B, S, 3, H, Dh), 2, 0, 3, 1, 4)
        q, k, v = qkv[0], qkv[1], qkv[2]
        scale = Dh ** -0.5
        pos = torch.arange(S)
        off = torch.arange(W) * dil
        idx = pos[:, None] - off[None, :]
        mask = idx >= 0
        idx_c = torch.where(mask, idx, 0).reshape(-1)
        kg = k[:, :, idx_c, :].reshape(B, H, S, W, Dh)
        vg = v[:, :, idx_c, :].reshape(B, H, S, W, Dh)
        logits = torch.einsum("bhsd,bhswd->bhsw", q, kg) * scale
        logits = torch.where(mask[None, None, :, :], logits, -1e9)
        attn = _softmax(logits, axis=-1)
        o = torch.einsum("bhsw,bhswd->bhsd", attn, vg)
        return (lambda x, *d: x.permute(*d))(o, 0, 2, 1, 3).reshape(B, S, D) @ wo

    x = A_x
    x = x + _A_ref(_layernorm(x, axis=-1), A_wqkv, A_wo)
    x = x + _B_ref(_layernorm(x, axis=-1), B_wqkv, B_wo)
    x = x + _A_ref(_layernorm(x, axis=-1), A_wqkv, A_wo)
    x = x + _B_ref(_layernorm(x, axis=-1), B_wqkv, B_wo)
    return x
```

```python
import sys

XB = 2048 * 576 * 2
WQB = 576 * 1728 * 2
WOB = 576 * 576 * 2
OOFF = 0x400000

class K:
    def __init__(self): self.l = []
    def __call__(self, s):
        for x in s.strip().split("\n"):
            x = x.strip()
            if x: self.l.append("    " + x)
    def label(self, n): self.l.append(n + ":")
    def raw(self, s): self.l.append(s)
    def text(self): return "\n".join(self.l) + "\n"

def vr(a, n): return f"v[{a}:{a+n-1}]"

SLOT = 37888
WREG = 10240
def common_head(k, pfx):
    k(f"""
    s_cmp_ge_u32 s2, 256
    s_cbranch_scc1 {pfx}_exit
    s_load_dwordx16 s[32:47], s[0:1], 0
    s_load_dwordx2 s[48:49], s[0:1], 64
    v_lshrrev_b32 v1, 6, v0
    v_and_b32 v0, 63, v0
    v_readfirstlane_b32 s4, v1
    s_and_b32 s5, s2, 7
    s_lshr_b32 s6, s2, 3
    s_and_b32 s7, s5, 1
    s_lshl_b32 s7, s7, 2
    s_and_b32 s20, s6, 3
    s_add_u32 s20, s20, s7
    s_lshr_b32 s7, s5, 1
    s_lshl_b32 s7, s7, 3
    s_lshr_b32 s21, s6, 2
    s_add_u32 s21, s21, s7
    s_waitcnt lgkmcnt(0)
    """)

def emit_k_from_rho(k, vk, vrho, vt):
    k(f"""
    v_and_b32 {vk}, 0x38, {vrho}
    v_bfe_u32 {vt}, {vrho}, 1, 2
    v_or_b32 {vk}, {vk}, {vt}
    v_and_b32 {vt}, 1, {vrho}
    v_lshl_or_b32 {vk}, {vt}, 2, {vk}
    """)

def A_xoff(k, vdst, s_r0):
    k(f"""
    v_lshrrev_b32 v2, 3, v0
    v_add_u32 v2, {s_r0}, v2
    v_bfe_u32 v3, v2, 1, 3
    v_and_b32 v4, 7, v0
    v_xor_b32 v4, v4, v3
    v_add_u32 v2, s24, v2
    v_lshlrev_b32 v3, 1, v2
    v_add_u32 v3, s22, v3
    v_mul_u32_u24 v3, 1152, v3
    v_lshl_add_u32 {vdst}, v4, 4, v3
    v_bfrev_b32 v5, 1
    v_cmp_gt_i32 vcc, 0, v2
    s_nop 1
    v_cndmask_b32 {vdst}, {vdst}, v5, vcc
    """)

def A_woff(k, vdst, s_p0):
    k(f"""
    v_add_u32 v2, {s_p0}, v0
    v_mul_u32_u24 v3, 2428, v2
    v_lshrrev_b32 v3, 16, v3
    v_mul_u32_u24 v4, 27, v3
    v_sub_u32 v2, v2, v4
    v_mul_u32_u24 v4, 57, v2
    v_lshrrev_b32 v4, 9, v4
    v_mul_u32_u24 v5, 9, v4
    v_sub_u32 v2, v2, v5
    """)
    emit_k_from_rho(k, "v5", "v3", "v6")
    k(f"""
    v_mul_u32_u24 v5, 3456, v5
    v_mul_u32_u24 v4, 1152, v4
    v_add3_u32 v5, v5, v4, s25
    v_lshl_add_u32 {vdst}, v2, 4, v5
    """)

def col(kind, idx):
    if kind == 'T':
        if idx < 4: return dict(kind='T', name=f"T{idx}", off=32*idx, sp=False, rts=[1,2,3,4], fcol=idx)
        if idx == 4: return dict(kind='T', name="T4", off=0, sp=True, rts=[0,1,2,3,4], fcol=4)
        return dict(kind='T', name=f"T{idx}", off=144+32*(idx-5), sp=False, rts=[0,1,2,3,4], fcol=idx)
    if kind == 'N': return dict(kind='N', name=f"V{idx}", off=288+32*idx, sp=False, rts=[0,1,2,3,4], fcol=9+idx)
    return dict(kind=kind, name=kind, rts=[0,1,2,3,4])

WCOLS = [
    [col('T',0), col('T',1), col('T',5), col('T',6)],
    [col('T',2), col('T',3), col('T',7), col('T',8)],
    [col('T',4), col('N',0), col('N',1), col('N',2)],
    [col('N',3), col('N',4), col('S',0), col('R',0)],
]
A0, A1, BF, ONES, ACC = 8, 28, 48, 64, 72
vA0, vA1, vB, vB4, vDMA = "v1", "v7", "v68", "v69", "v70"

def gen_A(k):
    k.label("A_body")
    common_head(k, "A")
    k(f"""
    s_lshr_b32 s22, s21, 4
    s_and_b32 s23, s21, 15
    s_lshl_b32 s24, s23, 6
    s_sub_u32 s24, s24, 16
    s_mul_i32 s25, s20, 144
    s_cmp_eq_u32 s3, 0
    s_cselect_b64 s[8:9], s[32:33], s[48:49]
    s_mov_b32 s10, {XB}
    s_mov_b32 s11, 0x20000
    s_and_b32 s7, s3, 1
    s_cmp_eq_u32 s7, 0
    s_cselect_b64 s[12:13], s[34:35], s[40:41]
    s_mov_b32 s14, {WQB}
    s_mov_b32 s15, 0x20000
    s_add_u32 s16, s48, {OOFF}
    s_addc_u32 s17, s49, 0
    s_mov_b32 s18, {XB}
    s_mov_b32 s19, 0x20000
    s_cmp_ge_u32 s4, 4
    s_cbranch_scc1 A_loader
    s_cmp_eq_u32 s4, 1
    s_cbranch_scc1 A_w1
    s_cmp_eq_u32 s4, 2
    s_cbranch_scc1 A_w2
    s_cmp_eq_u32 s4, 3
    s_cbranch_scc1 A_w3
    """)
    for w in range(4):
        k.label(f"A_w{w}")
        gen_A_mfma(k, w)
    k.label("A_loader")
    gen_A_loader(k)
    k.label("A_exit")
    k("s_endpgm")

def gen_A_mfma(k, w):
    cols = WCOLS[w]
    a = ACC
    for c in cols:
        c['acc'] = {}
        for rt in c['rts']:
            c['acc'][rt] = a; a += 4
        if c['kind'] in 'TN':
            c['cs'] = a; a += 4
    nacc = a
    assert nacc <= 168, nacc
    bcols = [c for c in cols if c['kind'] in 'TN']
    for i, c in enumerate(bcols): c['b'] = BF + 4*i
    if w == 0:
        k("s_mov_b32 s26, 72")
        A_xoff(k, vDMA, "s26")
        srd, stride, loff = "s[8:11]", 128, 1024 + 8*1024
    else:
        k(f"s_mov_b32 s26, {64*(23+w)}")
        A_woff(k, vDMA, "s26")
        srd, stride, loff = "s[12:15]", 64*3456, WREG + 1024*(23+w)
    k("s_mov_b32 s27, 0")
    for st in range(4):
        k(f"""
        s_mov_b32 m0, {st*SLOT + loff}
        s_nop 0
        buffer_load_dwordx4 {vDMA}, {srd}, s27 offen lds
        s_add_u32 s27, s27, {stride}
        """)
    k(f"""
    v_and_b32 v2, 15, v0
    v_lshrrev_b32 v3, 4, v0
    v_bfe_u32 v4, v0, 1, 3
    v_xor_b32 v4, v4, v3
    v_lshlrev_b32 v4, 4, v4
    v_lshl_add_u32 {vA0}, v2, 7, v4
    v_xor_b32 {vA1}, 64, {vA0}
    v_bfe_u32 v4, v0, 2, 2
    v_lshlrev_b32 v4, 1, v4
    v_lshl_add_u32 v4, v3, 3, v4
    v_mul_u32_u24 v4, 432, v4
    v_and_b32 v5, 3, v0
    v_lshl_add_u32 v4, v5, 3, v4
    v_add_u32 {vB}, {WREG}, v4
    v_bfe_u32 v5, v0, 1, 1
    v_lshlrev_b32 v5, 7, v5
    v_add_u32 v5, 128, v5
    v_add_u32 {vB4}, {vB}, v5
    """)
    for i in range(4): k(f"v_mov_b32 v{ONES+i}, 0x3f803f80")
    for r in range(ACC, nacc): k(f"v_mov_b32 v{r}, 0")
    k("""
    s_mov_b32 s28, 0
    s_mov_b32 s29, 0
    s_mov_b32 s31, 37888
    s_waitcnt vmcnt(3)
    s_barrier
    """)
    q = []
    def rdA(aset, ks):
        base = A0 if aset == 0 else A1
        for rt in range(5):
            k(f"ds_read_b128 {vr(base+4*rt,4)}, {vA0 if ks==0 else vA1} offset:{rt*2048}")
            q.append(('A', aset))
    def rdB(c, ks):
        adr = vB4 if c['sp'] else vB
        for b in range(2):
            k(f"ds_read_b64_tr_b16 {vr(c['b']+2*b,2)}, {adr} offset:{ks*13824 + b*432 + c['off']}")
            q.append(('B', c['name']))
    def wait_for(tags):
        idx = -1
        for i, t in enumerate(q):
            if t in tags: idx = i
        if idx >= 0:
            n = len(q) - 1 - idx
            k(f"s_waitcnt lgkmcnt({min(n,15)})")
            del q[:idx+1]
    def mfmas(c, aset):
        base = A0 if aset == 0 else A1
        for rt in c['rts']:
            d = vr(c['acc'][rt], 4); x = vr(base+4*rt, 4)
            if c['kind'] == 'T': k(f"v_mfma_f32_16x16x32_bf16 {d}, {vr(c['b'],4)}, {x}, {d}")
            elif c['kind'] == 'N': k(f"v_mfma_f32_16x16x32_bf16 {d}, {x}, {vr(c['b'],4)}, {d}")
            elif c['kind'] == 'S': k(f"v_mfma_f32_16x16x32_bf16 {d}, {x}, {x}, {d}")
            elif c['kind'] == 'R': k(f"v_mfma_f32_16x16x32_bf16 {d}, {vr(ONES,4)}, {x}, {d}")
        if c['kind'] == 'T':
            d = vr(c['cs'], 4); k(f"v_mfma_f32_16x16x32_bf16 {d}, {vr(c['b'],4)}, {vr(ONES,4)}, {d}")
        elif c['kind'] == 'N':
            d = vr(c['cs'], 4); k(f"v_mfma_f32_16x16x32_bf16 {d}, {vr(ONES,4)}, {vr(c['b'],4)}, {d}")
    def half(aset, ks_next):
        rdA(1-aset, ks_next)
        for c in cols:
            wait_for([('A', aset), ('B', c['name'])] if True else [])
            mfmas(c, aset)
            if c['kind'] in 'TN': rdB(c, ks_next)
    rdA(0, 0)
    for c in bcols: rdB(c, 0)
    k.label(f"A_w{w}_loop")
    def half1():
        old = len(q)
        rdA(1, 1)
        for c in cols:
            idx = -1
            for i in range(old):
                if q[i] == ('A', 0) or q[i] == ('B', c['name']): idx = i
            if idx >= 0:
                n = len(q) - 1 - idx
                k(f"s_waitcnt lgkmcnt({min(n,15)})")
                del q[:idx+1]; old -= idx+1
            mfmas(c, 0)
            if c['kind'] in 'TN': rdB(c, 1)
    half1()
    del q[:]
    k(f"""
    s_waitcnt lgkmcnt(0)
    s_cmp_lt_u32 s28, 6
    s_cbranch_scc1 A_w{w}_v2
    s_waitcnt vmcnt(0)
    """)
    k.label(f"A_w{w}_v2")
    k(f"""
    s_waitcnt vmcnt(2)
    s_barrier
    s_cmp_gt_u32 s28, 4
    s_cbranch_scc1 A_w{w}_nodma
    s_add_u32 m0, s29, {loff}
    s_nop 0
    buffer_load_dwordx4 {vDMA}, {srd}, s27 offen lds
    s_add_u32 s27, s27, {stride}
    """)
    k.label(f"A_w{w}_nodma")
    k(f"""
    s_cmp_eq_u32 s29, {3*SLOT}
    s_cselect_b32 s30, {-3*SLOT & 0xffffffff}, s31
    s_add_u32 s29, s29, s30
    v_add_u32 {vA0}, s30, {vA0}
    v_add_u32 {vA1}, s30, {vA1}
    v_add_u32 {vB}, s30, {vB}
    v_add_u32 {vB4}, s30, {vB4}
    """)
    rdA(0, 0)
    for c in cols:
        mfmas(c, 1)
        if c['kind'] in 'TN': rdB(c, 0)
    k(f"""
    s_add_u32 s28, s28, 1
    s_cmp_lt_u32 s28, 9
    s_cbranch_scc1 A_w{w}_loop
    s_waitcnt lgkmcnt(0)
    s_nop 7
    s_nop 7
    """)
    if w == 3:
        S = cols[2]; R = cols[3]
        k(f"""
        v_and_b32 v2, 15, v0
        v_lshrrev_b32 v3, 4, v0
        v_lshrrev_b32 v4, 2, v2
        v_cmp_eq_u32 s[50:51], v3, v4
        v_and_b32 v4, 3, v0
        v_cmp_eq_u32 s[52:53], 1, v4
        v_cmp_eq_u32 s[54:55], 2, v4
        v_cmp_eq_u32 s[56:57], 3, v4
        v_lshlrev_b32 v5, 3, v2
        s_mov_b32 s58, 0x3ae38e39
        s_mov_b32 s59, 0x3727c5ac
        """)
        for rt in range(5):
            s = S['acc'][rt]; r = R['acc'][rt]
            k(f"""
            v_cndmask_b32 v8, v{s}, v{s+1}, s[52:53]
            v_cndmask_b32 v8, v8, v{s+2}, s[54:55]
            v_cndmask_b32 v8, v8, v{s+3}, s[56:57]
            v_mul_f32 v9, s58, v{r}
            v_mul_f32 v8, s58, v8
            v_fma_f32 v8, -v9, v9, v8
            v_max_f32 v8, 0, v8
            v_add_f32 v8, s59, v8
            v_rsq_f32 v{10+2*rt}, v8
            s_nop 0
            v_mul_f32 v{11+2*rt}, v9, v{10+2*rt}
            """)
        k("s_mov_b64 exec, s[50:51]")
        for rt in range(5):
            k(f"ds_write_b64 v5, {vr(10+2*rt,2)} offset:{rt*128}")
        k("s_mov_b64 exec, -1")
        k("s_waitcnt lgkmcnt(0)")
    k("s_barrier")
    hasT = any(c['kind'] == 'T' for c in cols); hasN = any(c['kind'] == 'N' for c in cols)
    TS, NS = 48, 8
    k(f"""
    v_and_b32 v2, 15, v0
    v_lshlrev_b32 v2, 3, v2
    v_lshrrev_b32 v3, 4, v0
    v_lshlrev_b32 v3, 5, v3
    v_lshlrev_b32 v4, 3, v0
    """)
    if hasT:
        for rt in range(5): k(f"ds_read_b64 {vr(TS+2*rt,2)}, v2 offset:{rt*128}")
    if hasN:
        for rt in range(5):
            k(f"ds_read_b128 {vr(NS+8*rt,4)}, v3 offset:{rt*128}")
            k(f"ds_read_b128 {vr(NS+8*rt+4,4)}, v3 offset:{rt*128+16}")
    k("s_waitcnt lgkmcnt(0)")
    t = 58
    for c in bcols:
        for rt in c['rts']:
            a = c['acc'][rt]; cs = c['cs']
            for i in range(4):
                if c['kind'] == 'T':
                    k(f"v_mul_f32 v{t+i}, v{a+i}, v{TS+2*rt}")
                    k(f"v_fma_f32 v{t+i}, -v{TS+2*rt+1}, v{cs+i}, v{t+i}")
                else:
                    k(f"v_mul_f32 v{t+i}, v{a+i}, v{NS+8*rt+2*i}")
                    k(f"v_fma_f32 v{t+i}, -v{NS+8*rt+2*i+1}, v{cs}, v{t+i}")
            k(f"v_cvt_pk_bf16_f32 v{a}, v{t}, v{t+1}")
            k(f"v_cvt_pk_bf16_f32 v{a+1}, v{t+2}, v{t+3}")
            k(f"ds_write_b64 v4, {vr(a,2)} offset:{1024 + (c['fcol']*5+rt)*512}")
    k("""
    s_waitcnt lgkmcnt(0)
    s_barrier
    s_endpgm
    """)

def gen_A_loader(k):
    k(f"""
    s_sub_u32 s26, s4, 4
    s_lshl_b32 s27, s26, 3
    s_add_u32 s27, s27, 8
    """)
    A_xoff(k, "v8", "s27")
    for n in range(3):
        k(f"""
        s_lshl_b32 s27, s26, 6
        s_add_u32 s27, s27, {512*n}
        """)
        A_woff(k, f"v{9+n}", "s27")
    k("""
    s_lshl_b32 s29, s26, 10
    s_mov_b32 s27, 0
    s_mov_b32 s28, 0
    """)
    def issue(st):
        sb = (st % 4) * SLOT
        k(f"""
        s_add_u32 m0, s29, {sb + 1024}
        s_nop 0
        buffer_load_dwordx4 v8, s[8:11], s27 offen lds
        s_add_u32 s27, s27, 128
        """)
        for n in range(3):
            k(f"""
            s_add_u32 m0, s29, {sb + WREG + 8192*n}
            s_nop 0
            buffer_load_dwordx4 v{9+n}, s[12:15], s28 offen lds
            """)
        k(f"s_add_u32 s28, s28, {64*3456}")
    for st in range(4): issue(st)
    k(f"""
    s_cmp_ge_u32 s26, 4
    s_cbranch_scc1 A_ld_nz
    s_mul_i32 s30, s26, {SLOT}
    v_lshlrev_b32 v2, 4, v0
    v_add_u32 v2, s30, v2
    v_mov_b32 v4, 0
    v_mov_b32 v5, 0
    v_mov_b32 v6, 0
    v_mov_b32 v7, 0
    ds_write_b128 v2, v[4:7]
    """)
    k.label("A_ld_nz")
    k(f"""
    s_and_b32 s31, s26, 3
    v_and_b32 v2, 15, v0
    v_lshrrev_b32 v3, 4, v0
    v_lshlrev_b32 v3, 2, v3
    v_sub_u32 v4, v2, v3
    """)
    for i in range(4):
        k(f"""
        v_add_u32 v5, {16-i}, v4
        v_cmp_gt_u32 s[{60+2*i}:{61+2*i}], 8, v5
        v_subrev_u32 v5, {i}, v4
        v_cmp_gt_u32 s[{68+2*i}:{69+2*i}], 8, v5
        """)
    k(f"""
    s_or_b32 s30, s31, s23
    s_cmp_lg_u32 s30, 0
    s_cbranch_scc1 A_ld_nofirst
    s_mov_b64 s[60:61], 0
    s_mov_b64 s[62:63], 0
    s_mov_b64 s[64:65], 0
    s_mov_b64 s[66:67], 0
    """)
    k.label("A_ld_nofirst")
    k("""
    s_waitcnt vmcnt(12) lgkmcnt(0)
    s_barrier
    """)
    for b in range(1, 10):
        if b <= 8: k(f"s_waitcnt vmcnt({4*min(2, 8-b)})")
        k("s_barrier")
        if b + 3 <= 8: issue(b + 3)
    k(f"""
    s_lshl_b32 s30, s31, 4
    s_add_u32 s30, s30, s24
    s_add_u32 s30, s30, 16
    v_add_u32 v5, s30, v2
    v_lshlrev_b32 v5, 1, v5
    v_add_u32 v5, s22, v5
    v_mul_u32_u24 v5, 1152, v5
    v_lshl_add_u32 v5, v3, 1, v5
    v_add_u32 v20, s25, v5
    v_add_u32 v6, 2, v3
    s_lshl_b32 s30, s31, 9
    v_lshlrev_b32 v7, 3, v0
    v_add_u32 v7, s30, v7
    v_add_u32 v8, 32, v0
    v_and_b32 v8, 63, v8
    v_lshlrev_b32 v8, 3, v8
    v_add_u32 v8, s30, v8
    v_add_u32 v8, {1024 + 4*2560}, v8
    s_mov_b32 s58, 0x3eae1a93
    v_mov_b32 v9, 0xff800000
    s_barrier
    s_barrier
    """)
    for u in range(2):
        k(f"""
        s_lshr_b32 s30, s26, 2
        s_add_u32 s30, s30, {2*u}
        s_lshl_b32 s76, s30, 1
        s_add_u32 s77, s76, 2
        s_mul_i32 s78, s30, 2560
        v_add_u32 v10, s78, v7
        v_add_u32 v11, {1024 + 6*2560}, v10
        """)
        if u == 1:
            k(f"""
            s_cmp_eq_u32 s30, 3
            s_cselect_b64 vcc, -1, 0
            s_nop 1
            v_cndmask_b32 v11, v11, v8, vcc
            """)
        k(f"""
        ds_read_b64 v[24:25], v10 offset:{1024 + 512}
        ds_read_b64 v[26:27], v10 offset:{1024 + 2560 + 512}
        ds_read_b64 v[28:29], v10 offset:{1024 + 5*2560}
        ds_read_b64 v[30:31], v11
        ds_read_b64 v[32:33], v10 offset:{1024 + 5*2560 + 512}
        ds_read_b64 v[34:35], v11 offset:512
        ds_read_b64 v[36:37], v10 offset:{1024 + 9*2560}
        ds_read_b64 v[38:39], v10 offset:{1024 + 9*2560 + 512}
        ds_read_b64 v[40:41], v10 offset:{1024 + 10*2560}
        ds_read_b64 v[42:43], v10 offset:{1024 + 10*2560 + 512}
        v_cmp_le_u32 s[80:81], s76, v3
        v_cmp_le_u32 s[82:83], s76, v6
        v_cmp_gt_u32 s[84:85], s77, v3
        v_cmp_gt_u32 s[86:87], s77, v6
        s_waitcnt lgkmcnt(8)
        v_cndmask_b32 v24, 0, v24, s[80:81]
        v_cndmask_b32 v25, 0, v25, s[82:83]
        v_cndmask_b32 v26, 0, v26, s[84:85]
        v_cndmask_b32 v27, 0, v27, s[86:87]
        s_waitcnt lgkmcnt(4)
        s_nop 0
        v_mfma_f32_16x16x32_bf16 v[44:47], v[28:31], v[24:27], 0
        v_mfma_f32_16x16x32_bf16 v[48:51], v[32:35], v[24:27], 0
        s_nop 7
        s_nop 1
        """)
        for i in range(4):
            k(f"v_cndmask_b32 v{44+i}, v9, v{44+i}, s[{60+2*i}:{61+2*i}]")
        for i in range(4):
            k(f"v_cndmask_b32 v{48+i}, v9, v{48+i}, s[{68+2*i}:{69+2*i}]")
        k(f"""
        v_max3_f32 v52, v44, v45, v46
        v_max3_f32 v53, v47, v48, v49
        v_max3_f32 v52, v52, v50, v51
        v_max_f32 v52, v52, v53
        v_mov_b32 v53, v52
        s_nop 1
        v_permlane32_swap_b32 v52, v53
        v_max_f32 v52, v52, v53
        v_mov_b32 v53, v52
        s_nop 1
        v_permlane16_swap_b32 v52, v53
        v_max_f32 v52, v52, v53
        v_mul_f32 v52, s58, v52
        """)
        for i in range(8):
            k(f"v_fma_f32 v{44+i}, v{44+i}, s58, -v52")
        for i in range(8):
            k(f"v_exp_f32 v{44+i}, v{44+i}")
        k(f"""
        s_nop 0
        v_add_f32 v52, v44, v45
        v_add_f32 v53, v46, v47
        v_add_f32 v54, v48, v49
        v_add_f32 v55, v50, v51
        v_add_f32 v52, v52, v53
        v_add_f32 v54, v54, v55
        v_add_f32 v52, v52, v54
        v_mov_b32 v53, v52
        s_nop 1
        v_permlane32_swap_b32 v52, v53
        v_add_f32 v52, v52, v53
        v_mov_b32 v53, v52
        s_nop 1
        v_permlane16_swap_b32 v52, v53
        v_add_f32 v52, v52, v53
        v_rcp_f32 v52, v52
        s_nop 0
        """)
        for i in range(8):
            k(f"v_mul_f32 v{44+i}, v{44+i}, v52")
        for i in range(4):
            k(f"v_cvt_pk_bf16_f32 v{56+i}, v{44+2*i}, v{45+2*i}")
        k(f"""
        s_waitcnt lgkmcnt(0)
        s_nop 0
        v_mfma_f32_16x16x32_bf16 v[44:47], v[36:39], v[56:59], 0
        v_mfma_f32_16x16x32_bf16 v[48:51], v[40:43], v[56:59], 0
        s_lshl_b32 s78, s30, 5
        v_add_u32 v21, s78, v20
        s_nop 7
        v_cvt_pk_bf16_f32 v52, v44, v45
        v_cvt_pk_bf16_f32 v53, v46, v47
        v_cvt_pk_bf16_f32 v54, v48, v49
        v_cvt_pk_bf16_f32 v55, v50, v51
        s_mov_b64 exec, s[80:81]
        buffer_store_dword v52, v21, s[16:19], 0 offen
        s_mov_b64 exec, s[82:83]
        buffer_store_dword v53, v21, s[16:19], 0 offen offset:4
        s_mov_b64 exec, s[84:85]
        buffer_store_dword v54, v21, s[16:19], 0 offen offset:32
        s_mov_b64 exec, s[86:87]
        buffer_store_dword v55, v21, s[16:19], 0 offen offset:36
        s_mov_b64 exec, -1
        """)
    k("s_endpgm")

BST = 17408
def gen_B(k):
    k.label("B_body")
    common_head(k, "B")
    k(f"""
    s_add_u32 s8, s48, {OOFF}
    s_addc_u32 s9, s49, 0
    s_mov_b32 s10, {XB}
    s_mov_b32 s11, 0x20000
    s_and_b32 s7, s3, 1
    s_cmp_eq_u32 s7, 0
    s_cselect_b64 s[12:13], s[36:37], s[42:43]
    s_mov_b32 s14, {WOB}
    s_mov_b32 s15, 0x20000
    s_cmp_eq_u32 s3, 0
    s_cselect_b64 s[16:17], s[32:33], s[48:49]
    s_mov_b32 s18, {XB}
    s_mov_b32 s19, 0x20000
    s_cmp_eq_u32 s3, 3
    s_cselect_b64 s[24:25], s[44:45], s[48:49]
    s_mov_b32 s26, {XB}
    s_mov_b32 s27, 0x20000
    s_mul_i32 s28, s20, 144
    s_lshl_b32 s29, s21, 6
    """)
    k(f"""
    s_and_b32 s30, s4, 3
    s_lshl_b32 s30, s30, 4
    s_add_u32 s31, s30, s29
    v_and_b32 v2, 15, v0
    v_lshrrev_b32 v3, 4, v0
    v_add_u32 v4, s31, v2
    v_mul_u32_u24 v4, 1152, v4
    v_lshl_add_u32 v4, v3, 3, v4
    s_lshr_b32 s5, s4, 2
    s_mul_i32 s5, s5, 96
    s_add_u32 s6, s5, s28
    v_add_u32 v20, s6, v4
    buffer_load_dwordx2 v[24:25], v20, s[16:19], 0 offen
    buffer_load_dwordx2 v[26:27], v20, s[16:19], 0 offen offset:32
    buffer_load_dwordx2 v[28:29], v20, s[16:19], 0 offen offset:64
    """)
    k(f"""
    s_lshl_b32 s6, s4, 3
    v_lshrrev_b32 v4, 3, v0
    v_add_u32 v4, s6, v4
    v_bfe_u32 v5, v4, 1, 3
    v_and_b32 v6, 7, v0
    v_xor_b32 v6, v6, v5
    v_add_u32 v4, s29, v4
    v_mul_u32_u24 v4, 1152, v4
    v_lshl_add_u32 v8, v6, 4, v4
    """)
    def woff(vdst, p0):
        k(f"""
        v_add_u32 v4, {p0}, v0
        v_mul_u32_u24 v5, 7282, v4
        v_lshrrev_b32 v5, 16, v5
        v_mul_u32_u24 v6, 9, v5
        v_sub_u32 v4, v4, v6
        """)
        emit_k_from_rho(k, "v6", "v5", "v7")
        k(f"""
        v_mul_u32_u24 v6, 1152, v6
        v_add_u32 v6, s28, v6
        v_lshl_add_u32 {vdst}, v4, 4, v6
        """)
    k("s_lshl_b32 s6, s4, 6")
    woff("v9", "s6")
    k("s_movk_i32 s6, 512")
    woff("v10", "s6")
    k(f"""
    s_lshl_b32 s6, s4, 3
    s_mov_b64 s[50:51], 0xff
    s_lshl_b64 s[50:51], s[50:51], s6
    s_lshl_b32 s6, s4, 10
    s_mov_b32 s7, 0
    s_mov_b32 s22, 0
    """)
    for st in range(9):
        k(f"""
        s_add_u32 m0, s6, {st*BST}
        s_nop 0
        buffer_load_dwordx4 v8, s[8:11], s7 offen lds
        s_add_u32 m0, s6, {st*BST + 8192}
        s_add_u32 s7, s7, 128
        buffer_load_dwordx4 v9, s[12:15], s22 offen lds
        s_mov_b32 m0, {st*BST + 8192 + 8192}
        s_mov_b64 exec, s[50:51]
        buffer_load_dwordx4 v10, s[12:15], s22 offen lds
        s_mov_b64 exec, -1
        s_add_u32 s22, s22, {64*1152}
        """)
    k(f"""
    v_bfe_u32 v4, v0, 1, 3
    v_xor_b32 v4, v4, v3
    v_lshlrev_b32 v4, 4, v4
    v_add_u32 v5, s30, v2
    v_lshl_add_u32 v12, v5, 7, v4
    v_xor_b32 v13, 64, v12
    v_bfe_u32 v4, v0, 2, 2
    v_lshlrev_b32 v4, 1, v4
    v_lshl_add_u32 v4, v3, 3, v4
    v_mul_u32_u24 v4, 144, v4
    v_and_b32 v5, 3, v0
    v_lshl_add_u32 v4, v5, 3, v4
    s_add_u32 s5, s5, 8192
    v_add_u32 v14, s5, v4
    """)
    for r in range(32, 44): k(f"v_mov_b32 v{r}, 0")
    k("""
    s_cmp_ge_u32 s4, 4
    s_cbranch_scc1 B_h1
    """)
    for half in range(2):
        k.label(f"B_h{half}")
        n = 3 if half == 0 else 2
        def reads(p):
            for ks in range(2):
                k(f"ds_read_b128 {vr(48+32*p+4*ks,4)}, v{12+ks}")
                for ct in range(n):
                    for b in range(2):
                        k(f"ds_read_b64_tr_b16 {vr(56+32*p+12*ks+4*ct+2*b,2)}, v14 offset:{ks*4608 + b*144 + 32*ct}")
        def mm(p):
            for ks in range(2):
                for ct in range(n):
                    d = vr(32+4*ct, 4)
                    k(f"v_mfma_f32_16x16x32_bf16 {d}, {vr(56+32*p+12*ks+4*ct,4)}, {vr(48+32*p+4*ks,4)}, {d}")
        nreads = 2 + 4*n
        for st in range(9):
            k(f"s_waitcnt vmcnt({3*(8-st)})")
            k("s_barrier")
            reads(st % 2)
            if st < 8:
                k(f"""
                v_add_u32 v12, {BST}, v12
                v_add_u32 v13, {BST}, v13
                v_add_u32 v14, {BST}, v14
                """)
            if st > 0:
                k(f"s_waitcnt lgkmcnt({nreads})")
                mm((st-1) % 2)
        k("s_waitcnt lgkmcnt(0)")
        mm(0)
        k("s_nop 7\ns_nop 3")
        for ct in range(n):
            d = 32 + 4*ct; x = 24 + 2*ct
            k(f"""
            v_cvt_pk_bf16_f32 v4, v{d}, v{d+1}
            v_cvt_pk_bf16_f32 v5, v{d+2}, v{d+3}
            v_lshlrev_b32 v6, 16, v4
            v_and_b32 v7, 0xffff0000, v4
            v_lshlrev_b32 v8, 16, v5
            v_and_b32 v9, 0xffff0000, v5
            v_lshlrev_b32 v10, 16, v{x}
            v_and_b32 v11, 0xffff0000, v{x}
            v_add_f32 v6, v6, v10
            v_add_f32 v7, v7, v11
            v_lshlrev_b32 v10, 16, v{x+1}
            v_and_b32 v11, 0xffff0000, v{x+1}
            v_add_f32 v8, v8, v10
            v_add_f32 v9, v9, v11
            v_cvt_pk_bf16_f32 v{d}, v6, v7
            v_cvt_pk_bf16_f32 v{d+1}, v8, v9
            """)
            if half == 1 and ct == 1: k("s_mov_b64 exec, 0xffffffff")
            k(f"buffer_store_dwordx2 {vr(d,2)}, v20, s[24:27], 0 offen offset:{32*ct}")
        k("s_endpgm")
    k.label("B_exit")
    k("s_endpgm")

def kd(name, vgpr, sgpr=96):
    acc = (vgpr + 3)//4*4
    return f""".p2align 6
.amdhsa_kernel {name}
  .amdhsa_next_free_vgpr {vgpr}
  .amdhsa_next_free_sgpr {sgpr}
  .amdhsa_accum_offset {acc}
  .amdhsa_group_segment_fixed_size 0
  .amdhsa_kernarg_size 72
  .amdhsa_user_sgpr_count 2
  .amdhsa_user_sgpr_kernarg_segment_ptr 1
  .amdhsa_system_sgpr_workgroup_id_x 1
.end_amdhsa_kernel
"""

def main():
    out = sys.argv[1]
    nextra = int(sys.argv[2]) if len(sys.argv) > 2 else 0
    hdr = []
    for l in range(4):
        hdr.append(f"; @launch kernel=a{l}_kernel grid=(256,1,1) block=(768,1,1) lds={4*SLOT+64}")
        hdr.append(f"; @launch kernel=b{l}_kernel grid=(256,1,1) block=(512,1,1) lds={9*BST+128}")
    for i in range(nextra):
        hdr.append(f"; @launch kernel=empty_kernel grid=(256,1,1) block=(256,1,1) lds=0")
    k = K()
    k.raw('.amdgcn_target "amdgcn-amd-amdhsa--gfx950"\n.text')
    names = []
    for l in range(4):
        for p in "ab":
            n = f"{p}{l}_kernel"; names.append(n)
            k.raw(f".globl {n}\n.p2align 8\n.type {n},@function\n{n}:")
            k(f"s_mov_b32 s3, {l}\ns_branch {p.upper()}_body")
    if nextra:
        k.raw(f".globl empty_kernel\n.p2align 8\n.type empty_kernel,@function\nempty_kernel:")
        k("s_endpgm")
    k.raw(".p2align 8")
    gen_A(k)
    k.raw(".p2align 8")
    gen_B(k)
    k.raw('.section .rodata,"a"')
    for n in names:
        k.raw(kd(n, 168 if n[0] == 'a' else 112))
    if nextra: k.raw(kd("empty_kernel", 8))
    open(out, "w").write("\n".join(hdr) + "\n" + k.text())
main()
```

```python
import sys

XB = 2048 * 576 * 2
WQB = 576 * 1728 * 2
WOB = 576 * 576 * 2
OOFF = 0x400000
PQ = [0x800000, 0xA00000]
PO = [0xC00000, 0xD00000]
CS = [0xE00000, 0xE10000]
WSZ = 0x1000000

class K:
    def __init__(self): self.l = []
    def __call__(self, s):
        for x in s.strip().split("\n"):
            x = x.strip()
            if x: self.l.append("    " + x)
    def label(self, n): self.l.append(n + ":")
    def raw(self, s): self.l.append(s)
    def text(self): return "\n".join(self.l) + "\n"

DBG = False
def stamp(k, i):
    if DBG:
        k(f"s_memtime s[88:89]\ns_waitcnt lgkmcnt(0)\ns_mov_b32 s{90+i}, s88")
def dump(k, n, slot):
    if DBG:
        lab = f"dump_skip_{len(k.l)}"
        k(f"""s_cmp_lg_u32 s2, 0
        s_cbranch_scc1 {lab}
        s_mov_b64 exec, 1
        s_mov_b32 s84, s46
        s_mov_b32 s85, s47
        s_mov_b32 s86, 256
        s_mov_b32 s87, 0x20000
        v_mov_b32 v2, {slot}
        v_lshlrev_b32 v2, 5, v2""")
        for i in range(n):
            k(f"v_mov_b32 v3, s{90+i}\nbuffer_store_dword v3, v2, s[84:87], 0 offen offset:{4*i}")
        k.label(lab)
def vr(a, n): return f"v[{a}:{a+n-1}]"

def head(k, pfx, nwg):
    k(f"""
    s_cmp_ge_u32 s2, {nwg}
    s_cbranch_scc1 {pfx}_exit
    s_load_dwordx16 s[32:47], s[0:1], 0
    s_load_dwordx2 s[48:49], s[0:1], 64
    v_lshrrev_b32 v1, 6, v0
    v_and_b32 v0, 63, v0
    v_readfirstlane_b32 s4, v1
    """)
def decode_wg(k):
    k(f"""
    s_and_b32 s5, s2, 7
    s_lshr_b32 s6, s2, 3
    s_and_b32 s7, s5, 1
    s_lshl_b32 s7, s7, 2
    s_and_b32 s20, s6, 3
    s_add_u32 s20, s20, s7
    s_lshr_b32 s7, s5, 1
    s_lshl_b32 s7, s7, 3
    s_lshr_b32 s21, s6, 2
    s_add_u32 s21, s21, s7
    s_waitcnt lgkmcnt(0)
    """)
    stamp(k, 0)

def emit_k_from_rho(k, vk, vrho, vt):
    k(f"""
    v_and_b32 {vk}, 0x78, {vrho}
    v_bfe_u32 {vt}, {vrho}, 1, 2
    v_or_b32 {vk}, {vk}, {vt}
    v_and_b32 {vt}, 1, {vrho}
    v_lshl_or_b32 {vk}, {vt}, 2, {vk}
    """)

def tile_off(t):
    if t < 4: return 32*t
    if t == 4: return None
    if t < 9: return 144 + 32*(t-5)
    return 288 + 32*(t-9)

NQ, NO, NC = 288, 96, 54
def gen_P(k):
    k.label("P_body")
    head(k, "P", NQ+NO+NC)
    k(f"""
    s_waitcnt lgkmcnt(0)
    s_mov_b32 s16, s48
    s_mov_b32 s17, s49
    s_mov_b32 s18, {WSZ}
    s_mov_b32 s19, 0x20000
    s_mov_b32 s11, 0x20000
    v_lshrrev_b32 v3, 4, v0
    v_bfe_u32 v4, v0, 2, 2
    v_lshlrev_b32 v4, 1, v4
    v_lshl_add_u32 v12, v3, 3, v4
    v_and_b32 v13, 3, v0
    v_lshlrev_b32 v13, 3, v13
    v_lshlrev_b32 v14, 4, v0
    v_and_b32 v4, 7, v0
    v_lshl_add_u32 v15, v3, 3, v4
    v_lshlrev_b32 v15, 4, v15
    v_and_b32 v4, 8, v0
    v_cmp_eq_u32 s[50:51], 0, v4
    v_bfrev_b32 v16, 1
    s_cmp_ge_u32 s2, {NQ+NO}
    s_cbranch_scc1 P_cs
    s_cmp_ge_u32 s2, {NQ}
    s_cbranch_scc1 P_o
    """)
    k(f"""
    s_cmp_ge_u32 s2, 144
    s_cselect_b32 s5, 144, 0
    s_cselect_b64 s[8:9], s[40:41], s[34:35]
    s_mov_b32 s22, {PQ[0]}
    s_cselect_b32 s22, {PQ[1]}, s22
    s_mov_b32 s10, {WQB}
    s_sub_u32 s5, s2, s5
    s_mul_i32 s6, s5, 3641
    s_lshr_b32 s6, s6, 16
    s_mul_i32 s7, s6, 18
    s_sub_u32 s7, s5, s7
    s_mul_i32 s23, s5, 13824
    s_add_u32 s22, s22, s23
    s_mul_i32 s24, s7, {32*3456}
    s_mul_i32 s25, s6, 144
    s_add_u32 s24, s24, s25
    """)
    for n in range(4):
        k(f"""
        s_lshl_b32 s26, s4, 6
        s_add_u32 s26, s26, {256*n}
        v_add_u32 v2, s26, v0
        v_cmp_gt_u32 vcc, 864, v2
        v_mul_u32_u24 v3, 2428, v2
        v_lshrrev_b32 v3, 16, v3
        v_mul_u32_u24 v4, 27, v3
        v_sub_u32 v2, v2, v4
        v_mul_u32_u24 v4, 57, v2
        v_lshrrev_b32 v4, 9, v4
        v_mul_u32_u24 v5, 9, v4
        v_sub_u32 v2, v2, v5
        """)
        emit_k_from_rho(k, "v5", "v3", "v6")
        k(f"""
        v_mul_u32_u24 v5, 3456, v5
        v_mul_u32_u24 v4, 1152, v4
        v_add_u32 v5, v5, v4
        v_lshl_add_u32 v5, v2, 4, v5
        v_cndmask_b32 v5, v16, v5, vcc
        s_lshl_b32 s26, s26, 4
        s_mov_b32 m0, s26
        s_nop 0
        buffer_load_dwordx4 v5, s[8:11], s24 offen lds
        """)
    k(f"""
    v_mul_u32_u24 v12, 432, v12
    v_add_u32 v12, v12, v13
    v_bfe_u32 v5, v0, 1, 1
    v_lshlrev_b32 v5, 7, v5
    v_add_u32 v5, 128, v5
    v_add_u32 v13, v12, v5
    s_waitcnt vmcnt(0)
    s_barrier
    """)
    for w in range(1, 4): k(f"s_cmp_eq_u32 s4, {w}\ns_cbranch_scc1 P_q{w}")
    for w in range(4):
        k.label(f"P_q{w}")
        ts = [t for t in range(w, 14, 4)]
        for i, t in enumerate(ts):
            for b in range(2):
                if t == 4: k(f"ds_read_b64_tr_b16 {vr(20+4*i+2*b,2)}, v13 offset:{b*432}")
                else: k(f"ds_read_b64_tr_b16 {vr(20+4*i+2*b,2)}, v12 offset:{b*432 + tile_off(t)}")
        for i, t in enumerate(ts):
            k(f"s_waitcnt lgkmcnt({2*(len(ts)-1-i)})")
            k(f"s_add_u32 s26, s22, {t*1024}")
            if t == 13:
                k("s_mov_b64 exec, s[50:51]")
                k(f"buffer_store_dwordx4 {vr(20+4*i,4)}, v15, s[16:19], s26 offen")
            else:
                k(f"buffer_store_dwordx4 {vr(20+4*i,4)}, v14, s[16:19], s26 offen")
        k("s_endpgm")
    k.label("P_o")
    k(f"""
    s_sub_u32 s5, s2, {NQ}
    s_cmp_ge_u32 s5, 48
    s_cselect_b32 s6, 48, 0
    s_cselect_b64 s[8:9], s[42:43], s[36:37]
    s_mov_b32 s22, {PO[0]}
    s_cselect_b32 s22, {PO[1]}, s22
    s_mov_b32 s10, {WOB}
    s_sub_u32 s5, s5, s6
    s_mul_i32 s6, s5, 43
    s_lshr_b32 s6, s6, 8
    s_mul_i32 s7, s6, 6
    s_sub_u32 s7, s5, s7
    s_mul_i32 s23, s5, 13824
    s_add_u32 s22, s22, s23
    s_mul_i32 s24, s7, {96*1152}
    s_mul_i32 s25, s6, 144
    s_add_u32 s24, s24, s25
    """)
    for n in range(4):
        k(f"""
        s_lshl_b32 s26, s4, 6
        s_add_u32 s26, s26, {256*n}
        v_add_u32 v2, s26, v0
        v_cmp_gt_u32 vcc, 864, v2
        v_mul_u32_u24 v3, 7282, v2
        v_lshrrev_b32 v3, 16, v3
        v_mul_u32_u24 v4, 9, v3
        v_sub_u32 v2, v2, v4
        """)
        emit_k_from_rho(k, "v5", "v3", "v6")
        k(f"""
        v_mul_u32_u24 v5, 1152, v5
        v_lshl_add_u32 v5, v2, 4, v5
        v_cndmask_b32 v5, v16, v5, vcc
        s_lshl_b32 s26, s26, 4
        s_mov_b32 m0, s26
        s_nop 0
        buffer_load_dwordx4 v5, s[8:11], s24 offen lds
        """)
    k(f"""
    v_mul_u32_u24 v12, 144, v12
    v_add_u32 v12, v12, v13
    s_waitcnt vmcnt(0)
    s_barrier
    """)
    for w in range(1, 4): k(f"s_cmp_eq_u32 s4, {w}\ns_cbranch_scc1 P_o{w}")
    for w in range(4):
        k.label(f"P_o{w}")
        ts = [t for t in range(w, 15, 4)]
        for i, t in enumerate(ts):
            ks, ct = t // 5, t % 5
            for b in range(2):
                k(f"ds_read_b64_tr_b16 {vr(20+4*i+2*b,2)}, v12 offset:{ks*4608 + b*144 + 32*ct}")
        for i, t in enumerate(ts):
            ks, ct = t // 5, t % 5
            k(f"s_waitcnt lgkmcnt({2*(len(ts)-1-i)})")
            k(f"s_add_u32 s26, s22, {ks*4608 + ct*1024}")
            if ct == 4:
                k("s_mov_b64 exec, s[50:51]")
                k(f"buffer_store_dwordx4 {vr(20+4*i,4)}, v15, s[16:19], s26 offen")
                k("s_mov_b64 exec, -1")
            else:
                k(f"buffer_store_dwordx4 {vr(20+4*i,4)}, v14, s[16:19], s26 offen")
        k("s_endpgm")
    k.label("P_cs")
    k(f"""
    s_sub_u32 s5, s2, {NQ+NO}
    s_cmp_ge_u32 s5, 27
    s_cselect_b32 s6, 27, 0
    s_cselect_b64 s[8:9], s[40:41], s[34:35]
    s_mov_b32 s22, {CS[0]}
    s_cselect_b32 s22, {CS[1]}, s22
    s_mov_b32 s10, {WQB}
    s_sub_u32 s5, s5, s6
    s_lshl_b32 s24, s5, 7
    s_lshl_b32 s23, s5, 8
    s_add_u32 s22, s22, s23
    s_lshl_b32 s6, s4, 3
    v_lshrrev_b32 v2, 3, v0
    v_add_u32 v2, s6, v2
    v_and_b32 v3, 7, v0
    v_mul_u32_u24 v4, 3456, v2
    v_lshl_add_u32 v4, v3, 4, v4
    """)
    for r in range(18):
        k(f"buffer_load_dwordx4 {vr(24+4*r,4)}, v4, s[8:11], s24 offen")
        k(f"s_add_u32 s24, s24, {32*3456}")
    for i in range(8): k(f"v_mov_b32 v{8+i}, 0")
    for r in range(18):
        k(f"s_waitcnt vmcnt({17-r})")
        for d in range(4):
            k(f"""
            v_lshlrev_b32 v5, 16, v{24+4*r+d}
            v_and_b32 v6, 0xffff0000, v{24+4*r+d}
            v_add_f32 v{8+2*d}, v{8+2*d}, v5
            v_add_f32 v{9+2*d}, v{9+2*d}, v6
            """)
    k(f"""
    v_lshlrev_b32 v5, 8, v2
    v_lshl_add_u32 v5, v3, 5, v5
    ds_write_b128 v5, v[8:11]
    ds_write_b128 v5, v[12:15] offset:16
    s_waitcnt lgkmcnt(0)
    s_barrier
    s_cmp_lg_u32 s4, 0
    s_cbranch_scc1 P_exit
    v_lshlrev_b32 v5, 2, v0
    """)
    for r in range(32): k(f"ds_read_b32 v{24+r}, v5 offset:{256*r}")
    k("s_waitcnt lgkmcnt(0)")
    for st in (16, 8, 4, 2, 1):
        for i in range(st): k(f"v_add_f32 v{24+i}, v{24+i}, v{24+i+st}")
    k("buffer_store_dword v24, v5, s[16:19], s22 offen")
    k.label("P_exit")
    k("s_endpgm")

XST = 10240
STATS = 9*XST
D = 8
A0, A1, WF, ONES, ACC = 8, 28, 48, 112, 116
CSR = 156
vA0, vA1, vX, vX2, vW0, vW1 = "v1", "v7", "v164", "v165", "v166", "v167"
NVA = 168

def mkcol(kind, rts): return dict(kind=kind, rts=rts)
PROGS = {
    'P1': [mkcol('T', [1,2,3,4]), mkcol('T', [0,1,2,3,4])],
    'P2': [mkcol('T', [0,1,2,3,4]), mkcol('N', [0,1,2,3,4])],
    'P3': [mkcol('N', [0,1,2,3,4]), mkcol('N', [0,1,2,3,4])],
    'P4': [mkcol('S', [0,1,2,3,4]), mkcol('R', [0,1,2,3,4])],
}

def A_xoff(k, vdst, s_r0):
    k(f"""
    v_lshrrev_b32 v2, 3, v0
    v_add_u32 v2, {s_r0}, v2
    v_bfe_u32 v3, v2, 1, 3
    v_and_b32 v4, 7, v0
    v_xor_b32 v4, v4, v3
    v_add_u32 v2, s24, v2
    v_lshlrev_b32 v3, 1, v2
    v_add_u32 v3, s22, v3
    v_mul_u32_u24 v3, 1152, v3
    v_lshl_add_u32 {vdst}, v4, 4, v3
    v_bfrev_b32 v5, 1
    v_cmp_gt_i32 vcc, 0, v2
    s_nop 1
    v_cndmask_b32 {vdst}, {vdst}, v5, vcc
    """)

def gen_A(k):
    k.label("A_body")
    head(k, "A", 256)
    decode_wg(k)
    k(f"""
    s_lshr_b32 s22, s21, 4
    s_and_b32 s23, s21, 15
    s_lshl_b32 s24, s23, 6
    s_sub_u32 s24, s24, 16
    s_mul_i32 s25, s20, 144
    s_cmp_eq_u32 s3, 0
    s_cselect_b64 s[8:9], s[32:33], s[48:49]
    s_mov_b32 s10, {XB}
    s_mov_b32 s11, 0x20000
    s_mov_b32 s12, s48
    s_mov_b32 s13, s49
    s_mov_b32 s14, {WSZ}
    s_mov_b32 s15, 0x20000
    s_add_u32 s16, s48, {OOFF}
    s_addc_u32 s17, s49, 0
    s_mov_b32 s18, {XB}
    s_mov_b32 s19, 0x20000
    s_and_b32 s7, s3, 1
    s_cmp_eq_u32 s7, 0
    s_mov_b32 s28, {PQ[1]}
    s_cselect_b32 s28, {PQ[0]}, s28
    s_mov_b32 s29, {CS[1]}
    s_cselect_b32 s29, {CS[0]}, s29
    s_mul_i32 s7, s20, {18*13824}
    s_add_u32 s28, s28, s7
    s_lshl_b32 s26, s4, 3
    s_add_u32 s26, s26, 8
    """)
    A_xoff(k, vX, "s26")
    k(f"""
    s_lshl_b32 s26, s4, 10
    s_add_u32 s26, s26, 1024
    s_mov_b32 s27, 0
    s_add_u32 s31, s4, 5
    s_mov_b32 s30, s4
    s_cmp_lt_u32 s4, 5
    s_cbranch_scc1 A_tiles_ok
    s_lshl_b32 s30, s4, 1
    s_add_u32 s31, s30, 1
    """)
    k.label("A_tiles_ok")
    k(f"""
    v_lshlrev_b32 v2, 4, v0
    s_lshl_b32 s5, s30, 10
    v_add_u32 {vW0}, s5, v2
    s_lshl_b32 s5, s31, 10
    v_add_u32 {vW1}, s5, v2
    v_and_b32 v2, 15, v0
    v_lshrrev_b32 v3, 4, v0
    v_bfe_u32 v4, v0, 1, 3
    v_xor_b32 v4, v4, v3
    v_lshlrev_b32 v4, 4, v4
    v_lshl_add_u32 {vA0}, v2, 7, v4
    v_xor_b32 {vA1}, 64, {vA0}
    s_mul_i32 s5, s4, {XST}
    v_lshlrev_b32 v2, 4, v0
    v_add_u32 v6, s5, v2
    v_mov_b32 v8, 0
    v_mov_b32 v9, 0
    v_mov_b32 v10, 0
    v_mov_b32 v11, 0
    s_cmp_eq_u32 s4, 4
    s_cbranch_scc1 A_P2
    s_cmp_eq_u32 s4, 7
    s_cbranch_scc1 A_P4
    s_cmp_gt_u32 s4, 4
    s_cbranch_scc1 A_P3
    """)
    for p in ['P1', 'P2', 'P3', 'P4']:
        k.label(f"A_{p}")
        gen_A_prog(k, p)
    k.label("A_att")
    gen_A_att(k)
    k.label("A_exit")
    k("s_endpgm")

def gen_A_prog(k, p):
    cols = [dict(c) for c in PROGS[p]]
    a = ACC
    for c in cols:
        c['acc'] = {}
        for rt in c['rts']:
            c['acc'][rt] = a; a += 4
    nacc = a
    hasW = p != 'P4'
    if p == 'P3':
        k(f"""
        s_cmp_lg_u32 s4, 6
        s_cbranch_scc1 A_P3_nh
        v_and_b32 v2, 7, v0
        v_lshl_add_u32 v2, v3, 3, v2
        v_lshlrev_b32 v2, 4, v2
        v_add_u32 {vW1}, {13*1024}, v2
        """)
        k.label("A_P3_nh")
    if p == 'P4':
        k("s_mov_b32 s5, 72")
        A_xoff(k, vX2, "s5")
        for i in range(4): k(f"v_mov_b32 v{ONES+i}, 0x3f803f80")
    vq = []
    def issue_x(s):
        k(f"""
        s_add_u32 m0, s26, {s*XST}
        s_nop 0
        buffer_load_dwordx4 {vX}, s[8:11], s27 offen lds
        """)
        vq.append(('x', s))
        if p == 'P4':
            k(f"""
            s_mov_b32 m0, {s*XST + 9*1024}
            s_nop 0
            buffer_load_dwordx4 {vX2}, s[8:11], s27 offen lds
            """)
            vq.append(('x', s))
        k("s_add_u32 s27, s27, 128")
    def issue_w(ks):
        if not hasW: return
        for c in range(2):
            k(f"buffer_load_dwordx4 {vr(WF + 8*(ks % D) + 4*c, 4)}, {vW0 if c == 0 else vW1}, s[12:15], s28 offen")
            vq.append(('w', ks))
        k(f"s_add_u32 s28, s28, 13824")
    def vwait(tag):
        idx = -1
        for i, t in enumerate(vq):
            if t == tag: idx = i
        if idx >= 0:
            k(f"s_waitcnt vmcnt({len(vq)-1-idx})")
            del vq[:idx+1]
    def issue_for(ks):
        if ks >= 18: return
        if ks % 2 == 0: issue_x(ks // 2)
        issue_w(ks)
    for ks in range(D): issue_for(ks)
    k(f"ds_write_b128 v6, v[8:11]")
    if p == 'P4': k(f"ds_write_b128 v6, v[8:11] offset:{XST}")
    for r in range(ACC, nacc): k(f"v_mov_b32 v{r}, 0")
    vwait(('x', 0))
    k("s_waitcnt lgkmcnt(0)\ns_barrier")
    stamp(k, 1)
    def rdA(ks):
        base = A0 if ks % 2 == 0 else A1
        st = ks // 2
        for rt in range(5):
            if p == 'P1' and False: pass
            off = st*XST + rt*2048
            adr = vA0 if ks % 2 == 0 else vA1
            if off >= 61440:
                k(f"ds_read_b128 {vr(base+4*rt,4)}, {'v4' if ks % 2 == 0 else 'v5'} offset:{off-61440}")
            else:
                k(f"ds_read_b128 {vr(base+4*rt,4)}, {adr} offset:{off}")
    k(f"v_add_u32 v4, 61440, {vA0}\nv_add_u32 v5, 61440, {vA1}")
    rdA(0)
    for ks in range(18):
        base = A0 if ks % 2 == 0 else A1
        if ks + 1 < 18:
            if (ks + 1) % 2 == 0:
                vwait(('x', (ks+1)//2))
                k("s_barrier")
            rdA(ks + 1)
            k("s_waitcnt lgkmcnt(5)")
        else:
            k("s_waitcnt lgkmcnt(0)")
        vwait(('w', ks))
        for ci, c in enumerate(cols):
            wf = vr(WF + 8*(ks % D) + 4*ci, 4)
            for rt in c['rts']:
                d = vr(c['acc'][rt], 4); x = vr(base+4*rt, 4)
                if c['kind'] == 'T': k(f"v_mfma_f32_16x16x32_bf16 {d}, {wf}, {x}, {d}")
                elif c['kind'] == 'N': k(f"v_mfma_f32_16x16x32_bf16 {d}, {x}, {wf}, {d}")
                elif c['kind'] == 'S': k(f"v_mfma_f32_16x16x32_bf16 {d}, {x}, {x}, {d}")
                else: k(f"v_mfma_f32_16x16x32_bf16 {d}, {vr(ONES,4)}, {x}, {d}")
        issue_for(ks + D)
        if ks == 17 - D and hasW:
            k(f"""
            v_lshrrev_b32 v3, 4, v0
            v_and_b32 v2, 15, v0
            s_lshl_b32 s5, s25, 1
            s_add_u32 s5, s5, s29
            """)
            for ci, c in enumerate(cols):
                st = "s30" if ci == 0 else "s31"
                if p == 'P1':
                    k(f"s_lshl_b32 s6, s4, 6\ns_add_u32 s6, s6, {0 if ci == 0 else 576*4}\ns_add_u32 s6, s6, s5")
                    k(f"v_lshlrev_b32 v6, 4, v3\nbuffer_load_dwordx4 {vr(CSR+4*ci,4)}, v6, s[12:15], s6 offen")
                elif p == 'P2':
                    if ci == 0:
                        k(f"""
                        v_lshlrev_b32 v6, 4, v3
                        v_lshrrev_b32 v161, 1, v3
                        v_mul_u32_u24 v161, {576*4 - 32}, v161
                        v_add_u32 v6, v6, v161
                        s_add_u32 s6, s5, 256
                        buffer_load_dwordx4 {vr(CSR,4)}, v6, s[12:15], s6 offen
                        """)
                    else:
                        k(f"v_lshlrev_b32 v6, 2, v2\ns_add_u32 s6, s5, {1152*4}\nbuffer_load_dword v{CSR+4}, v6, s[12:15], s6 offen")
                else:
                    k(f"s_sub_u32 s6, {st}, 9\ns_lshl_b32 s6, s6, 6\ns_add_u32 s6, s6, {1152*4}\ns_add_u32 s6, s6, s5")
                    k(f"v_lshlrev_b32 v6, 2, v2\nbuffer_load_dword v{CSR+4*ci}, v6, s[12:15], s6 offen")
                vq.append(('cs', 0))
    k("s_nop 7\ns_nop 7")
    stamp(k, 2)
    if p == 'P4':
        S = cols[0]; R = cols[1]
        k(f"""
        v_and_b32 v2, 15, v0
        v_lshrrev_b32 v3, 4, v0
        v_lshrrev_b32 v4, 2, v2
        v_cmp_eq_u32 s[50:51], v3, v4
        v_and_b32 v4, 3, v0
        v_cmp_eq_u32 s[52:53], 1, v4
        v_cmp_eq_u32 s[54:55], 2, v4
        v_cmp_eq_u32 s[56:57], 3, v4
        v_lshlrev_b32 v5, 3, v2
        v_add_u32 v5, {STATS}, v5
        s_mov_b32 s58, 0x3ae38e39
        s_mov_b32 s59, 0x3727c5ac
        """)
        for rt in range(5):
            s = S['acc'][rt]; r = R['acc'][rt]
            k(f"""
            v_cndmask_b32 v8, v{s}, v{s+1}, s[52:53]
            v_cndmask_b32 v8, v8, v{s+2}, s[54:55]
            v_cndmask_b32 v8, v8, v{s+3}, s[56:57]
            v_mul_f32 v9, s58, v{r}
            v_mul_f32 v8, s58, v8
            v_fma_f32 v8, -v9, v9, v8
            v_max_f32 v8, 0, v8
            v_add_f32 v8, s59, v8
            v_rsq_f32 v{10+2*rt}, v8
            s_nop 0
            v_mul_f32 v{11+2*rt}, v9, v{10+2*rt}
            """)
        k("s_mov_b64 exec, s[50:51]")
        for rt in range(5):
            k(f"ds_write_b64 v5, {vr(10+2*rt,2)} offset:{rt*128}")
        k("s_mov_b64 exec, -1")
        k("s_waitcnt lgkmcnt(0)")
        k("s_barrier")
        stamp(k, 3)
        k("s_branch A_att")
        return
    k("s_barrier")
    stamp(k, 3)
    hasT = any(c['kind'] == 'T' for c in cols); hasN = any(c['kind'] == 'N' for c in cols)
    TS, NS = 48, 8
    k(f"""
    v_and_b32 v2, 15, v0
    v_lshlrev_b32 v2, 3, v2
    v_add_u32 v2, {STATS}, v2
    v_lshrrev_b32 v3, 4, v0
    v_lshlrev_b32 v3, 5, v3
    v_add_u32 v3, {STATS}, v3
    v_lshlrev_b32 v4, 3, v0
    s_mul_i32 s5, s30, 2560
    v_add_u32 v5, s5, v4
    s_mul_i32 s5, s31, 2560
    v_add_u32 v6, s5, v4
    """)
    if hasT:
        for rt in range(5): k(f"ds_read_b64 {vr(TS+2*rt,2)}, v2 offset:{rt*128}")
    if hasN:
        for rt in range(5):
            k(f"ds_read_b128 {vr(NS+8*rt,4)}, v3 offset:{rt*128}")
            k(f"ds_read_b128 {vr(NS+8*rt+4,4)}, v3 offset:{rt*128+16}")
    k("s_waitcnt vmcnt(0) lgkmcnt(0)")
    t = 58
    for ci, c in enumerate(cols):
        cs = CSR + 4*ci
        for rt in c['rts']:
            a = c['acc'][rt]
            for i in range(4):
                if c['kind'] == 'T':
                    k(f"v_mul_f32 v{t+i}, v{a+i}, v{TS+2*rt}")
                    k(f"v_fma_f32 v{t+i}, -v{TS+2*rt+1}, v{cs+i}, v{t+i}")
                else:
                    k(f"v_mul_f32 v{t+i}, v{a+i}, v{NS+8*rt+2*i}")
                    k(f"v_fma_f32 v{t+i}, -v{NS+8*rt+2*i+1}, v{cs}, v{t+i}")
            k(f"v_cvt_pk_bf16_f32 v{a}, v{t}, v{t+1}")
            k(f"v_cvt_pk_bf16_f32 v{a+1}, v{t+2}, v{t+3}")
            k(f"ds_write_b64 v{5+ci}, {vr(a,2)} offset:{1024 + rt*512}")
    k("s_branch A_att")

def gen_A_att(k):
    k(f"""
    s_and_b32 s31, s4, 3
    v_and_b32 v2, 15, v0
    v_lshrrev_b32 v3, 4, v0
    v_lshlrev_b32 v3, 2, v3
    v_sub_u32 v4, v2, v3
    """)
    for i in range(4):
        k(f"""
        v_add_u32 v5, {16-i}, v4
        v_cmp_gt_u32 s[{60+2*i}:{61+2*i}], 8, v5
        v_subrev_u32 v5, {i}, v4
        v_cmp_gt_u32 s[{68+2*i}:{69+2*i}], 8, v5
        """)
    k(f"""
    s_or_b32 s30, s31, s23
    s_cmp_lg_u32 s30, 0
    s_cbranch_scc1 A_nofirst
    s_mov_b64 s[60:61], 0
    s_mov_b64 s[62:63], 0
    s_mov_b64 s[64:65], 0
    s_mov_b64 s[66:67], 0
    """)
    k.label("A_nofirst")
    k(f"""
    s_lshl_b32 s30, s31, 4
    s_add_u32 s30, s30, s24
    s_add_u32 s30, s30, 16
    v_add_u32 v5, s30, v2
    v_lshlrev_b32 v5, 1, v5
    v_add_u32 v5, s22, v5
    v_mul_u32_u24 v5, 1152, v5
    v_lshl_add_u32 v5, v3, 1, v5
    v_add_u32 v20, s25, v5
    v_add_u32 v6, 2, v3
    s_lshl_b32 s30, s31, 9
    v_lshlrev_b32 v7, 3, v0
    v_add_u32 v7, s30, v7
    v_add_u32 v8, 32, v0
    v_and_b32 v8, 63, v8
    v_lshlrev_b32 v8, 3, v8
    v_add_u32 v8, s30, v8
    v_add_u32 v8, {1024 + 4*2560}, v8
    s_mov_b32 s58, 0x3eae1a93
    v_mov_b32 v9, 0xff800000
    s_waitcnt lgkmcnt(0)
    """)
    stamp(k, 4)
    k("s_barrier")
    stamp(k, 5)
    for u in range(2):
        k(f"""
        s_lshr_b32 s30, s4, 2
        s_add_u32 s30, s30, {2*u}
        s_lshl_b32 s76, s30, 1
        s_add_u32 s77, s76, 2
        s_mul_i32 s78, s30, 2560
        v_add_u32 v10, s78, v7
        v_add_u32 v11, {1024 + 6*2560}, v10
        """)
        if u == 1:
            k(f"""
            s_cmp_eq_u32 s30, 3
            s_cselect_b64 vcc, -1, 0
            s_nop 1
            v_cndmask_b32 v11, v11, v8, vcc
            """)
        k(f"""
        ds_read_b64 v[24:25], v10 offset:{1024 + 512}
        ds_read_b64 v[26:27], v10 offset:{1024 + 2560 + 512}
        ds_read_b64 v[28:29], v10 offset:{1024 + 5*2560}
        ds_read_b64 v[30:31], v11
        ds_read_b64 v[32:33], v10 offset:{1024 + 5*2560 + 512}
        ds_read_b64 v[34:35], v11 offset:512
        ds_read_b64 v[36:37], v10 offset:{1024 + 9*2560}
        ds_read_b64 v[38:39], v10 offset:{1024 + 9*2560 + 512}
        ds_read_b64 v[40:41], v10 offset:{1024 + 10*2560}
        ds_read_b64 v[42:43], v10 offset:{1024 + 10*2560 + 512}
        v_cmp_le_u32 s[80:81], s76, v3
        v_cmp_le_u32 s[82:83], s76, v6
        v_cmp_gt_u32 s[52:53], s77, v3
        v_cmp_gt_u32 s[54:55], s77, v6
        s_waitcnt lgkmcnt(8)
        v_cndmask_b32 v24, 0, v24, s[80:81]
        v_cndmask_b32 v25, 0, v25, s[82:83]
        v_cndmask_b32 v26, 0, v26, s[52:53]
        v_cndmask_b32 v27, 0, v27, s[54:55]
        s_waitcnt lgkmcnt(4)
        s_nop 0
        v_mfma_f32_16x16x32_bf16 v[44:47], v[28:31], v[24:27], 0
        v_mfma_f32_16x16x32_bf16 v[48:51], v[32:35], v[24:27], 0
        s_nop 7
        s_nop 1
        """)
        for i in range(4):
            k(f"v_cndmask_b32 v{44+i}, v9, v{44+i}, s[{60+2*i}:{61+2*i}]")
        for i in range(4):
            k(f"v_cndmask_b32 v{48+i}, v9, v{48+i}, s[{68+2*i}:{69+2*i}]")
        k(f"""
        v_max3_f32 v52, v44, v45, v46
        v_max3_f32 v53, v47, v48, v49
        v_max3_f32 v52, v52, v50, v51
        v_max_f32 v52, v52, v53
        v_mov_b32 v53, v52
        s_nop 1
        v_permlane32_swap_b32 v52, v53
        v_max_f32 v52, v52, v53
        v_mov_b32 v53, v52
        s_nop 1
        v_permlane16_swap_b32 v52, v53
        v_max_f32 v52, v52, v53
        v_mul_f32 v52, s58, v52
        """)
        for i in range(8):
            k(f"v_fma_f32 v{44+i}, v{44+i}, s58, -v52")
        for i in range(8):
            k(f"v_exp_f32 v{44+i}, v{44+i}")
        k(f"""
        s_nop 0
        v_add_f32 v52, v44, v45
        v_add_f32 v53, v46, v47
        v_add_f32 v54, v48, v49
        v_add_f32 v55, v50, v51
        v_add_f32 v52, v52, v53
        v_add_f32 v54, v54, v55
        v_add_f32 v52, v52, v54
        v_mov_b32 v53, v52
        s_nop 1
        v_permlane32_swap_b32 v52, v53
        v_add_f32 v52, v52, v53
        v_mov_b32 v53, v52
        s_nop 1
        v_permlane16_swap_b32 v52, v53
        v_add_f32 v52, v52, v53
        v_rcp_f32 v52, v52
        s_nop 0
        """)
        for i in range(8):
            k(f"v_mul_f32 v{44+i}, v{44+i}, v52")
        for i in range(4):
            k(f"v_cvt_pk_bf16_f32 v{56+i}, v{44+2*i}, v{45+2*i}")
        k(f"""
        s_waitcnt lgkmcnt(0)
        s_nop 0
        v_mfma_f32_16x16x32_bf16 v[44:47], v[36:39], v[56:59], 0
        v_mfma_f32_16x16x32_bf16 v[48:51], v[40:43], v[56:59], 0
        s_lshl_b32 s78, s30, 5
        v_add_u32 v21, s78, v20
        s_nop 7
        v_cvt_pk_bf16_f32 v52, v44, v45
        v_cvt_pk_bf16_f32 v53, v46, v47
        v_cvt_pk_bf16_f32 v54, v48, v49
        v_cvt_pk_bf16_f32 v55, v50, v51
        s_mov_b64 exec, s[80:81]
        buffer_store_dword v52, v21, s[16:19], 0 offen
        s_mov_b64 exec, s[82:83]
        buffer_store_dword v53, v21, s[16:19], 0 offen offset:4
        s_mov_b64 exec, s[52:53]
        buffer_store_dword v54, v21, s[16:19], 0 offen offset:32
        s_mov_b64 exec, s[54:55]
        buffer_store_dword v55, v21, s[16:19], 0 offen offset:36
        s_mov_b64 exec, -1
        """)
    stamp(k, 6)
    if DBG: k("s_waitcnt vmcnt(0)")
    stamp(k, 7)
    dump(k, 8, "s4")
    k("s_endpgm")

BST = 17408
def gen_B(k):
    k.label("B_body")
    head(k, "B", 256)
    decode_wg(k)
    k(f"""
    s_add_u32 s8, s48, {OOFF}
    s_addc_u32 s9, s49, 0
    s_mov_b32 s10, {XB}
    s_mov_b32 s11, 0x20000
    s_mov_b32 s12, s48
    s_mov_b32 s13, s49
    s_mov_b32 s14, {WSZ}
    s_mov_b32 s15, 0x20000
    s_and_b32 s7, s3, 1
    s_cmp_eq_u32 s7, 0
    s_mov_b32 s22, {PO[1]}
    s_cselect_b32 s22, {PO[0]}, s22
    s_mul_i32 s7, s20, {18*4608}
    s_add_u32 s22, s22, s7
    s_cmp_eq_u32 s3, 0
    s_cselect_b64 s[16:17], s[32:33], s[48:49]
    s_mov_b32 s18, {XB}
    s_mov_b32 s19, 0x20000
    s_cmp_eq_u32 s3, 3
    s_cselect_b64 s[24:25], s[44:45], s[48:49]
    s_mov_b32 s26, {XB}
    s_mov_b32 s27, 0x20000
    s_mul_i32 s28, s20, 144
    s_lshl_b32 s29, s21, 6
    """)
    k(f"""
    s_lshl_b32 s6, s4, 3
    v_lshrrev_b32 v4, 3, v0
    v_add_u32 v4, s6, v4
    v_bfe_u32 v5, v4, 1, 3
    v_and_b32 v6, 7, v0
    v_xor_b32 v6, v6, v5
    v_add_u32 v4, s29, v4
    v_mul_u32_u24 v4, 1152, v4
    v_lshl_add_u32 v8, v6, 4, v4
    v_lshlrev_b32 v11, 4, v0
    s_lshl_b32 s5, s4, 10
    v_add_u32 v9, s5, v11
    v_add_u32 v10, 8192, v11
    s_mov_b64 s[50:51], 0xff
    s_lshl_b64 s[50:51], s[50:51], s6
    s_mov_b32 s7, 0
    """)
    for st in range(9):
        k(f"""
        s_add_u32 m0, s5, {st*BST}
        s_nop 0
        buffer_load_dwordx4 v8, s[8:11], s7 offen lds
        s_add_u32 m0, s5, {st*BST + 8192}
        s_add_u32 s7, s7, 128
        buffer_load_dwordx4 v9, s[12:15], s22 offen lds
        s_mov_b32 m0, {st*BST + 8192 + 8192}
        s_mov_b64 exec, s[50:51]
        buffer_load_dwordx4 v10, s[12:15], s22 offen lds
        s_mov_b64 exec, -1
        s_add_u32 s22, s22, 9216
        """)
        if st == 1:
            k(f"""
            s_and_b32 s30, s4, 3
            s_lshl_b32 s30, s30, 4
            s_add_u32 s31, s30, s29
            v_and_b32 v2, 15, v0
            v_lshrrev_b32 v3, 4, v0
            v_add_u32 v4, s31, v2
            v_mul_u32_u24 v4, 1152, v4
            v_lshl_add_u32 v4, v3, 3, v4
            s_lshr_b32 s31, s4, 2
            s_mul_i32 s6, s31, 96
            s_add_u32 s6, s6, s28
            v_add_u32 v20, s6, v4
            buffer_load_dwordx2 v[24:25], v20, s[16:19], 0 offen
            buffer_load_dwordx2 v[26:27], v20, s[16:19], 0 offen offset:32
            buffer_load_dwordx2 v[28:29], v20, s[16:19], 0 offen offset:64
            """)
    k(f"""
    v_bfe_u32 v4, v0, 1, 3
    v_xor_b32 v4, v4, v3
    v_lshlrev_b32 v4, 4, v4
    v_add_u32 v5, s30, v2
    v_lshl_add_u32 v12, v5, 7, v4
    v_xor_b32 v13, 64, v12
    s_mul_i32 s6, s31, 3072
    s_add_u32 s6, s6, 8192
    v_add_u32 v14, s6, v11
    v_and_b32 v4, 7, v0
    v_lshl_add_u32 v4, v3, 3, v4
    v_lshlrev_b32 v4, 4, v4
    v_add_u32 v15, {8192 + 4096}, v4
    """)
    for r in range(32, 44): k(f"v_mov_b32 v{r}, 0")
    stamp(k, 1)
    k("""
    s_cmp_ge_u32 s4, 4
    s_cbranch_scc1 B_h1
    """)
    for half in range(2):
        k.label(f"B_h{half}")
        n = 3 if half == 0 else 2
        def reads(p):
            for ks in range(2):
                k(f"ds_read_b128 {vr(48+32*p+4*ks,4)}, v{12+ks}")
                for ct in range(n):
                    if half == 1 and ct == 1:
                        k(f"ds_read_b128 {vr(56+32*p+12*ks+4*ct,4)}, v15 offset:{ks*4608}")
                    else:
                        k(f"ds_read_b128 {vr(56+32*p+12*ks+4*ct,4)}, v14 offset:{ks*4608 + 1024*ct}")
        def mm(p):
            for ks in range(2):
                for ct in range(n):
                    d = vr(32+4*ct, 4)
                    k(f"v_mfma_f32_16x16x32_bf16 {d}, {vr(56+32*p+12*ks+4*ct,4)}, {vr(48+32*p+4*ks,4)}, {d}")
        nreads = 2 + 2*n
        for st in range(9):
            k(f"s_waitcnt vmcnt({3*(8-st) + (3 if st < 2 else 0)})")
            k("s_barrier")
            if st == 0: stamp(k, 2)
            reads(st % 2)
            if st < 8:
                k(f"""
                v_add_u32 v12, {BST}, v12
                v_add_u32 v13, {BST}, v13
                v_add_u32 v14, {BST}, v14
                v_add_u32 v15, {BST}, v15
                """)
            if st > 0:
                k(f"s_waitcnt lgkmcnt({nreads})")
                mm((st-1) % 2)
        k("s_waitcnt lgkmcnt(0)")
        mm(0)
        k("s_nop 7\ns_nop 3")
        stamp(k, 3)
        for ct in range(n):
            d = 32 + 4*ct; x = 24 + 2*ct
            k(f"""
            v_cvt_pk_bf16_f32 v4, v{d}, v{d+1}
            v_cvt_pk_bf16_f32 v5, v{d+2}, v{d+3}
            v_lshlrev_b32 v6, 16, v4
            v_and_b32 v7, 0xffff0000, v4
            v_lshlrev_b32 v8, 16, v5
            v_and_b32 v9, 0xffff0000, v5
            v_lshlrev_b32 v10, 16, v{x}
            v_and_b32 v11, 0xffff0000, v{x}
            v_add_f32 v6, v6, v10
            v_add_f32 v7, v7, v11
            v_lshlrev_b32 v10, 16, v{x+1}
            v_and_b32 v11, 0xffff0000, v{x+1}
            v_add_f32 v8, v8, v10
            v_add_f32 v9, v9, v11
            v_cvt_pk_bf16_f32 v{d}, v6, v7
            v_cvt_pk_bf16_f32 v{d+1}, v8, v9
            """)
            if half == 1 and ct == 1: k("s_mov_b64 exec, 0xffffffff")
            k(f"buffer_store_dwordx2 {vr(d,2)}, v20, s[24:27], 0 offen offset:{32*ct}")
        k("s_mov_b64 exec, -1")
        stamp(k, 4)
        if DBG: k("s_waitcnt vmcnt(0)")
        stamp(k, 5)
        dump(k, 6, "s4")
        k("s_endpgm")
    k.label("B_exit")
    k("s_endpgm")

def kd(name, vgpr, sgpr=100):
    acc = (vgpr + 3)//4*4
    return f""".p2align 6
.amdhsa_kernel {name}
  .amdhsa_next_free_vgpr {vgpr}
  .amdhsa_next_free_sgpr {sgpr}
  .amdhsa_accum_offset {acc}
  .amdhsa_group_segment_fixed_size 0
  .amdhsa_kernarg_size 72
  .amdhsa_user_sgpr_count 2
  .amdhsa_user_sgpr_kernarg_segment_ptr 1
  .amdhsa_system_sgpr_workgroup_id_x 1
.end_amdhsa_kernel
"""

def main():
    out = sys.argv[1]
    global DBG
    DBG = len(sys.argv) > 2
    hdr = [f"; @launch kernel=p_kernel grid=({NQ+NO+NC},1,1) block=(256,1,1) lds=16384"]
    for l in range(4):
        hdr.append(f"; @launch kernel=a{l}_kernel grid=(256,1,1) block=(512,1,1) lds={STATS+1024}")
        hdr.append(f"; @launch kernel=b{l}_kernel grid=(256,1,1) block=(512,1,1) lds={9*BST+128}")
    k = K()
    k.raw('.amdgcn_target "amdgcn-amd-amdhsa--gfx950"\n.text')
    names = []
    for l in range(4):
        for p in "ab":
            n = f"{p}{l}_kernel"; names.append(n)
            k.raw(f".globl {n}\n.p2align 8\n.type {n},@function\n{n}:")
            k(f"s_mov_b32 s3, {l}\ns_branch {p.upper()}_body")
    k.raw(f".globl p_kernel\n.p2align 8\n.type p_kernel,@function\np_kernel:")
    gen_P(k)
    k.raw(".p2align 8")
    gen_A(k)
    k.raw(".p2align 8")
    gen_B(k)
    k.raw('.section .rodata,"a"')
    for n in names:
        k.raw(kd(n, NVA if n[0] == 'a' else 112))
    k.raw(kd("p_kernel", 96))
    open(out, "w").write("\n".join(hdr) + "\n" + k.text())
main()
```

```python
import sys

XB = 2048 * 576 * 2
WQB = 576 * 1728 * 2
WOB = 576 * 576 * 2
XSTR = 0x280000
XBUF = [0x000000, 0x280000, 0x500000, 0x780000]
OBUF = [0xA00000, 0xC80000, 0xF00000, 0x1180000]
PQ = [0x1400000, 0x1600000]
PO = [0x1800000, 0x1A00000]
CS = [0x1B00000, 0x1B10000]
FLG = 0x1B20000
DBGO = 0x1900000
WSZ = 0x2000000
BLK = 73728

class K:
    def __init__(self): self.l = []; self.bg = []
    def bgp(self, n=1):
        for _ in range(n):
            if self.bg: self(self.bg.pop(0))
    def __call__(self, s):
        for x in s.strip().split("\n"):
            x = x.strip()
            if x: self.l.append("    " + x)
    def label(self, n): self.l.append(n + ":")
    def raw(self, s): self.l.append(s)
    def text(self): return "\n".join(self.l) + "\n"

DBG = False
import os
EXP = os.environ.get("EXP", "")
def stamp(k):
    if DBG:
        k("""s_memtime s[98:99]
        s_waitcnt lgkmcnt(0)
        s_mov_b32 m0, s100
        v_writelane_b32 v68, s98, m0
        s_add_u32 s100, s100, 1""")
def vr(a, n): return f"v[{a}:{a+n-1}]"

def head(k, pfx, nwg):
    k(f"""
    s_cmp_ge_u32 s2, {nwg}
    s_cbranch_scc1 {pfx}_exit
    s_load_dwordx16 s[32:47], s[0:1], 0
    s_load_dwordx2 s[48:49], s[0:1], 64
    v_lshrrev_b32 v1, 6, v0
    v_and_b32 v0, 63, v0
    v_readfirstlane_b32 s4, v1
    """)

def emit_k_from_rho(k, vk, vrho, vt):
    k(f"""
    v_and_b32 {vk}, 0x78, {vrho}
    v_bfe_u32 {vt}, {vrho}, 1, 2
    v_or_b32 {vk}, {vk}, {vt}
    v_and_b32 {vt}, 1, {vrho}
    v_lshl_or_b32 {vk}, {vt}, 2, {vk}
    """)

def tile_off(t):
    if t < 4: return 32*t
    if t == 4: return None
    if t < 9: return 144 + 32*(t-5)
    return 288 + 32*(t-9)

NQ, NO, NC = 288, 96, 54
NX = 72
NP = NQ + NO + NC + 1 + NX
def gen_P(k):
    k.label("P_body")
    head(k, "P", NP)
    k(f"""
    s_waitcnt lgkmcnt(0)
    s_mov_b32 s16, s48
    s_mov_b32 s17, s49
    s_mov_b32 s18, {WSZ}
    s_mov_b32 s19, 0x20000
    s_mov_b32 s11, 0x20000
    v_lshrrev_b32 v3, 4, v0
    v_bfe_u32 v4, v0, 2, 2
    v_lshlrev_b32 v4, 1, v4
    v_lshl_add_u32 v12, v3, 3, v4
    v_and_b32 v13, 3, v0
    v_lshlrev_b32 v13, 3, v13
    v_lshlrev_b32 v14, 4, v0
    v_and_b32 v4, 7, v0
    v_lshl_add_u32 v15, v3, 3, v4
    v_lshlrev_b32 v15, 4, v15
    v_and_b32 v4, 8, v0
    v_cmp_eq_u32 s[50:51], 0, v4
    v_bfrev_b32 v16, 1
    s_cmp_gt_u32 s2, {NQ+NO+NC}
    s_cbranch_scc1 P_x
    s_cmp_eq_u32 s2, {NQ+NO+NC}
    s_cbranch_scc1 P_flg
    s_cmp_ge_u32 s2, {NQ+NO}
    s_cbranch_scc1 P_cs
    s_cmp_ge_u32 s2, {NQ}
    s_cbranch_scc1 P_o
    """)
    k(f"""
    s_cmp_ge_u32 s2, 144
    s_cselect_b32 s5, 144, 0
    s_cselect_b64 s[8:9], s[40:41], s[34:35]
    s_mov_b32 s22, {PQ[0]}
    s_cselect_b32 s22, {PQ[1]}, s22
    s_mov_b32 s10, {WQB}
    s_sub_u32 s5, s2, s5
    s_mul_i32 s6, s5, 3641
    s_lshr_b32 s6, s6, 16
    s_mul_i32 s7, s6, 18
    s_sub_u32 s7, s5, s7
    s_mul_i32 s23, s5, 13824
    s_add_u32 s22, s22, s23
    s_mul_i32 s24, s7, {32*3456}
    s_mul_i32 s25, s6, 144
    s_add_u32 s24, s24, s25
    """)
    for n in range(4):
        k(f"""
        s_lshl_b32 s26, s4, 6
        s_add_u32 s26, s26, {256*n}
        v_add_u32 v2, s26, v0
        v_cmp_gt_u32 vcc, 864, v2
        v_mul_u32_u24 v3, 2428, v2
        v_lshrrev_b32 v3, 16, v3
        v_mul_u32_u24 v4, 27, v3
        v_sub_u32 v2, v2, v4
        v_mul_u32_u24 v4, 57, v2
        v_lshrrev_b32 v4, 9, v4
        v_mul_u32_u24 v5, 9, v4
        v_sub_u32 v2, v2, v5
        """)
        emit_k_from_rho(k, "v5", "v3", "v6")
        k(f"""
        v_mul_u32_u24 v5, 3456, v5
        v_mul_u32_u24 v4, 1152, v4
        v_add_u32 v5, v5, v4
        v_lshl_add_u32 v5, v2, 4, v5
        v_cndmask_b32 v5, v16, v5, vcc
        s_lshl_b32 s26, s26, 4
        s_mov_b32 m0, s26
        s_nop 0
        buffer_load_dwordx4 v5, s[8:11], s24 offen lds
        """)
    k(f"""
    v_mul_u32_u24 v12, 432, v12
    v_add_u32 v12, v12, v13
    v_bfe_u32 v5, v0, 1, 1
    v_lshlrev_b32 v5, 7, v5
    v_add_u32 v5, 128, v5
    v_add_u32 v13, v12, v5
    s_waitcnt vmcnt(0)
    s_barrier
    """)
    for w in range(1, 4): k(f"s_cmp_eq_u32 s4, {w}\ns_cbranch_scc1 P_q{w}")
    for w in range(4):
        k.label(f"P_q{w}")
        ts = [t for t in range(w, 14, 4)]
        for i, t in enumerate(ts):
            for b in range(2):
                if t == 4: k(f"ds_read_b64_tr_b16 {vr(20+4*i+2*b,2)}, v13 offset:{b*432}")
                else: k(f"ds_read_b64_tr_b16 {vr(20+4*i+2*b,2)}, v12 offset:{b*432 + tile_off(t)}")
        for i, t in enumerate(ts):
            k(f"s_waitcnt lgkmcnt({2*(len(ts)-1-i)})")
            k(f"s_add_u32 s26, s22, {t*1024}")
            if t == 13:
                k("s_mov_b64 exec, s[50:51]")
                k(f"buffer_store_dwordx4 {vr(20+4*i,4)}, v15, s[16:19], s26 offen")
            else:
                k(f"buffer_store_dwordx4 {vr(20+4*i,4)}, v14, s[16:19], s26 offen")
        k("s_endpgm")
    k.label("P_o")
    k(f"""
    s_sub_u32 s5, s2, {NQ}
    s_cmp_ge_u32 s5, 48
    s_cselect_b32 s6, 48, 0
    s_cselect_b64 s[8:9], s[42:43], s[36:37]
    s_mov_b32 s22, {PO[0]}
    s_cselect_b32 s22, {PO[1]}, s22
    s_mov_b32 s10, {WOB}
    s_sub_u32 s5, s5, s6
    s_mul_i32 s6, s5, 43
    s_lshr_b32 s6, s6, 8
    s_mul_i32 s7, s6, 6
    s_sub_u32 s7, s5, s7
    s_mul_i32 s23, s5, 13824
    s_add_u32 s22, s22, s23
    s_mul_i32 s24, s7, {96*1152}
    s_mul_i32 s25, s6, 144
    s_add_u32 s24, s24, s25
    """)
    for n in range(4):
        k(f"""
        s_lshl_b32 s26, s4, 6
        s_add_u32 s26, s26, {256*n}
        v_add_u32 v2, s26, v0
        v_cmp_gt_u32 vcc, 864, v2
        v_mul_u32_u24 v3, 7282, v2
        v_lshrrev_b32 v3, 16, v3
        v_mul_u32_u24 v4, 9, v3
        v_sub_u32 v2, v2, v4
        """)
        emit_k_from_rho(k, "v5", "v3", "v6")
        k(f"""
        v_mul_u32_u24 v5, 1152, v5
        v_lshl_add_u32 v5, v2, 4, v5
        v_cndmask_b32 v5, v16, v5, vcc
        s_lshl_b32 s26, s26, 4
        s_mov_b32 m0, s26
        s_nop 0
        buffer_load_dwordx4 v5, s[8:11], s24 offen lds
        """)
    k(f"""
    v_mul_u32_u24 v12, 144, v12
    v_add_u32 v12, v12, v13
    s_waitcnt vmcnt(0)
    s_barrier
    """)
    for w in range(1, 4): k(f"s_cmp_eq_u32 s4, {w}\ns_cbranch_scc1 P_o{w}")
    for w in range(4):
        k.label(f"P_o{w}")
        ts = [t for t in range(w, 15, 4)]
        for i, t in enumerate(ts):
            ks, ct = t // 5, t % 5
            for b in range(2):
                k(f"ds_read_b64_tr_b16 {vr(20+4*i+2*b,2)}, v12 offset:{ks*4608 + b*144 + 32*ct}")
        for i, t in enumerate(ts):
            ks, ct = t // 5, t % 5
            k(f"s_waitcnt lgkmcnt({2*(len(ts)-1-i)})")
            k(f"s_add_u32 s26, s22, {ks*4608 + ct*1024}")
            if ct == 4:
                k("s_mov_b64 exec, s[50:51]")
                k(f"buffer_store_dwordx4 {vr(20+4*i,4)}, v15, s[16:19], s26 offen")
                k("s_mov_b64 exec, -1")
            else:
                k(f"buffer_store_dwordx4 {vr(20+4*i,4)}, v14, s[16:19], s26 offen")
        k("s_endpgm")
    k.label("P_cs")
    k(f"""
    s_sub_u32 s5, s2, {NQ+NO}
    s_cmp_ge_u32 s5, 27
    s_cselect_b32 s6, 27, 0
    s_cselect_b64 s[8:9], s[40:41], s[34:35]
    s_mov_b32 s22, {CS[0]}
    s_cselect_b32 s22, {CS[1]}, s22
    s_mov_b32 s10, {WQB}
    s_sub_u32 s5, s5, s6
    s_lshl_b32 s24, s5, 7
    s_lshl_b32 s23, s5, 8
    s_add_u32 s22, s22, s23
    s_lshl_b32 s6, s4, 3
    v_lshrrev_b32 v2, 3, v0
    v_add_u32 v2, s6, v2
    v_and_b32 v3, 7, v0
    v_mul_u32_u24 v4, 3456, v2
    v_lshl_add_u32 v4, v3, 4, v4
    """)
    for r in range(18):
        k(f"buffer_load_dwordx4 {vr(24+4*r,4)}, v4, s[8:11], s24 offen")
        k(f"s_add_u32 s24, s24, {32*3456}")
    for i in range(8): k(f"v_mov_b32 v{8+i}, 0")
    for r in range(18):
        k(f"s_waitcnt vmcnt({17-r})")
        for d in range(4):
            k(f"""
            v_lshlrev_b32 v5, 16, v{24+4*r+d}
            v_and_b32 v6, 0xffff0000, v{24+4*r+d}
            v_add_f32 v{8+2*d}, v{8+2*d}, v5
            v_add_f32 v{9+2*d}, v{9+2*d}, v6
            """)
    k(f"""
    v_lshlrev_b32 v5, 8, v2
    v_lshl_add_u32 v5, v3, 5, v5
    ds_write_b128 v5, v[8:11]
    ds_write_b128 v5, v[12:15] offset:16
    s_waitcnt lgkmcnt(0)
    s_barrier
    s_cmp_lg_u32 s4, 0
    s_cbranch_scc1 P_exit
    v_lshlrev_b32 v5, 2, v0
    """)
    for r in range(32): k(f"ds_read_b32 v{24+r}, v5 offset:{256*r}")
    k("s_waitcnt lgkmcnt(0)")
    for st in (16, 8, 4, 2, 1):
        for i in range(st): k(f"v_add_f32 v{24+i}, v{24+i}, v{24+i+st}")
    k("buffer_store_dword v24, v5, s[16:19], s22 offen")
    k("s_endpgm")
    k.label("P_flg")
    k(f"""
    v_mov_b32 v8, 0
    v_mov_b32 v9, 0
    v_mov_b32 v10, 0
    v_mov_b32 v11, 0
    s_lshl_b32 s5, s4, 13
    s_add_u32 s5, s5, {FLG}
    """)
    for i in range(8):
        k(f"buffer_store_dwordx4 v[8:11], v14, s[16:19], s5 offen\ns_add_u32 s5, s5, 1024")
    k("s_endpgm")
    k.label("P_x")
    k(f"""
    s_sub_u32 s5, s2, {NQ+NO+NC+1}
    s_lshl_b32 s5, s5, 2
    s_add_u32 s5, s5, s4
    s_mul_i32 s6, s5, 7282
    s_lshr_b32 s6, s6, 16
    s_mul_i32 s7, s6, 9
    s_sub_u32 s7, s5, s7
    s_mov_b32 s8, s32
    s_mov_b32 s9, s33
    s_mov_b32 s10, {XB}
    s_lshr_b32 s22, s6, 4
    s_and_b32 s23, s6, 15
    s_mul_i32 s24, s23, {128*1152}
    s_mul_i32 s25, s22, 1152
    s_add_u32 s24, s24, s25
    s_lshl_b32 s25, s7, 7
    s_add_u32 s24, s24, s25
    s_mul_i32 s26, s6, {BLK}
    s_lshl_b32 s25, s7, 13
    s_add_u32 s26, s26, s25
    s_add_u32 s26, s26, {XBUF[0]}
    v_lshrrev_b32 v2, 3, v0
    v_and_b32 v3, 7, v0
    v_mul_u32_u24 v4, 2304, v2
    v_lshl_add_u32 v4, v3, 4, v4
    v_lshlrev_b32 v5, 10, v3
    v_lshl_add_u32 v5, v2, 4, v5
    """)
    for i in range(8):
        k(f"buffer_load_dwordx4 {vr(20+4*i,4)}, v4, s[8:11], s24 offen\ns_add_u32 s24, s24, {8*2304}")
    for i in range(8):
        k(f"s_waitcnt vmcnt({7-i + i})" if False else f"s_waitcnt vmcnt(7)")
        k(f"buffer_store_dwordx4 {vr(20+4*i,4)}, v5, s[16:19], s26 offen offset:{128*i}")
    k.label("P_exit")
    k("s_endpgm")

XI = 1024
HALO = XI + BLK
FR = 1024
OIMG = 40960
WOL = 80896
LDSZ = 163840
A0, A1, ACC, WF = 8, 28, 72, 112
CSR = 48
vA, vAh, vH = "v1", "v4", "v5"
vX2, vW0, vW1, vBN, vBO, vL = "v57", "v58", "v59", "v66", "v67", "v70"
RES = 60
HI = 9*4096

def mkcol(kind, rts): return dict(kind=kind, rts=rts)
PROGS = {
    'P1': [mkcol('T', [1,2,3,4]), mkcol('T', [0,1,2,3,4])],
    'P2': [mkcol('T', [0,1,2,3,4]), mkcol('N', [0,1,2,3,4])],
    'P3': [mkcol('N', [0,1,2,3,4]), mkcol('N', [0,1,2,3,4])],
    'P4': [mkcol('S', [0,1,2,3,4]), mkcol('R', [0,1,2,3,4])],
}
XSC = "" if 'L' in EXP else " sc1"

def gen_M(k):
    MAP = """s_and_b32 s7, s5, 1
    s_lshl_b32 s7, s7, 2
    s_and_b32 s20, s6, 3
    s_add_u32 s20, s20, s7
    s_lshr_b32 s7, s5, 1
    s_lshl_b32 s7, s7, 3
    s_lshr_b32 s21, s6, 2
    s_add_u32 s21, s21, s7"""
    if 'x' in EXP:
        MAP = """s_and_b32 s20, s6, 7
        s_lshl_b32 s7, s5, 2
        s_lshr_b32 s21, s6, 3
        s_add_u32 s21, s21, s7"""
    k.label("M_body")
    head(k, "M", 256)
    k(f"""
    s_and_b32 s5, s2, 7
    s_lshr_b32 s6, s2, 3
    {MAP}
    s_lshr_b32 s22, s21, 4
    s_and_b32 s23, s21, 15
    s_mul_i32 s24, s21, {BLK}
    s_mul_i32 s25, s20, 144
    s_mov_b32 s3, 0
    s_mov_b32 s100, 0
    v_mov_b32 v68, 0
    s_waitcnt lgkmcnt(0)
    s_mov_b32 s12, s48
    s_mov_b32 s13, s49
    s_mov_b32 s14, {WSZ}
    s_mov_b32 s15, 0x20000
    s_mov_b32 s16, s48
    s_mov_b32 s17, s49
    s_mov_b32 s18, {WSZ}
    s_mov_b32 s19, 0x20000
    s_mov_b32 s92, s44
    s_mov_b32 s93, s45
    s_mov_b32 s94, {XB}
    s_mov_b32 s95, 0x20000
    s_mul_i32 s96, s20, {18*13824}
    s_add_u32 s28, s96, {PQ[0]}
    s_lshl_b32 s26, s4, 10
    s_add_u32 s26, s26, {XI}
    s_add_u32 s31, s4, 5
    s_mov_b32 s30, s4
    s_cmp_lt_u32 s4, 5
    s_cbranch_scc1 M_tiles_ok
    s_lshl_b32 s30, s4, 1
    s_add_u32 s31, s30, 1
    """)
    k.label("M_tiles_ok")
    stamp(k)
    k(f"""
    v_lshlrev_b32 {vL}, 4, v0
    s_lshl_b32 s5, s30, 10
    v_add_u32 {vW0}, s5, {vL}
    s_lshl_b32 s5, s31, 10
    v_add_u32 {vW1}, s5, {vL}
    v_and_b32 v2, 15, v0
    v_lshrrev_b32 v3, 4, v0
    v_lshlrev_b32 v6, 4, v2
    v_lshl_add_u32 {vA}, v3, 10, v6
    v_add_u32 {vA}, {XI}, {vA}
    v_add_u32 {vAh}, {HI}, {vA}
    v_and_b32 v8, 0x70, v6
    v_lshl_add_u32 {vH}, v3, 7, v8
    v_add_u32 {vH}, {HALO}, {vH}
    v_lshrrev_b32 v8, 3, v0
    v_and_b32 v9, 7, v0
    v_lshlrev_b32 v9, 4, v9
    v_lshl_add_u32 v8, v8, 10, v9
    v_add_u32 v8, 896, v8
    v_bfrev_b32 v9, 1
    s_cmp_eq_u32 s23, 0
    s_cselect_b64 vcc, -1, 0
    s_and_b32 s6, s4, 3
    s_lshl_b32 s6, s6, 4
    v_cndmask_b32 {vX2}, v8, v9, vcc
    v_add_u32 v8, s6, v2
    v_lshrrev_b32 v9, 1, v3
    v_lshlrev_b32 v9, 10, v9
    v_lshl_add_u32 v9, v8, 4, v9
    v_and_b32 v10, 1, v3
    v_lshl_add_u32 v9, v10, 3, v9
    s_lshr_b32 s7, s4, 2
    s_mul_i32 s5, s7, 6144
    v_add_u32 {vBO}, s5, v9
    s_lshl_b32 s5, s23, 6
    v_add_u32 v8, s5, v8
    v_lshlrev_b32 v8, 1, v8
    v_add_u32 v8, s22, v8
    v_mul_u32_u24 v8, 1152, v8
    v_lshl_add_u32 v8, v3, 3, v8
    s_mul_i32 s7, s7, 96
    s_add_u32 s7, s7, s25
    v_add_u32 {vBN}, s7, v8
    s_cmp_eq_u32 s4, 4
    s_cbranch_scc1 M_P2
    s_cmp_eq_u32 s4, 7
    s_cbranch_scc1 M_P4
    s_cmp_gt_u32 s4, 4
    s_cbranch_scc1 M_P3
    """)
    for p in ['P1', 'P2', 'P3', 'P4']:
        k.label(f"M_{p}")
        gen_prog(k, p)
    k.label("M_att")
    gen_att(k)
    gen_Bphase(k)
    k.label("M_exit")
    k("s_endpgm")

def poll(k, name, two):
    k(f"""
    s_cmp_lg_u32 s4, 7
    s_cbranch_scc1 {name}_done
    v_and_b32 v2, 7, v0
    v_lshlrev_b32 v2, 2, v2
    """)
    if two:
        k(f"""
        s_and_b32 s5, s23, {3 if 'P' in EXP else 15}
        s_cmp_eq_u32 s5, 0
        s_cselect_b32 s5, 128, 0
        v_and_b32 v3, 8, v0
        v_lshlrev_b32 v3, 4, v3
        v_max_u32 v3, s5, v3
        v_add_u32 v2, v2, v3
        s_sub_u32 s91, s91, 128
        s_mov_b64 exec, 0xffff
        """)
    else:
        k("s_mov_b64 exec, 0xff")
    k(f"s_mov_b32 s5, 0x40000")
    k.label(f"{name}_loop")
    k(f"""
    buffer_load_dword v3, v2, s[12:15], s91 offen sc1
    s_waitcnt vmcnt(0)
    v_cmp_ne_u32 vcc, 0, v3
    s_nop 1
    s_cmp_eq_u64 vcc, exec
    s_cbranch_scc1 {name}_ok
    s_sleep 1
    s_sub_u32 s5, s5, 1
    s_cmp_lg_u32 s5, 0
    s_cbranch_scc1 {name}_loop
    """)
    k.label(f"{name}_ok")
    k("s_mov_b64 exec, -1")
    k.label(f"{name}_done")
    k("s_barrier")

def signal(k, name):
    FSC = "" if ('p' in EXP and name == "M_sigA") or 'P' in EXP else " sc1"
    k(f"""
    s_waitcnt vmcnt(0)
    s_barrier
    s_cmp_lg_u32 s4, 0
    s_cbranch_scc1 {name}_ns
    s_mov_b64 exec, 1
    v_mov_b32 v2, s20
    v_lshlrev_b32 v2, 2, v2
    v_mov_b32 v3, 1
    buffer_store_dword v3, v2, s[12:15], s91 offen{FSC}
    s_mov_b64 exec, -1
    """)
    k.label(f"{name}_ns")

def wo_dma(k):
    k(f"""
    s_min_u32 s6, s87, {80*1024}
    s_add_u32 m0, s6, {WOL}
    s_add_u32 s7, s6, s89
    buffer_load_dwordx4 {vL}, s[12:15], s7 offen lds
    s_add_u32 s87, s87, 7168
    """)
def wo_setup(k, layer_sgpr):
    k(f"""
    s_and_b32 s5, {layer_sgpr}, 1
    s_cmp_eq_u32 s5, 0
    s_mov_b32 s89, {PO[1]}
    s_cselect_b32 s89, {PO[0]}, s89
    s_mul_i32 s5, s20, {18*4608}
    s_add_u32 s89, s89, s5
    s_lshl_b32 s87, s4, 10
    s_add_u32 s87, s87, 3072
    """)
def x_setup(k):
    k(f"""
    s_mul_i32 s27, s3, {XSTR}
    s_add_u32 s27, s27, s24
    s_sub_u32 s85, s27, {BLK}
    s_max_i32 s85, s85, 0
    s_lshl_b32 s5, s4, 10
    s_add_u32 s27, s27, s5
    """)

D0 = 6
LAG = 4
BARS = {1: 2, 5: 4, 9: 6, 13: 8}

def gen_prog(k, p):
    cols = [dict(c) for c in PROGS[p]]
    a = ACC
    for c in cols:
        c['acc'] = {}
        for rt in c['rts']:
            c['acc'][rt] = a; a += 4
    nacc = a
    hasW = p != 'P4'
    ONES = WF
    if p == 'P3':
        k(f"""
        s_cmp_lg_u32 s4, 6
        s_cbranch_scc1 M_P3_nh
        v_and_b32 v2, 7, v0
        v_lshl_add_u32 v2, v3, 3, v2
        v_lshlrev_b32 v2, 4, v2
        v_add_u32 {vW1}, {13*1024}, v2
        """)
        k.label("M_P3_nh")
    if p == 'P4':
        for i in range(4): k(f"v_mov_b32 v{ONES+i}, 0x3f803f80")
        k("s_mov_b32 s18, 0")
    vq = []
    def issue_x(s, sc):
        k(f"""
        s_add_u32 m0, s26, {s*8192}
        s_nop 0
        buffer_load_dwordx4 {vL}, s[12:15], s27 offen{sc} lds
        s_add_u32 s27, s27, 8192
        """)
        vq.append(('x', s))
        if p == 'P4':
            k(f"""
            s_mov_b32 m0, {HALO + s*1024}
            s_nop 0
            buffer_load_dwordx4 {vX2}, s[12:15], s85 offen{sc} lds
            s_add_u32 s85, s85, 8192
            """)
            vq.append(('x', s))
    def issue_w(ks, tag, soff):
        if not hasW: return
        for c in range(2):
            k(f"buffer_load_dwordx4 {vr(WF + 8*ks + 4*c, 4)}, {vW0 if c == 0 else vW1}, s[16:19], {soff} offen")
            vq.append((tag, ks))
        k(f"s_add_u32 {soff}, {soff}, 13824")
    def vwait(tag):
        idx = -1
        for i, t in enumerate(vq):
            if t == tag: idx = i
        if idx >= 0:
            k(f"s_waitcnt vmcnt({len(vq)-1-idx})")
            del vq[:idx+1]
    def issue_cs():
        if not hasW: return
        k(f"""
        v_lshrrev_b32 v3, 4, v0
        v_and_b32 v2, 15, v0
        s_lshl_b32 s5, s25, 1
        s_add_u32 s5, s5, s29
        """)
        for ci, c in enumerate(cols):
            st = "s30" if ci == 0 else "s31"
            if p == 'P1':
                k(f"s_lshl_b32 s6, s4, 6\ns_add_u32 s6, s6, {0 if ci == 0 else 576*4}\ns_add_u32 s6, s6, s5")
                k(f"v_lshlrev_b32 v6, 4, v3\nbuffer_load_dwordx4 {vr(CSR+4*ci,4)}, v6, s[12:15], s6 offen")
            elif p == 'P2':
                if ci == 0:
                    k(f"""
                    v_lshlrev_b32 v6, 4, v3
                    v_lshrrev_b32 v69, 1, v3
                    v_mul_u32_u24 v69, {576*4 - 32}, v69
                    v_add_u32 v6, v6, v69
                    s_add_u32 s6, s5, 256
                    buffer_load_dwordx4 {vr(CSR,4)}, v6, s[12:15], s6 offen
                    """)
                else:
                    k(f"v_lshlrev_b32 v6, 2, v2\ns_add_u32 s6, s5, {1152*4}\nbuffer_load_dword v{CSR+4}, v6, s[12:15], s6 offen")
            else:
                k(f"s_sub_u32 s6, {st}, 9\ns_lshl_b32 s6, s6, 6\ns_add_u32 s6, s6, {1152*4}\ns_add_u32 s6, s6, s5")
                k(f"v_lshlrev_b32 v6, 2, v2\nbuffer_load_dword v{CSR+4*ci}, v6, s[12:15], s6 offen")
            vq.append(('cs', 0))
    def rdA(ks):
        base = A0 if ks % 2 == 0 else A1
        k(f"ds_read_b128 {vr(base,4)}, {vH} offset:{ks*512}")
        for rt in range(1, 5):
            off = ks*4096 + (rt-1)*256
            if off >= HI: k(f"ds_read_b128 {vr(base+4*rt,4)}, {vAh} offset:{off-HI}")
            else: k(f"ds_read_b128 {vr(base+4*rt,4)}, {vA} offset:{off}")
    def main_loop(first):
        sc = "" if first else XSC
        for r in range(ACC, nacc): k(f"v_mov_b32 v{r}, 0")
        vwait(('x', 0))
        k("s_barrier")
        stamp(k)
        rdA(0)
        for ks in range(18):
            base = A0 if ks % 2 == 0 else A1
            if ks + 1 < 18:
                if ks in BARS:
                    vwait(('x', BARS[ks]))
                    if 'b' not in EXP: k("s_barrier")
                if 'a' not in EXP: rdA(ks + 1)
                k("s_waitcnt lgkmcnt(5)")
            else:
                k("s_waitcnt lgkmcnt(0)")
            if first: vwait(('w', ks))
            for ci, c in enumerate(cols):
                wf = vr(WF + 8*ks + 4*ci, 4)
                for rt in c['rts']:
                    d = vr(c['acc'][rt], 4); x = vr(base+4*rt, 4)
                    if c['kind'] == 'T': k(f"v_mfma_f32_16x16x32_bf16 {d}, {wf}, {x}, {d}")
                    elif c['kind'] == 'N': k(f"v_mfma_f32_16x16x32_bf16 {d}, {x}, {wf}, {d}")
                    elif c['kind'] == 'S': k(f"v_mfma_f32_16x16x32_bf16 {d}, {x}, {x}, {d}")
                    else: k(f"v_mfma_f32_16x16x32_bf16 {d}, {vr(ONES,4)}, {x}, {d}")
                if ci == 0:
                    if ks % 2 == 0 and ks // 2 + 4 < 9: issue_x(ks // 2 + 4, sc)
                    if first and ks + D0 < 18: issue_w(ks + D0, 'w', 's86')
            if ks == 1: issue_cs()
            if first and ks == 3:
                k(f"s_mul_i32 s5, s20, 9216\ns_add_u32 s5, s5, s24")
                for ct in range(3):
                    k(f"buffer_load_dwordx2 {vr(RES+2*ct,2)}, {vBO}, s[12:15], s5 offen\ns_add_u32 s5, s5, 2048")
                    vq.append(('res', 0))
            if ks >= LAG: issue_w(ks - LAG, 'wn', 's28')
            if first and ks >= 12 and hasW:
                for _ in range(2):
                    wo_dma(k); vq.append(('wo', 0))
    k(f"s_mov_b32 s29, {CS[0]}\ns_mov_b32 s86, s28\ns_add_u32 s28, s96, {PQ[1]}")
    x_setup(k)
    wo_setup(k, "s3")
    for s in range(4):
        k(f"s_setprio {3-s}")
        issue_x(s, "")
        if s < 3: issue_w(2*s, 'w', 's86'); issue_w(2*s+1, 'w', 's86')
    main_loop(True)
    vwait(('cs', 0))
    k(f"s_branch M_{p}_epi")
    k.label(f"M_{p}_loop")
    del vq[:]
    for s in range(4):
        k(f"s_setprio {3-s}")
        issue_x(s, XSC)
    main_loop(False)
    vwait(('cs', 0))
    k.label(f"M_{p}_epi")
    k("s_nop 7\ns_nop 7")
    stamp(k)
    if p == 'P4':
        S = cols[0]; R = cols[1]
        k(f"""
        v_and_b32 v2, 15, v0
        v_lshrrev_b32 v3, 4, v0
        v_lshrrev_b32 v6, 2, v2
        v_cmp_eq_u32 s[50:51], v3, v6
        v_and_b32 v6, 3, v0
        v_cmp_eq_u32 s[52:53], 1, v6
        v_cmp_eq_u32 s[54:55], 2, v6
        v_cmp_eq_u32 s[56:57], 3, v6
        v_lshlrev_b32 v6, 2, v2
        s_mov_b32 s58, 0x3ae38e39
        s_mov_b32 s59, 0x3727c5ac
        """)
        ops = [
            lambda rt, s, r: f"v_cndmask_b32 v{8+rt}, v{s}, v{s+1}, s[52:53]",
            lambda rt, s, r: f"v_cndmask_b32 v{8+rt}, v{8+rt}, v{s+2}, s[54:55]",
            lambda rt, s, r: f"v_cndmask_b32 v{8+rt}, v{8+rt}, v{s+3}, s[56:57]",
            lambda rt, s, r: f"v_mul_f32 v{16+rt}, s58, v{r}",
            lambda rt, s, r: f"v_mul_f32 v{8+rt}, s58, v{8+rt}",
            lambda rt, s, r: f"v_fma_f32 v{8+rt}, -v{16+rt}, v{16+rt}, v{8+rt}",
            lambda rt, s, r: f"v_max_f32 v{8+rt}, 0, v{8+rt}",
            lambda rt, s, r: f"v_add_f32 v{8+rt}, s59, v{8+rt}",
            lambda rt, s, r: f"v_rsq_f32 v{8+rt}, v{8+rt}",
            lambda rt, s, r: f"v_mul_f32 v{16+rt}, v{16+rt}, v{8+rt}",
        ]
        for op in ops:
            for rt in range(5): k(op(rt, S['acc'][rt], R['acc'][rt]))
        k("s_mov_b64 exec, s[50:51]")
        for rt in range(5):
            k(f"ds_write2_b32 v6, v{8+rt}, v{16+rt} offset0:{16*rt} offset1:{80+16*rt}")
        k("s_mov_b64 exec, -1")
        k("s_waitcnt lgkmcnt(0)")
        k("s_barrier")
        stamp(k)
        k("s_branch M_att")
        return
    k(f"""
    v_and_b32 v2, 15, v0
    v_lshlrev_b32 v2, 2, v2
    v_lshrrev_b32 v3, 4, v0
    v_lshlrev_b32 v3, 4, v3
    v_lshlrev_b32 v6, 3, v0
    s_mul_i32 s5, s30, 2560
    v_add_u32 v69, s5, v6
    s_mul_i32 s5, s31, 2560
    v_add_u32 v71, s5, v6
    """)
    k("s_barrier")
    stamp(k)
    loaded = None
    for ci, c in enumerate(cols):
        cs = CSR + 4*ci
        if loaded != c['kind']:
            if c['kind'] == 'T':
                for rt in range(5): k(f"ds_read2_b32 {vr(8+2*rt,2)}, v2 offset0:{16*rt} offset1:{80+16*rt}")
            else:
                for rt in range(5):
                    k(f"ds_read_b128 {vr(8+8*rt,4)}, v3 offset:{rt*64}")
                    k(f"ds_read_b128 {vr(8+8*rt+4,4)}, v3 offset:{320+rt*64}")
            loaded = c['kind']
            if ci == 0 and p == 'P1':
                k(f"""
                s_cmp_gt_u32 s4, 2
                s_cbranch_scc1 M_P1_nowo
                s_lshl_b32 s6, s4, 10
                s_add_u32 m0, s6, {WOL}
                s_add_u32 s7, s6, s89
                buffer_load_dwordx4 {vL}, s[12:15], s7 offen lds
                """)
                k.label("M_P1_nowo")
            k("s_waitcnt lgkmcnt(0)")
        for rt in c['rts']:
            a = c['acc'][rt]
            for h in range(2):
                if c['kind'] == 'T':
                    k(f"v_pk_mul_f32 {vr(a+2*h,2)}, {vr(a+2*h,2)}, {vr(8+2*rt,2)} op_sel_hi:[1,0]")
                else:
                    k(f"v_pk_mul_f32 {vr(a+2*h,2)}, {vr(a+2*h,2)}, {vr(8+8*rt+2*h,2)}")
        for rt in c['rts']:
            a = c['acc'][rt]
            for h in range(2):
                if c['kind'] == 'T':
                    k(f"v_pk_fma_f32 {vr(a+2*h,2)}, {vr(cs+2*h,2)}, {vr(8+2*rt,2)}, {vr(a+2*h,2)} op_sel:[0,1,0] op_sel_hi:[1,1,1] neg_lo:[0,1,0] neg_hi:[0,1,0]")
                else:
                    k(f"v_pk_fma_f32 {vr(a+2*h,2)}, {vr(8+8*rt+4+2*h,2)}, {vr(cs,2)}, {vr(a+2*h,2)} op_sel_hi:[1,0,1] neg_lo:[1,0,0] neg_hi:[1,0,0]")
        for rt in c['rts']:
            a = c['acc'][rt]
            k(f"v_cvt_pk_bf16_f32 v{a}, v{a}, v{a+1}")
            k(f"v_cvt_pk_bf16_f32 v{a+1}, v{a+2}, v{a+3}")
            k(f"ds_write_b64 {'v69' if ci == 0 else 'v71'}, {vr(a,2)} offset:{FR + rt*512}")
    k("s_branch M_att")

CB = 104
def att_unit(u):
    Q, Kr, V, S, T, AD = ((16, 20, 28, 36, 44, 46), (72, 76, 84, 92, 100, 102))[u]
    M = (60, 50)[u]
    mk = lambda i: f"s[{M+2*i}:{M+2*i+1}]"
    L = []
    L += [f"v_cndmask_b32 v{Q+i}, 0, v{Q+i}, {mk(i)}" for i in range(4)]
    L += ["WAITK"]
    L += [f"v_mfma_f32_16x16x32_bf16 {vr(S,4)}, {vr(Kr,4)}, {vr(Q,4)}, {vr(CB,4)}",
          f"v_mfma_f32_16x16x32_bf16 {vr(S+4,4)}, {vr(Kr+4,4)}, {vr(Q,4)}, {vr(CB+4,4)}", "BG", "s_nop 3"]
    L += [f"v_max3_f32 v{T}, v{S}, v{S+1}, v{S+2}", "s_nop 0", f"v_max3_f32 v{T+1}, v{S+3}, v{S+4}, v{S+5}",
          f"v_max3_f32 v{T}, v{T}, v{S+6}, v{S+7}", f"v_max_f32 v{T}, v{T}, v{T+1}",
          f"v_mov_b32 v{T+1}, v{T}", "s_nop 0", f"v_permlane32_swap_b32 v{T}, v{T+1}", f"v_max_f32 v{T}, v{T}, v{T+1}",
          f"v_mov_b32 v{T+1}, v{T}", "s_nop 0", f"v_permlane16_swap_b32 v{T}, v{T+1}", f"v_max_f32 v{T}, v{T}, v{T+1}",
          f"v_mul_f32 v{T}, s58, v{T}"]
    L += [f"v_pk_fma_f32 {vr(S+2*i,2)}, {vr(S+2*i,2)}, s[58:59], {vr(T,2)} op_sel_hi:[1,1,0] neg_lo:[0,0,1] neg_hi:[0,0,1]" for i in range(4)]
    L += ["BG"]
    L += [f"v_exp_f32 v{S+i}, v{S+i}" for i in range(8)]
    L += ["BG"]
    L += [f"v_pk_add_f32 {vr(Kr,2)}, {vr(S,2)}, {vr(S+2,2)}", f"v_pk_add_f32 {vr(Kr+2,2)}, {vr(S+4,2)}, {vr(S+6,2)}",
          f"v_pk_add_f32 {vr(Kr,2)}, {vr(Kr,2)}, {vr(Kr+2,2)}", f"v_add_f32 v{T}, v{Kr}, v{Kr+1}",
          f"v_mov_b32 v{T+1}, v{T}", "s_nop 0", f"v_permlane32_swap_b32 v{T}, v{T+1}", f"v_add_f32 v{T}, v{T}, v{T+1}",
          f"v_mov_b32 v{T+1}, v{T}", "s_nop 0", f"v_permlane16_swap_b32 v{T}, v{T+1}", f"v_add_f32 v{T}, v{T}, v{T+1}",
          f"v_rcp_f32 v{T}, v{T}", "BG"]
    L += [f"v_pk_mul_f32 {vr(S+2*i,2)}, {vr(S+2*i,2)}, {vr(T,2)} op_sel_hi:[1,0]" for i in range(4)]
    L += [f"v_cvt_pk_bf16_f32 v{Q+i}, v{S+2*i}, v{S+2*i+1}" for i in range(4)]
    L += ["WAITV"]
    L += [f"v_mfma_f32_16x16x32_bf16 {vr(S,4)}, {vr(V,4)}, {vr(Q,4)}, 0",
          f"v_mfma_f32_16x16x32_bf16 {vr(S+4,4)}, {vr(V+4,4)}, {vr(Q,4)}, 0", "s_nop 3"]
    L += [f"v_cvt_pk_bf16_f32 v{Kr+i}, v{S+2*i}, v{S+2*i+1}" for i in range(4)]
    W = []
    offs = (0, 4, 2048, 2052)
    for i in range(4):
        W += [f"s_mov_b64 exec, {mk(i)}", f"ds_write_b32 v{AD}, v{Kr+i} offset:{offs[i]}"]
    return L, W

def gen_att(k):
    OSC = "" if 'p' in EXP else " sc1"
    for ks in range(18 - LAG, 18):
        k.bg.append(f"buffer_load_dwordx4 {vr(WF + 8*ks, 4)}, {vW0}, s[16:19], s28 offen")
        k.bg.append(f"buffer_load_dwordx4 {vr(WF + 8*ks + 4, 4)}, {vW1}, s[16:19], s28 offen\ns_add_u32 s28, s28, 13824")
    k.bgp()
    k(f"""
    s_and_b32 s97, s4, 3
    v_and_b32 v2, 15, v0
    v_lshrrev_b32 v15, 4, v0
    v_lshlrev_b32 v3, 2, v15
    v_sub_u32 v6, v2, v3
    v_mov_b32 v9, 0xf149f2ca
    s_or_b32 s5, s97, s23
    s_cmp_lg_u32 s5, 0
    s_cselect_b32 s5, 8, 0
    """)
    for i in range(4):
        k(f"""
        v_add_u32 v8, {16-i}, v6
        v_cmp_gt_u32 s[60:61], s5, v8
        v_subrev_u32 v8, {i}, v6
        v_cmp_gt_u32 s[62:63], 8, v8
        s_nop 0
        v_cndmask_b32 v{CB+i}, v9, 0, s[60:61]
        v_cndmask_b32 v{CB+4+i}, v9, 0, s[62:63]
        """)
    k(f"""
    s_lshl_b32 s5, s97, 4
    v_add_u32 v8, s5, v2
    v_lshlrev_b32 v8, 4, v8
    v_lshrrev_b32 v10, 1, v15
    v_lshl_add_u32 v8, v10, 10, v8
    v_and_b32 v10, 1, v15
    v_lshl_add_u32 v8, v10, 3, v8
    s_lshr_b32 s6, s4, 2
    s_lshl_b32 s7, s6, 11
    s_add_u32 s7, s7, {OIMG}
    v_add_u32 v46, s7, v8
    v_add_u32 v102, 4096, v46
    v_add_u32 v6, 2, v3
    s_lshl_b32 s5, s97, 9
    s_mul_i32 s7, s6, 2560
    s_add_u32 s7, s7, s5
    v_lshlrev_b32 v12, 3, v0
    v_add_u32 v12, s7, v12
    v_add_u32 v13, 32, v0
    v_and_b32 v13, 63, v13
    v_lshlrev_b32 v13, 3, v13
    v_add_u32 v13, s5, v13
    v_add_u32 v13, {FR + 4*2560}, v13
    v_add_u32 v14, {FR + 8*2560}, v12
    s_cmp_eq_u32 s6, 1
    s_cselect_b64 vcc, -1, 0
    s_lshl_b32 s76, s6, 1
    s_add_u32 s77, s76, 2
    v_cndmask_b32 v14, v14, v13, vcc
    s_add_u32 s78, s76, 4
    s_add_u32 s79, s76, 6
    v_cmp_le_u32 s[60:61], s76, v3
    v_cmp_le_u32 s[62:63], s76, v6
    v_cmp_gt_u32 s[64:65], s77, v3
    v_cmp_gt_u32 s[66:67], s77, v6
    v_cmp_le_u32 s[50:51], s78, v3
    v_cmp_le_u32 s[52:53], s78, v6
    v_cmp_gt_u32 s[54:55], s79, v3
    v_cmp_gt_u32 s[56:57], s79, v6
    s_mov_b32 s58, 0x3eae1a93
    s_mov_b32 s59, 0x3eae1a93
    s_waitcnt lgkmcnt(0)
    """)
    stamp(k)
    k("s_barrier")
    stamp(k)
    H = 2*2560
    k(f"""
    ds_read_b64 v[16:17], v12 offset:{FR + 512}
    ds_read_b64 v[18:19], v12 offset:{FR + 2560 + 512}
    ds_read_b64 v[72:73], v12 offset:{FR + H + 512}
    ds_read_b64 v[74:75], v12 offset:{FR + H + 2560 + 512}
    ds_read_b64 v[20:21], v12 offset:{FR + 5*2560}
    ds_read_b64 v[22:23], v12 offset:{FR + 6*2560}
    ds_read_b64 v[24:25], v12 offset:{FR + 5*2560 + 512}
    ds_read_b64 v[26:27], v12 offset:{FR + 6*2560 + 512}
    ds_read_b64 v[76:77], v12 offset:{FR + H + 5*2560}
    ds_read_b64 v[78:79], v14
    ds_read_b64 v[80:81], v12 offset:{FR + H + 5*2560 + 512}
    ds_read_b64 v[82:83], v14 offset:512
    ds_read_b64 v[28:29], v12 offset:{FR + 9*2560}
    ds_read_b64 v[30:31], v12 offset:{FR + 9*2560 + 512}
    ds_read_b64 v[32:33], v12 offset:{FR + 10*2560}
    ds_read_b64 v[34:35], v12 offset:{FR + 10*2560 + 512}
    ds_read_b64 v[84:85], v12 offset:{FR + H + 9*2560}
    ds_read_b64 v[86:87], v12 offset:{FR + H + 9*2560 + 512}
    ds_read_b64 v[88:89], v12 offset:{FR + H + 10*2560}
    ds_read_b64 v[90:91], v12 offset:{FR + H + 10*2560 + 512}
    """)
    k.bgp()
    k("s_waitcnt lgkmcnt(15)")
    L0, W0 = att_unit(0); L1, W1 = att_unit(1)
    for a, b in zip(L0, L1):
        if a == "WAITK": k("s_waitcnt lgkmcnt(8)\ns_nop 0"); continue
        if a == "WAITV": k("s_waitcnt lgkmcnt(0)\ns_nop 0"); continue
        if a == "BG": k.bgp(2 if len(k.bg) > 4 else 1); continue
        k(a); k(b)
    for t in W0 + W1: k(t)
    k("s_mov_b64 exec, -1")
    k.bgp(12)
    k(f"""
    s_lshl_b32 s5, s4, 10
    v_add_u32 v8, s5, {vL}
    s_lshl_b32 s5, s4, 7
    s_add_u32 s5, s5, 8192
    v_add_u32 v9, s5, {vL}
    s_mul_i32 s88, s3, {OBUF[1]-OBUF[0]}
    s_add_u32 s88, s88, {OBUF[0]}
    s_add_u32 s88, s88, s24
    s_mul_i32 s5, s20, 9216
    s_add_u32 s5, s5, s88
    s_waitcnt lgkmcnt(0)
    s_barrier
    ds_read_b128 v[24:27], v8 offset:{OIMG}
    s_mov_b64 exec, 0xff
    ds_read_b128 v[28:31], v9 offset:{OIMG}
    s_mov_b64 exec, -1
    s_waitcnt lgkmcnt(1)
    buffer_store_dwordx4 v[24:27], v8, s[12:15], s5 offen{OSC}
    s_mov_b64 exec, 0xff
    s_waitcnt lgkmcnt(0)
    buffer_store_dwordx4 v[28:31], v9, s[12:15], s5 offen{OSC}
    s_mov_b64 exec, -1
    s_lshl_b32 s90, s3, 13
    s_lshl_b32 s5, s21, 7
    s_add_u32 s90, s90, s5
    s_add_u32 s90, s90, {FLG}
    s_mov_b32 s91, s90
    """)
    stamp(k)
    signal(k, "M_sigA")
    stamp(k)
    k(f"""
    s_and_b32 s5, s4, 1
    s_lshl_b32 s6, s5, 12
    s_and_b32 s7, s4, 2
    s_lshl_b32 s7, s7, 8
    s_add_u32 s6, s6, s7
    v_add_u32 v108, s6, {vA}
    s_mul_i32 s5, s5, 4608
    s_lshr_b32 s6, s4, 2
    s_mul_i32 s6, s6, 3072
    s_add_u32 s6, s6, s5
    s_add_u32 s6, s6, {WOL}
    v_add_u32 v6, s6, {vL}
    v_lshrrev_b32 v71, 4, v0
    v_and_b32 v69, 7, v0
    v_lshl_add_u32 v69, v71, 3, v69
    v_lshlrev_b32 v69, 4, v69
    s_add_u32 s5, s5, {WOL + 4096}
    v_add_u32 v69, s5, v69
    s_lshl_b32 s5, s4, 10
    s_add_u32 s88, s88, s5
    """)
    for r in range(72, 96): k(f"v_mov_b32 v{r}, 0")
    poll(k, "M_pollA", False)
    stamp(k)

def gen_Bphase(k):
    OLSC = "" if 'l' in EXP else " sc1"
    BSC = "" if 'P' in EXP else " sc1"
    def odma(st):
        k(f"""
        s_add_u32 m0, s26, {st*8192}
        s_nop 0
        buffer_load_dwordx4 {vL}, s[12:15], s88 offen{OLSC} lds
        s_add_u32 s88, s88, 8192
        """)
    PF = 5
    for st in range(PF):
        k(f"s_setprio {max(3-st,0)}")
        odma(st)
    k(f"""
    s_cmp_ge_u32 s4, 4
    s_cbranch_scc1 M_Bh1
    """)
    OF = [8, 28]; WFb = [16, 36]
    for half in range(2):
        k.label(f"M_Bh{half}")
        n = 3 if half == 0 else 2
        def reads(p):
            for r in range(2):
                k(f"ds_read_b128 {vr(OF[p]+4*r,4)}, v108 offset:{256*r}")
            for ct in range(n):
                if half == 1 and ct == 1:
                    k(f"ds_read_b128 {vr(WFb[p]+4*ct,4)}, v69")
                else:
                    k(f"ds_read_b128 {vr(WFb[p]+4*ct,4)}, v6 offset:{1024*ct}")
        def mm(p):
            for ct in range(n):
                for r in range(2):
                    d = vr(72+12*r+4*ct, 4)
                    k(f"v_mfma_f32_16x16x32_bf16 {d}, {vr(WFb[p]+4*ct,4)}, {vr(OF[p]+4*r,4)}, {d}")
        nreads = 2 + n
        issued = PF
        for st in range(9):
            k(f"s_waitcnt vmcnt({issued-1-st})")
            k("s_barrier")
            if st == 0: stamp(k)
            reads(st % 2)
            for _ in range(2):
                if issued < 9: odma(issued); issued += 1
            if st < 8:
                k(f"""
                v_add_u32 v108, 8192, v108
                v_add_u32 v6, 9216, v6
                v_add_u32 v69, 9216, v69
                """)
            if st > 0:
                k(f"s_waitcnt lgkmcnt({nreads})")
                mm((st-1) % 2)
        k("s_waitcnt lgkmcnt(0)")
        mm(0)
        k(f"""
        s_mul_i32 s5, s4, 3072
        s_add_u32 s5, s5, {XI}
        v_add_u32 v2, s5, {vL}
        v_xor_b32 v3, 0, v2
        s_xor_b32 s6, s4, 1
        s_mul_i32 s6, s6, 3072
        s_add_u32 s6, s6, {XI}
        v_add_u32 v3, s6, {vL}
        s_and_b32 s7, s4, 1
        s_cmp_eq_u32 s7, 0
        s_nop 3
        s_cbranch_scc1 M_Bx{half}_k0
        """)
        for kh in (1, 0):
            if kh == 0: k.label(f"M_Bx{half}_k0")
            keep = 72 + 12*kh; send = 72 + 12*(1-kh)
            for ct in range(n):
                k(f"ds_write_b128 v2, {vr(send+4*ct,4)} offset:{1024*ct}")
            k("s_waitcnt lgkmcnt(0)\ns_barrier")
            for ct in range(n):
                k(f"ds_read_b128 {vr(8+4*ct,4)}, v3 offset:{1024*ct}")
            for ct in range(n):
                k(f"s_waitcnt lgkmcnt({n-1-ct})")
                for h in range(2):
                    k(f"v_pk_add_f32 {vr(96+4*ct+2*h,2)}, {vr(keep+4*ct+2*h,2)}, {vr(8+4*ct+2*h,2)}")
            if kh == 1: k(f"s_branch M_Bx{half}_j")
        k.label(f"M_Bx{half}_j")
        stamp(k)
        for ct in range(n):
            d = 96 + 4*ct; x = RES + 2*ct
            k(f"""
            v_cvt_pk_bf16_f32 v8, v{d}, v{d+1}
            v_cvt_pk_bf16_f32 v9, v{d+2}, v{d+3}
            v_lshlrev_b32 v10, 16, v8
            v_and_b32 v11, 0xffff0000, v8
            v_lshlrev_b32 v12, 16, v9
            v_and_b32 v13, 0xffff0000, v9
            v_lshlrev_b32 v14, 16, v{x}
            v_and_b32 v15, 0xffff0000, v{x}
            v_lshlrev_b32 v16, 16, v{x+1}
            v_and_b32 v17, 0xffff0000, v{x+1}
            v_pk_add_f32 v[10:11], v[10:11], v[14:15]
            v_pk_add_f32 v[12:13], v[12:13], v[16:17]
            v_cvt_pk_bf16_f32 v{x}, v10, v11
            v_cvt_pk_bf16_f32 v{x+1}, v12, v13
            """)
        k(f"""
        s_cmp_eq_u32 s3, 3
        s_cbranch_scc1 M_Bf{half}
        s_mul_i32 s5, s3, {XSTR}
        s_add_u32 s5, s5, s24
        s_mul_i32 s6, s20, 9216
        s_add_u32 s5, s5, s6
        s_add_u32 s5, s5, {XSTR}
        """)
        for ct in range(n):
            x = RES + 2*ct
            if half == 1 and ct == 1: k("s_mov_b64 exec, 0xffffffff")
            k(f"buffer_store_dwordx2 {vr(x,2)}, {vBO}, s[12:15], s5 offen{BSC}\ns_add_u32 s5, s5, 2048")
        k("s_mov_b64 exec, -1\ns_branch M_Bdone")
        k.label(f"M_Bf{half}")
        for ct in range(n):
            x = RES + 2*ct
            if half == 1 and ct == 1: k("s_mov_b64 exec, 0xffffffff")
            k(f"buffer_store_dwordx2 {vr(x,2)}, {vBN}, s[92:95], 0 offen offset:{32*ct}")
        k("s_mov_b64 exec, -1\ns_branch M_fin")
    k.label("M_Bdone")
    stamp(k)
    k("s_add_u32 s91, s90, 4096")
    signal(k, "M_sigB")
    stamp(k)
    k(f"""
    s_add_u32 s3, s3, 1
    s_and_b32 s5, s3, 1
    s_cmp_eq_u32 s5, 0
    s_mov_b32 s29, {CS[1]}
    s_cselect_b32 s29, {CS[0]}, s29
    s_mov_b32 s28, {PQ[0]}
    s_cselect_b32 s28, {PQ[1]}, s28
    s_add_u32 s28, s28, s96
    s_cmp_eq_u32 s3, 3
    s_cselect_b32 s18, 0, s18
    """)
    x_setup(k)
    wo_setup(k, "s3")
    k("s_cmp_eq_u32 s4, 7\ns_cbranch_scc1 M_nowo")
    for i in range(12): wo_dma(k)
    k.label("M_nowo")
    poll(k, "M_pollB", True)
    stamp(k)
    k(f"""
    s_cmp_eq_u32 s4, 4
    s_cbranch_scc1 M_P2_loop
    s_cmp_eq_u32 s4, 7
    s_cbranch_scc1 M_P4_loop
    s_cmp_gt_u32 s4, 4
    s_cbranch_scc1 M_P3_loop
    s_branch M_P1_loop
    """)
    k.label("M_fin")
    if DBG:
        k(f"""
        s_waitcnt vmcnt(0)
        """)
        stamp(k)
        k(f"""
        s_lshl_b32 s5, s2, 3
        s_add_u32 s5, s5, s4
        s_lshl_b32 s5, s5, 8
        s_add_u32 s5, s5, {DBGO}
        v_lshlrev_b32 v2, 2, v0
        buffer_store_dword v68, v2, s[12:15], s5 offen
        """)

def kd(name, vgpr, sgpr=102):
    acc = (vgpr + 3)//4*4
    return f""".p2align 6
.amdhsa_kernel {name}
  .amdhsa_next_free_vgpr {vgpr}
  .amdhsa_next_free_sgpr {sgpr}
  .amdhsa_accum_offset {acc}
  .amdhsa_group_segment_fixed_size 0
  .amdhsa_kernarg_size 72
  .amdhsa_user_sgpr_count 2
  .amdhsa_user_sgpr_kernarg_segment_ptr 1
  .amdhsa_system_sgpr_workgroup_id_x 1
.end_amdhsa_kernel
"""

def main():
    out = sys.argv[1]
    global DBG
    DBG = len(sys.argv) > 2 and sys.argv[2] == '1'
    hdr = [f"; @launch kernel=p_kernel grid=({NP},1,1) block=(256,1,1) lds=16384",
           f"; @launch kernel=m_kernel grid=(256,1,1) block=(512,1,1) lds={LDSZ}"]
    k = K()
    k.raw('.amdgcn_target "amdgcn-amd-amdhsa--gfx950"\n.text')
    k.raw(f".globl p_kernel\n.p2align 8\n.type p_kernel,@function\np_kernel:")
    gen_P(k)
    k.raw(f".globl m_kernel\n.p2align 8\n.type m_kernel,@function\nm_kernel:")
    gen_M(k)
    k.raw('.section .rodata,"a"')
    k.raw(kd("p_kernel", 96))
    k.raw(kd("m_kernel", 256))
    open(out, "w").write("\n".join(hdr) + "\n" + k.text())
main()
```

```python
import sys

XB = 2048 * 576 * 2
WQB = 576 * 1728 * 2
WOB = 576 * 576 * 2
XSTR = 0x280000
XBUF = [0x000000, 0x280000, 0x500000, 0x780000]
OBUF = [0xA00000, 0xC80000, 0xF00000, 0x1180000]
PQ = [0x1400000, 0x1600000]
PO = [0x1800000, 0x1A00000]
CS = [0x1B00000, 0x1B10000]
FLG = 0x1B20000
DBGO = 0x1900000
WSZ = 0x2000000
BLK = 73728

class K:
    def __init__(self): self.l = []; self.bg = []
    def bgp(self, n=1):
        for _ in range(n):
            if self.bg: self(self.bg.pop(0))
    def __call__(self, s):
        for x in s.strip().split("\n"):
            x = x.strip()
            if x: self.l.append("    " + x)
    def label(self, n): self.l.append(n + ":")
    def raw(self, s): self.l.append(s)
    def text(self): return "\n".join(self.l) + "\n"

DBG = False
import os
EXP = os.environ.get("EXP", "")
def stamp(k):
    if DBG:
        k("""s_memtime s[98:99]
        s_waitcnt lgkmcnt(0)
        s_mov_b32 m0, s100
        v_writelane_b32 v68, s98, m0
        s_add_u32 s100, s100, 1""")
def vr(a, n): return f"v[{a}:{a+n-1}]"

def head(k, pfx, nwg):
    k(f"""
    s_cmp_ge_u32 s2, {nwg}
    s_cbranch_scc1 {pfx}_exit
    s_load_dwordx16 s[32:47], s[0:1], 0
    s_load_dwordx2 s[48:49], s[0:1], 64
    v_lshrrev_b32 v1, 6, v0
    v_and_b32 v0, 63, v0
    v_readfirstlane_b32 s4, v1
    """)

def emit_k_from_rho(k, vk, vrho, vt):
    k(f"""
    v_and_b32 {vk}, 0x78, {vrho}
    v_bfe_u32 {vt}, {vrho}, 1, 2
    v_or_b32 {vk}, {vk}, {vt}
    v_and_b32 {vt}, 1, {vrho}
    v_lshl_or_b32 {vk}, {vt}, 2, {vk}
    """)

def tile_off(t):
    if t < 4: return 32*t
    if t == 4: return None
    if t < 9: return 144 + 32*(t-5)
    return 288 + 32*(t-9)

NQ, NO, NC = 288, 96, 54
NX = 72
NW = 16 if 'w' in EXP else 0
NP0 = NQ + NO + NC + 1 + NX
NP = NP0 + NW
def gen_P(k):
    k.label("P_body")
    head(k, "P", NP)
    k(f"""
    s_waitcnt lgkmcnt(0)
    s_mov_b32 s16, s48
    s_mov_b32 s17, s49
    s_mov_b32 s18, {WSZ}
    s_mov_b32 s19, 0x20000
    s_mov_b32 s11, 0x20000
    v_lshrrev_b32 v3, 4, v0
    v_bfe_u32 v4, v0, 2, 2
    v_lshlrev_b32 v4, 1, v4
    v_lshl_add_u32 v12, v3, 3, v4
    v_and_b32 v13, 3, v0
    v_lshlrev_b32 v13, 3, v13
    v_lshlrev_b32 v14, 4, v0
    v_and_b32 v4, 7, v0
    v_lshl_add_u32 v15, v3, 3, v4
    v_lshlrev_b32 v15, 4, v15
    v_and_b32 v4, 8, v0
    v_cmp_eq_u32 s[50:51], 0, v4
    v_bfrev_b32 v16, 1
    s_cmp_ge_u32 s2, {NP0}
    s_cbranch_scc1 P_warm
    s_cmp_gt_u32 s2, {NQ+NO+NC}
    s_cbranch_scc1 P_x
    s_cmp_eq_u32 s2, {NQ+NO+NC}
    s_cbranch_scc1 P_flg
    s_cmp_ge_u32 s2, {NQ+NO}
    s_cbranch_scc1 P_cs
    s_cmp_ge_u32 s2, {NQ}
    s_cbranch_scc1 P_o
    """)
    k(f"""
    s_cmp_ge_u32 s2, 144
    s_cselect_b32 s5, 144, 0
    s_cselect_b64 s[8:9], s[40:41], s[34:35]
    s_mov_b32 s22, {PQ[0]}
    s_cselect_b32 s22, {PQ[1]}, s22
    s_mov_b32 s10, {WQB}
    s_sub_u32 s5, s2, s5
    s_mul_i32 s6, s5, 3641
    s_lshr_b32 s6, s6, 16
    s_mul_i32 s7, s6, 18
    s_sub_u32 s7, s5, s7
    s_mul_i32 s23, s5, 13824
    s_add_u32 s22, s22, s23
    s_mul_i32 s24, s7, {32*3456}
    s_mul_i32 s25, s6, 144
    s_add_u32 s24, s24, s25
    """)
    for n in range(4):
        k(f"""
        s_lshl_b32 s26, s4, 6
        s_add_u32 s26, s26, {256*n}
        v_add_u32 v2, s26, v0
        v_cmp_gt_u32 vcc, 864, v2
        v_mul_u32_u24 v3, 2428, v2
        v_lshrrev_b32 v3, 16, v3
        v_mul_u32_u24 v4, 27, v3
        v_sub_u32 v2, v2, v4
        v_mul_u32_u24 v4, 57, v2
        v_lshrrev_b32 v4, 9, v4
        v_mul_u32_u24 v5, 9, v4
        v_sub_u32 v2, v2, v5
        """)
        emit_k_from_rho(k, "v5", "v3", "v6")
        k(f"""
        v_mul_u32_u24 v5, 3456, v5
        v_mul_u32_u24 v4, 1152, v4
        v_add_u32 v5, v5, v4
        v_lshl_add_u32 v5, v2, 4, v5
        v_cndmask_b32 v5, v16, v5, vcc
        s_lshl_b32 s26, s26, 4
        s_mov_b32 m0, s26
        s_nop 0
        buffer_load_dwordx4 v5, s[8:11], s24 offen lds
        """)
    k(f"""
    v_mul_u32_u24 v12, 432, v12
    v_add_u32 v12, v12, v13
    v_bfe_u32 v5, v0, 1, 1
    v_lshlrev_b32 v5, 7, v5
    v_add_u32 v5, 128, v5
    v_add_u32 v13, v12, v5
    s_waitcnt vmcnt(0)
    s_barrier
    """)
    for w in range(1, 4): k(f"s_cmp_eq_u32 s4, {w}\ns_cbranch_scc1 P_q{w}")
    for w in range(4):
        k.label(f"P_q{w}")
        ts = [t for t in range(w, 14, 4)]
        for i, t in enumerate(ts):
            for b in range(2):
                if t == 4: k(f"ds_read_b64_tr_b16 {vr(20+4*i+2*b,2)}, v13 offset:{b*432}")
                else: k(f"ds_read_b64_tr_b16 {vr(20+4*i+2*b,2)}, v12 offset:{b*432 + tile_off(t)}")
        for i, t in enumerate(ts):
            k(f"s_waitcnt lgkmcnt({2*(len(ts)-1-i)})")
            k(f"s_add_u32 s26, s22, {t*1024}")
            if t == 13:
                k("s_mov_b64 exec, s[50:51]")
                k(f"buffer_store_dwordx4 {vr(20+4*i,4)}, v15, s[16:19], s26 offen")
            else:
                k(f"buffer_store_dwordx4 {vr(20+4*i,4)}, v14, s[16:19], s26 offen")
        k("s_endpgm")
    k.label("P_o")
    k(f"""
    s_sub_u32 s5, s2, {NQ}
    s_cmp_ge_u32 s5, 48
    s_cselect_b32 s6, 48, 0
    s_cselect_b64 s[8:9], s[42:43], s[36:37]
    s_mov_b32 s22, {PO[0]}
    s_cselect_b32 s22, {PO[1]}, s22
    s_mov_b32 s10, {WOB}
    s_sub_u32 s5, s5, s6
    s_mul_i32 s6, s5, 43
    s_lshr_b32 s6, s6, 8
    s_mul_i32 s7, s6, 6
    s_sub_u32 s7, s5, s7
    s_mul_i32 s23, s5, 13824
    s_add_u32 s22, s22, s23
    s_mul_i32 s24, s7, {96*1152}
    s_mul_i32 s25, s6, 144
    s_add_u32 s24, s24, s25
    """)
    for n in range(4):
        k(f"""
        s_lshl_b32 s26, s4, 6
        s_add_u32 s26, s26, {256*n}
        v_add_u32 v2, s26, v0
        v_cmp_gt_u32 vcc, 864, v2
        v_mul_u32_u24 v3, 7282, v2
        v_lshrrev_b32 v3, 16, v3
        v_mul_u32_u24 v4, 9, v3
        v_sub_u32 v2, v2, v4
        """)
        emit_k_from_rho(k, "v5", "v3", "v6")
        k(f"""
        v_mul_u32_u24 v5, 1152, v5
        v_lshl_add_u32 v5, v2, 4, v5
        v_cndmask_b32 v5, v16, v5, vcc
        s_lshl_b32 s26, s26, 4
        s_mov_b32 m0, s26
        s_nop 0
        buffer_load_dwordx4 v5, s[8:11], s24 offen lds
        """)
    k(f"""
    v_mul_u32_u24 v12, 144, v12
    v_add_u32 v12, v12, v13
    s_waitcnt vmcnt(0)
    s_barrier
    """)
    for w in range(1, 4): k(f"s_cmp_eq_u32 s4, {w}\ns_cbranch_scc1 P_o{w}")
    for w in range(4):
        k.label(f"P_o{w}")
        ts = [t for t in range(w, 15, 4)]
        for i, t in enumerate(ts):
            ks, ct = t // 5, t % 5
            for b in range(2):
                k(f"ds_read_b64_tr_b16 {vr(20+4*i+2*b,2)}, v12 offset:{ks*4608 + b*144 + 32*ct}")
        for i, t in enumerate(ts):
            ks, ct = t // 5, t % 5
            k(f"s_waitcnt lgkmcnt({2*(len(ts)-1-i)})")
            k(f"s_add_u32 s26, s22, {ks*4608 + ct*1024}")
            if ct == 4:
                k("s_mov_b64 exec, s[50:51]")
                k(f"buffer_store_dwordx4 {vr(20+4*i,4)}, v15, s[16:19], s26 offen")
                k("s_mov_b64 exec, -1")
            else:
                k(f"buffer_store_dwordx4 {vr(20+4*i,4)}, v14, s[16:19], s26 offen")
        k("s_endpgm")
    k.label("P_cs")
    k(f"""
    s_sub_u32 s5, s2, {NQ+NO}
    s_cmp_ge_u32 s5, 27
    s_cselect_b32 s6, 27, 0
    s_cselect_b64 s[8:9], s[40:41], s[34:35]
    s_mov_b32 s22, {CS[0]}
    s_cselect_b32 s22, {CS[1]}, s22
    s_mov_b32 s10, {WQB}
    s_sub_u32 s5, s5, s6
    s_lshl_b32 s24, s5, 7
    s_lshl_b32 s23, s5, 8
    s_add_u32 s22, s22, s23
    s_lshl_b32 s6, s4, 3
    v_lshrrev_b32 v2, 3, v0
    v_add_u32 v2, s6, v2
    v_and_b32 v3, 7, v0
    v_mul_u32_u24 v4, 3456, v2
    v_lshl_add_u32 v4, v3, 4, v4
    """)
    for r in range(18):
        k(f"buffer_load_dwordx4 {vr(24+4*r,4)}, v4, s[8:11], s24 offen")
        k(f"s_add_u32 s24, s24, {32*3456}")
    for i in range(8): k(f"v_mov_b32 v{8+i}, 0")
    for r in range(18):
        k(f"s_waitcnt vmcnt({17-r})")
        for d in range(4):
            k(f"""
            v_lshlrev_b32 v5, 16, v{24+4*r+d}
            v_and_b32 v6, 0xffff0000, v{24+4*r+d}
            v_add_f32 v{8+2*d}, v{8+2*d}, v5
            v_add_f32 v{9+2*d}, v{9+2*d}, v6
            """)
    k(f"""
    v_lshlrev_b32 v5, 8, v2
    v_lshl_add_u32 v5, v3, 5, v5
    ds_write_b128 v5, v[8:11]
    ds_write_b128 v5, v[12:15] offset:16
    s_waitcnt lgkmcnt(0)
    s_barrier
    s_cmp_lg_u32 s4, 0
    s_cbranch_scc1 P_exit
    v_lshlrev_b32 v5, 2, v0
    """)
    for r in range(32): k(f"ds_read_b32 v{24+r}, v5 offset:{256*r}")
    k("s_waitcnt lgkmcnt(0)")
    for st in (16, 8, 4, 2, 1):
        for i in range(st): k(f"v_add_f32 v{24+i}, v{24+i}, v{24+i+st}")
    k("buffer_store_dword v24, v5, s[16:19], s22 offen")
    k("s_endpgm")
    k.label("P_flg")
    k(f"""
    v_mov_b32 v8, 0
    v_mov_b32 v9, 0
    v_mov_b32 v10, 0
    v_mov_b32 v11, 0
    s_lshl_b32 s5, s4, 13
    s_add_u32 s5, s5, {FLG}
    """)
    for i in range(8):
        k(f"buffer_store_dwordx4 v[8:11], v14, s[16:19], s5 offen\ns_add_u32 s5, s5, 1024")
    k("s_endpgm")
    k.label("P_warm")
    k(f"""
    s_getpc_b64 s[20:21]
    s_add_u32 s20, s20, m_kernel - . + 4
    s_addc_u32 s21, s21, 0
    s_mul_i32 s5, s4, 12288
    v_add_u32 v2, s5, v14
    """)
    for i in range(12):
        k(f"v_min_u32 v3, M_exit - m_kernel - 16, v2\nglobal_load_dwordx4 {vr(20+4*i,4)}, v3, s[20:21]\nv_add_u32 v2, 1024, v2")
    k("s_waitcnt vmcnt(0)\ns_endpgm")
    k.label("P_x")
    k(f"""
    s_sub_u32 s5, s2, {NQ+NO+NC+1}
    s_lshl_b32 s5, s5, 2
    s_add_u32 s5, s5, s4
    s_mul_i32 s6, s5, 7282
    s_lshr_b32 s6, s6, 16
    s_mul_i32 s7, s6, 9
    s_sub_u32 s7, s5, s7
    s_mov_b32 s8, s32
    s_mov_b32 s9, s33
    s_mov_b32 s10, {XB}
    s_lshr_b32 s22, s6, 4
    s_and_b32 s23, s6, 15
    s_mul_i32 s24, s23, {128*1152}
    s_mul_i32 s25, s22, 1152
    s_add_u32 s24, s24, s25
    s_lshl_b32 s25, s7, 7
    s_add_u32 s24, s24, s25
    s_mul_i32 s26, s6, {BLK}
    s_lshl_b32 s25, s7, 13
    s_add_u32 s26, s26, s25
    s_add_u32 s26, s26, {XBUF[0]}
    v_lshrrev_b32 v2, 3, v0
    v_and_b32 v3, 7, v0
    v_mul_u32_u24 v4, 2304, v2
    v_lshl_add_u32 v4, v3, 4, v4
    v_lshlrev_b32 v5, 10, v3
    v_lshl_add_u32 v5, v2, 4, v5
    """)
    for i in range(8):
        k(f"buffer_load_dwordx4 {vr(20+4*i,4)}, v4, s[8:11], s24 offen\ns_add_u32 s24, s24, {8*2304}")
    for i in range(8):
        k(f"s_waitcnt vmcnt({7-i + i})" if False else f"s_waitcnt vmcnt(7)")
        k(f"buffer_store_dwordx4 {vr(20+4*i,4)}, v5, s[16:19], s26 offen offset:{128*i}")
    k.label("P_exit")
    k("s_endpgm")

XI = 1024
HALO = XI + BLK
FR = 1024
OIMG = 40960
WOL = 80896
LDSZ = 163840
A0, A1, ACC, WF = 8, 28, 72, 112
CSR = 48
vA, vAh, vH = "v1", "v4", "v5"
vX2, vW0, vW1, vBN, vBO, vL = "v57", "v58", "v59", "v66", "v67", "v70"
RES = 60
HI = 9*4096

def mkcol(kind, rts): return dict(kind=kind, rts=rts)
PROGS = {
    'P1': [mkcol('T', [1,2,3,4]), mkcol('T', [0,1,2,3,4])],
    'P2': [mkcol('T', [0,1,2,3,4]), mkcol('N', [0,1,2,3,4])],
    'P3': [mkcol('N', [0,1,2,3,4]), mkcol('N', [0,1,2,3,4])],
    'P4': [mkcol('S', [0,1,2,3,4]), mkcol('R', [0,1,2,3,4])],
}
XSC = "" if 'L' in EXP else " sc1"

def gen_M(k):
    MAP = """s_and_b32 s7, s5, 1
    s_lshl_b32 s7, s7, 2
    s_and_b32 s20, s6, 3
    s_add_u32 s20, s20, s7
    s_lshr_b32 s7, s5, 1
    s_lshl_b32 s7, s7, 3
    s_lshr_b32 s21, s6, 2
    s_add_u32 s21, s21, s7"""
    if 'x' in EXP:
        MAP = """s_and_b32 s20, s6, 7
        s_lshl_b32 s7, s5, 2
        s_lshr_b32 s21, s6, 3
        s_add_u32 s21, s21, s7"""
    k.label("M_body")
    head(k, "M", 256)
    k(f"""
    s_and_b32 s5, s2, 7
    s_lshr_b32 s6, s2, 3
    {MAP}
    s_lshr_b32 s22, s21, 4
    s_and_b32 s23, s21, 15
    s_mul_i32 s24, s21, {BLK}
    s_mul_i32 s25, s20, 144
    s_mov_b32 s3, 0
    s_mov_b32 s100, 0
    v_mov_b32 v68, 0
    s_waitcnt lgkmcnt(0)
    s_mov_b32 s12, s48
    s_mov_b32 s13, s49
    s_mov_b32 s14, {WSZ}
    s_mov_b32 s15, 0x20000
    s_mov_b32 s16, s48
    s_mov_b32 s17, s49
    s_mov_b32 s18, {WSZ}
    s_mov_b32 s19, 0x20000
    s_mov_b32 s92, s44
    s_mov_b32 s93, s45
    s_mov_b32 s94, {XB}
    s_mov_b32 s95, 0x20000
    s_mul_i32 s96, s20, {18*13824}
    s_add_u32 s28, s96, {PQ[0]}
    s_lshl_b32 s26, s4, 10
    s_add_u32 s26, s26, {XI}
    s_add_u32 s31, s4, 5
    s_mov_b32 s30, s4
    s_cmp_lt_u32 s4, 5
    s_cbranch_scc1 M_tiles_ok
    s_lshl_b32 s30, s4, 1
    s_add_u32 s31, s30, 1
    """)
    k.label("M_tiles_ok")
    stamp(k)
    k(f"""
    v_lshlrev_b32 {vL}, 4, v0
    s_lshl_b32 s5, s30, 10
    v_add_u32 {vW0}, s5, {vL}
    s_lshl_b32 s5, s31, 10
    v_add_u32 {vW1}, s5, {vL}
    v_and_b32 v2, 15, v0
    v_lshrrev_b32 v3, 4, v0
    v_lshlrev_b32 v6, 4, v2
    v_lshl_add_u32 {vA}, v3, 10, v6
    v_add_u32 {vA}, {XI}, {vA}
    v_add_u32 {vAh}, {HI}, {vA}
    v_and_b32 v8, 0x70, v6
    v_lshl_add_u32 {vH}, v3, 7, v8
    v_add_u32 {vH}, {HALO}, {vH}
    v_lshrrev_b32 v8, 3, v0
    v_and_b32 v9, 7, v0
    v_lshlrev_b32 v9, 4, v9
    v_lshl_add_u32 v8, v8, 10, v9
    v_add_u32 v8, 896, v8
    v_bfrev_b32 v9, 1
    s_cmp_eq_u32 s23, 0
    s_cselect_b64 vcc, -1, 0
    s_and_b32 s6, s4, 3
    s_lshl_b32 s6, s6, 4
    v_cndmask_b32 {vX2}, v8, v9, vcc
    v_add_u32 v8, s6, v2
    v_lshrrev_b32 v9, 1, v3
    v_lshlrev_b32 v9, 10, v9
    v_lshl_add_u32 v9, v8, 4, v9
    v_and_b32 v10, 1, v3
    v_lshl_add_u32 v9, v10, 3, v9
    s_lshr_b32 s7, s4, 2
    s_mul_i32 s5, s7, 6144
    v_add_u32 {vBO}, s5, v9
    s_lshl_b32 s5, s23, 6
    v_add_u32 v8, s5, v8
    v_lshlrev_b32 v8, 1, v8
    v_add_u32 v8, s22, v8
    v_mul_u32_u24 v8, 1152, v8
    v_lshl_add_u32 v8, v3, 3, v8
    s_mul_i32 s7, s7, 96
    s_add_u32 s7, s7, s25
    v_add_u32 {vBN}, s7, v8
    s_cmp_eq_u32 s4, 4
    s_cbranch_scc1 M_P2
    s_cmp_eq_u32 s4, 7
    s_cbranch_scc1 M_P4
    s_cmp_gt_u32 s4, 4
    s_cbranch_scc1 M_P3
    """)
    for p in ['P1', 'P2', 'P3', 'P4']:
        k.label(f"M_{p}")
        gen_prog(k, p)
    k.label("M_att")
    gen_att(k)
    gen_Bphase(k)
    k.label("M_exit")
    k("s_endpgm")

def poll(k, name, two):
    k(f"""
    s_cmp_lg_u32 s4, 7
    s_cbranch_scc1 {name}_done
    v_and_b32 v2, 7, v0
    v_lshlrev_b32 v2, 2, v2
    """)
    if two:
        k(f"""
        s_cmp_eq_u32 s23, 0
        s_cselect_b32 s5, 128, 0
        v_and_b32 v3, 8, v0
        v_lshlrev_b32 v3, 4, v3
        v_max_u32 v3, s5, v3
        v_add_u32 v2, v2, v3
        s_sub_u32 s91, s91, 128
        s_mov_b64 exec, 0xffff
        """)
    else:
        k("s_mov_b64 exec, 0xff")
    k(f"""
    s_mov_b32 s5, 0x20000
    buffer_load_dword v8, v2, s[12:15], s91 offen sc1
    s_sleep 2
    buffer_load_dword v9, v2, s[12:15], s91 offen sc1
    s_sleep 2
    """)
    k.label(f"{name}_loop")
    for r in (10, 8, 9):
        chk = {10: 8, 8: 9, 9: 10}[r]
        k(f"""
        buffer_load_dword v{r}, v2, s[12:15], s91 offen sc1
        s_waitcnt vmcnt(2)
        v_cmp_ne_u32 vcc, 0, v{chk}
        s_nop 1
        s_cmp_eq_u64 vcc, exec
        s_cbranch_scc1 {name}_ok
        """)
    k(f"""
    s_sub_u32 s5, s5, 1
    s_cmp_lg_u32 s5, 0
    s_cbranch_scc1 {name}_loop
    """)
    k.label(f"{name}_ok")
    k("s_mov_b64 exec, -1")
    k.label(f"{name}_done")
    k("s_barrier")

def signal(k, name):
    k(f"""
    s_waitcnt vmcnt(0)
    s_barrier
    s_cmp_lg_u32 s4, 0
    s_cbranch_scc1 {name}_ns
    s_mov_b64 exec, 1
    v_mov_b32 v2, s20
    v_lshlrev_b32 v2, 2, v2
    v_mov_b32 v3, 1
    buffer_store_dword v3, v2, s[12:15], s91 offen sc1
    s_mov_b64 exec, -1
    """)
    k.label(f"{name}_ns")

def wo_dma(k):
    k(f"""
    s_min_u32 s6, s87, {80*1024}
    s_add_u32 m0, s6, {WOL}
    s_add_u32 s7, s6, s89
    buffer_load_dwordx4 {vL}, s[12:15], s7 offen lds
    s_add_u32 s87, s87, 7168
    """)
def wo_setup(k, layer_sgpr):
    k(f"""
    s_and_b32 s5, {layer_sgpr}, 1
    s_cmp_eq_u32 s5, 0
    s_mov_b32 s89, {PO[1]}
    s_cselect_b32 s89, {PO[0]}, s89
    s_mul_i32 s5, s20, {18*4608}
    s_add_u32 s89, s89, s5
    s_lshl_b32 s87, s4, 10
    s_add_u32 s87, s87, 3072
    """)
def x_setup(k):
    k(f"""
    s_mul_i32 s27, s3, {XSTR}
    s_add_u32 s27, s27, s24
    s_sub_u32 s85, s27, {BLK}
    s_max_i32 s85, s85, 0
    s_lshl_b32 s5, s4, 10
    s_add_u32 s27, s27, s5
    """)
def wn_load(ks):
    return [f"s_add_u32 s84, s28, {ks*13824}\nbuffer_load_dwordx4 {vr(WF + 8*ks, 4)}, {vW0}, s[16:19], s84 offen",
            f"buffer_load_dwordx4 {vr(WF + 8*ks + 4, 4)}, {vW1}, s[16:19], s84 offen"]
def guarded0(k, name, kss):
    k(f"s_cmp_lg_u32 s3, 0\ns_cbranch_scc1 {name}")
    for ks in kss:
        for t in wn_load(ks): k(t)
    k.label(name)

D0 = 10
LAG = 8
BARS = {1: 2, 5: 4, 9: 6, 13: 8}
eT, eN, eF0, eF1, aQ, aK, aO, vT = "v224", "v225", "v226", "v227", "v228", "v229", "v230", "v231"
CB = 232

def setup_list():
    L = f"""
    v_and_b32 v2, 15, v0
    v_lshrrev_b32 {vT}, 4, v0
    v_lshlrev_b32 {eT}, 2, v2
    v_lshlrev_b32 {eN}, 4, {vT}
    v_lshlrev_b32 v6, 3, v0
    s_mul_i32 s5, s30, 2560
    v_add_u32 {eF0}, s5, v6
    s_mul_i32 s5, s31, 2560
    v_add_u32 {eF1}, s5, v6
    s_and_b32 s97, s4, 3
    s_lshr_b32 s6, s4, 2
    s_lshl_b32 s5, s97, 9
    s_mul_i32 s7, s6, 2560
    s_add_u32 s7, s7, s5
    v_add_u32 {aQ}, s7, v6
    v_add_u32 v6, 256, v6
    v_and_b32 v6, 0x1ff, v6
    s_add_u32 s5, s5, {FR + 4*2560}
    v_add_u32 v6, s5, v6
    v_add_u32 {aK}, {FR + 8*2560}, {aQ}
    s_cmp_eq_u32 s6, 1
    s_cselect_b64 vcc, -1, 0
    s_lshl_b32 s5, s97, 4
    v_add_u32 v3, s5, v2
    v_cndmask_b32 {aK}, {aK}, v6, vcc
    v_lshlrev_b32 v3, 4, v3
    v_lshrrev_b32 v6, 1, {vT}
    v_lshl_add_u32 v3, v6, 10, v3
    v_and_b32 v6, 1, {vT}
    v_lshl_add_u32 v3, v6, 3, v3
    s_lshl_b32 s7, s6, 11
    s_add_u32 s7, s7, {OIMG}
    v_add_u32 {aO}, s7, v3
    v_lshlrev_b32 v3, 2, {vT}
    v_add_u32 v6, 2, v3
    s_lshl_b32 s76, s6, 1
    s_add_u32 s77, s76, 2
    s_add_u32 s78, s76, 4
    s_add_u32 s79, s76, 6
    v_cmp_le_u32 s[60:61], s76, v3
    v_cmp_le_u32 s[62:63], s76, v6
    v_cmp_gt_u32 s[64:65], s77, v3
    v_cmp_gt_u32 s[66:67], s77, v6
    v_cmp_le_u32 s[50:51], s78, v3
    v_cmp_le_u32 s[52:53], s78, v6
    v_cmp_gt_u32 s[54:55], s79, v3
    v_cmp_gt_u32 s[56:57], s79, v6
    v_cmp_le_u32 s[80:81], v3, v2
    v_sub_u32 v6, v2, v3
    v_mov_b32 v2, 0xf149f2ca
    s_or_b32 s5, s97, s23
    s_cmp_lg_u32 s5, 0
    s_cselect_b32 s5, 8, 0
    """
    for i in range(4):
        L += f"""
        v_add_u32 v3, {16-i}, v6
        v_cmp_gt_u32 s[76:77], s5, v3
        v_subrev_u32 v3, {i}, v6
        v_cmp_gt_u32 s[78:79], 8, v3
        s_nop 0
        v_cndmask_b32 v{CB+i}, v2, 0, s[76:77]
        v_cndmask_b32 v{CB+4+i}, v2, 0, s[78:79]
        """
    return [x.strip() for x in L.strip().split("\n") if x.strip()]

def gen_prog(k, p):
    cols = [dict(c) for c in PROGS[p]]
    a = ACC
    for c in cols:
        c['acc'] = {}
        for rt in c['rts']:
            c['acc'][rt] = a; a += 4
    nacc = a
    hasW = p != 'P4'
    ONES = WF
    if p == 'P3':
        k(f"""
        s_cmp_lg_u32 s4, 6
        s_cbranch_scc1 M_P3_nh
        v_and_b32 v2, 7, v0
        v_lshl_add_u32 v2, v3, 3, v2
        v_lshlrev_b32 v2, 4, v2
        v_add_u32 {vW1}, {13*1024}, v2
        """)
        k.label("M_P3_nh")
    if p == 'P4':
        k("s_mov_b32 s18, 0")
    vq = []
    def issue_x(s, sc):
        k(f"""
        s_add_u32 m0, s26, {s*8192}
        s_nop 0
        buffer_load_dwordx4 {vL}, s[12:15], s27 offen{sc} lds
        s_add_u32 s27, s27, 8192
        """)
        vq.append(('x', s))
        if p == 'P4':
            k(f"""
            s_mov_b32 m0, {HALO + s*1024}
            s_nop 0
            buffer_load_dwordx4 {vX2}, s[12:15], s85 offen{sc} lds
            s_add_u32 s85, s85, 8192
            """)
            vq.append(('x', s))
    def issue_w0(ks):
        if not hasW: return
        for c in range(2):
            k(f"buffer_load_dwordx4 {vr(WF + 8*ks + 4*c, 4)}, {vW0 if c == 0 else vW1}, s[16:19], s86 offen")
            vq.append(('w', ks))
        k(f"s_add_u32 s86, s86, 13824")
    def issue_wn(ks):
        if not hasW: return
        for t in wn_load(ks): k(t); vq.append(('wn', ks))
    def vwait(tag):
        idx = -1
        for i, t in enumerate(vq):
            if t == tag: idx = i
        if idx >= 0:
            k(f"s_waitcnt vmcnt({len(vq)-1-idx})")
            del vq[:idx+1]
    def issue_cs():
        if not hasW: return
        k(f"""
        v_lshrrev_b32 v3, 4, v0
        v_and_b32 v2, 15, v0
        s_lshl_b32 s5, s25, 1
        s_add_u32 s5, s5, s29
        """)
        for ci, c in enumerate(cols):
            st = "s30" if ci == 0 else "s31"
            if p == 'P1':
                k(f"s_lshl_b32 s6, s4, 6\ns_add_u32 s6, s6, {0 if ci == 0 else 576*4}\ns_add_u32 s6, s6, s5")
                k(f"v_lshlrev_b32 v6, 4, v3\nbuffer_load_dwordx4 {vr(CSR+4*ci,4)}, v6, s[12:15], s6 offen")
            elif p == 'P2':
                if ci == 0:
                    k(f"""
                    v_lshlrev_b32 v6, 4, v3
                    v_lshrrev_b32 v69, 1, v3
                    v_mul_u32_u24 v69, {576*4 - 32}, v69
                    v_add_u32 v6, v6, v69
                    s_add_u32 s6, s5, 256
                    buffer_load_dwordx4 {vr(CSR,4)}, v6, s[12:15], s6 offen
                    """)
                else:
                    k(f"v_lshlrev_b32 v6, 2, v2\ns_add_u32 s6, s5, {1152*4}\nbuffer_load_dword v{CSR+4}, v6, s[12:15], s6 offen")
            else:
                k(f"s_sub_u32 s6, {st}, 9\ns_lshl_b32 s6, s6, 6\ns_add_u32 s6, s6, {1152*4}\ns_add_u32 s6, s6, s5")
                k(f"v_lshlrev_b32 v6, 2, v2\nbuffer_load_dword v{CSR+4*ci}, v6, s[12:15], s6 offen")
            vq.append(('cs', 0))
    def rdA(ks):
        base = A0 if ks % 2 == 0 else A1
        k(f"ds_read_b128 {vr(base,4)}, {vH} offset:{ks*512}")
        for rt in range(1, 5):
            off = ks*4096 + (rt-1)*256
            if off >= HI: k(f"ds_read_b128 {vr(base+4*rt,4)}, {vAh} offset:{off-HI}")
            else: k(f"ds_read_b128 {vr(base+4*rt,4)}, {vA} offset:{off}")
    def main_loop(first):
        sc = "" if first else XSC
        su = setup_list()
        for r in range(ACC, nacc): k(f"v_mov_b32 v{r}, 0")
        if p == 'P4':
            for i in range(4): k(f"v_mov_b32 v{ONES+i}, 0x3f803f80")
            k("s_setprio 1")
        vwait(('x', 0))
        k("s_barrier")
        stamp(k)
        rdA(0)
        for ks in range(18):
            base = A0 if ks % 2 == 0 else A1
            if ks + 1 < 18:
                if ks in BARS:
                    vwait(('x', BARS[ks]))
                    k("s_barrier")
                rdA(ks + 1)
                k("s_waitcnt lgkmcnt(5)")
            else:
                k("s_waitcnt lgkmcnt(0)")
            if first: vwait(('w', ks))
            for ci, c in enumerate(cols):
                wf = vr(WF + 8*ks + 4*ci, 4)
                for rt in c['rts']:
                    d = vr(c['acc'][rt], 4); x = vr(base+4*rt, 4)
                    if c['kind'] == 'T': k(f"v_mfma_f32_16x16x32_bf16 {d}, {wf}, {x}, {d}")
                    elif c['kind'] == 'N': k(f"v_mfma_f32_16x16x32_bf16 {d}, {x}, {wf}, {d}")
                    elif c['kind'] == 'S': k(f"v_mfma_f32_16x16x32_bf16 {d}, {x}, {x}, {d}")
                    else: k(f"v_mfma_f32_16x16x32_bf16 {d}, {vr(ONES,4)}, {x}, {d}")
                    if ks >= 16:
                        for _ in range(5):
                            if su: k(su.pop(0))
                if ci == 0:
                    if ks % 2 == 0 and ks // 2 + 4 < 9: issue_x(ks // 2 + 4, sc)
                    if first and ks + D0 < 18: issue_w0(ks + D0)
            if ks == 1: issue_cs()
            if first and ks == 3:
                k(f"s_mul_i32 s5, s20, 9216\ns_add_u32 s5, s5, s24")
                for ct in range(3):
                    k(f"buffer_load_dwordx2 {vr(RES+2*ct,2)}, {vBO}, s[12:15], s5 offen\ns_add_u32 s5, s5, 2048")
                    vq.append(('res', 0))
            if not first and LAG <= ks < 16: issue_wn(ks - LAG)
            if hasW and ks < 16:
                n = 0
                if first and ks >= 10: n = 2
                if not first and ks in (1, 3, 5, 7, 9, 11): n = 1
                for _ in range(n):
                    wo_dma(k); vq.append(('wo', 0))
        while su: k(su.pop(0))
        if not first:
            issue_wn(8); issue_wn(9)
    k(f"s_mov_b32 s29, {CS[0]}\ns_mov_b32 s86, s28\ns_add_u32 s28, s96, {PQ[1]}")
    x_setup(k)
    wo_setup(k, "s3")
    for s in range(5):
        k(f"s_setprio {max(3-s,0)}")
        if s < 4: issue_x(s, "")
        issue_w0(2*s); issue_w0(2*s+1)
    main_loop(True)
    vwait(('cs', 0))
    k(f"s_branch M_{p}_epi")
    k.label(f"M_{p}_loop")
    del vq[:]
    for s in range(4):
        k(f"s_setprio {3-s}")
        issue_x(s, XSC)
    main_loop(False)
    vwait(('cs', 0))
    k.label(f"M_{p}_epi")
    k("s_nop 7")
    stamp(k)
    if p == 'P4':
        S = cols[0]; R = cols[1]
        k(f"""
        v_and_b32 v2, 15, v0
        v_lshrrev_b32 v6, 2, v2
        v_cmp_eq_u32 s[68:69], {vT}, v6
        v_and_b32 v6, 3, v0
        v_cmp_eq_u32 s[70:71], 1, v6
        v_cmp_eq_u32 s[72:73], 2, v6
        v_cmp_eq_u32 s[74:75], 3, v6
        s_mov_b32 s58, 0x3ae38e39
        s_mov_b32 s59, 0x3727c5ac
        """)
        ops = [
            lambda rt, s, r: f"v_cndmask_b32 v{8+rt}, v{s}, v{s+1}, s[70:71]",
            lambda rt, s, r: f"v_cndmask_b32 v{8+rt}, v{8+rt}, v{s+2}, s[72:73]",
            lambda rt, s, r: f"v_cndmask_b32 v{8+rt}, v{8+rt}, v{s+3}, s[74:75]",
            lambda rt, s, r: f"v_mul_f32 v{16+rt}, s58, v{r}",
            lambda rt, s, r: f"v_mul_f32 v{8+rt}, s58, v{8+rt}",
            lambda rt, s, r: f"v_fma_f32 v{8+rt}, -v{16+rt}, v{16+rt}, v{8+rt}",
            lambda rt, s, r: f"v_max_f32 v{8+rt}, 0, v{8+rt}",
            lambda rt, s, r: f"v_add_f32 v{8+rt}, s59, v{8+rt}",
            lambda rt, s, r: f"v_rsq_f32 v{8+rt}, v{8+rt}",
            lambda rt, s, r: f"v_mul_f32 v{16+rt}, v{16+rt}, v{8+rt}",
        ]
        for op in ops:
            for rt in range(5): k(op(rt, S['acc'][rt], R['acc'][rt]))
        k("s_mov_b64 exec, s[68:69]")
        for rt in range(5):
            k(f"ds_write2_b32 {eT}, v{8+rt}, v{16+rt} offset0:{16*rt} offset1:{80+16*rt}")
        k("s_mov_b64 exec, -1")
        k("s_setprio 0")
        k("s_waitcnt lgkmcnt(0)")
        k("s_barrier")
        stamp(k)
        k("s_branch M_att")
        return
    k("s_barrier")
    stamp(k)
    loaded = None
    for ci, c in enumerate(cols):
        cs = CSR + 4*ci
        if loaded != c['kind']:
            if c['kind'] == 'T':
                for rt in range(5): k(f"ds_read2_b32 {vr(8+2*rt,2)}, {eT} offset0:{16*rt} offset1:{80+16*rt}")
            else:
                for rt in range(5):
                    k(f"ds_read_b128 {vr(8+8*rt,4)}, {eN} offset:{rt*64}")
                    k(f"ds_read_b128 {vr(8+8*rt+4,4)}, {eN} offset:{320+rt*64}")
            loaded = c['kind']
            if ci == 0 and p == 'P1':
                k(f"""
                s_cmp_gt_u32 s4, 2
                s_cbranch_scc1 M_P1_nowo
                s_lshl_b32 s6, s4, 10
                s_add_u32 m0, s6, {WOL}
                s_add_u32 s7, s6, s89
                buffer_load_dwordx4 {vL}, s[12:15], s7 offen lds
                """)
                k.label("M_P1_nowo")
            k("s_waitcnt lgkmcnt(0)")
        for rt in c['rts']:
            a = c['acc'][rt]
            for h in range(2):
                if c['kind'] == 'T':
                    k(f"v_pk_mul_f32 {vr(a+2*h,2)}, {vr(a+2*h,2)}, {vr(8+2*rt,2)} op_sel_hi:[1,0]")
                else:
                    k(f"v_pk_mul_f32 {vr(a+2*h,2)}, {vr(a+2*h,2)}, {vr(8+8*rt+2*h,2)}")
        for rt in c['rts']:
            a = c['acc'][rt]
            for h in range(2):
                if c['kind'] == 'T':
                    k(f"v_pk_fma_f32 {vr(a+2*h,2)}, {vr(cs+2*h,2)}, {vr(8+2*rt,2)}, {vr(a+2*h,2)} op_sel:[0,1,0] op_sel_hi:[1,1,1] neg_lo:[0,1,0] neg_hi:[0,1,0]")
                else:
                    k(f"v_pk_fma_f32 {vr(a+2*h,2)}, {vr(8+8*rt+4+2*h,2)}, {vr(cs,2)}, {vr(a+2*h,2)} op_sel_hi:[1,0,1] neg_lo:[1,0,0] neg_hi:[1,0,0]")
        for rt in c['rts']:
            a = c['acc'][rt]
            k(f"v_cvt_pk_bf16_f32 v{a}, v{a}, v{a+1}")
            k(f"v_cvt_pk_bf16_f32 v{a+1}, v{a+2}, v{a+3}")
            k(f"ds_write_b64 {eF0 if ci == 0 else eF1}, {vr(a,2)} offset:{FR + rt*512}")
    k("s_branch M_att")

def att_unit(u):
    Q, Kr, V, S, T = ((16, 20, 28, 36, 44), (72, 76, 84, 92, 100))[u]
    M = (60, 50)[u]
    mk = lambda i: f"s[{M+2*i}:{M+2*i+1}]"
    L = []
    L += [f"v_cndmask_b32 v{Q+i}, 0, v{Q+i}, {mk(i)}" for i in range(4)]
    L += ["WAITK"]
    L += [f"v_mfma_f32_16x16x32_bf16 {vr(S,4)}, {vr(Kr,4)}, {vr(Q,4)}, {vr(CB,4)}",
          f"v_mfma_f32_16x16x32_bf16 {vr(S+4,4)}, {vr(Kr+4,4)}, {vr(Q,4)}, {vr(CB+4,4)}", "BG", "s_nop 3"]
    L += [f"v_max_f32 v{S+i}, v{S+i}, v{S+4+i}" for i in range(4)]
    L += [f"v_max3_f32 v{T}, v{S}, v{S+1}, v{S+2}", f"v_max_f32 v{T}, v{T}, v{S+3}",
          f"v_mov_b32 v{T+1}, v{T}", "s_nop 0", f"v_permlane32_swap_b32 v{T}, v{T+1}", f"v_max_f32 v{T}, v{T}, v{T+1}",
          f"v_mov_b32 v{T+1}, v{T}", "s_nop 0", f"v_permlane16_swap_b32 v{T}, v{T+1}", f"v_max_f32 v{T}, v{T}, v{T+1}",
          f"v_mul_f32 v{T}, s58, v{T}"]
    L += [f"v_pk_fma_f32 {vr(S+2*i,2)}, {vr(S+2*i,2)}, s[58:59], {vr(T,2)} op_sel_hi:[1,1,0] neg_lo:[0,0,1] neg_hi:[0,0,1]" for i in range(2)]
    L += [f"v_exp_f32 v{S+i}, v{S+i}" for i in range(4)]
    L += ["BG"]
    L += [f"v_pk_add_f32 {vr(Kr,2)}, {vr(S,2)}, {vr(S+2,2)}", f"v_add_f32 v{T}, v{Kr}, v{Kr+1}",
          f"v_mov_b32 v{T+1}, v{T}", "s_nop 0", f"v_permlane32_swap_b32 v{T}, v{T+1}", f"v_add_f32 v{T}, v{T}, v{T+1}",
          f"v_mov_b32 v{T+1}, v{T}", "s_nop 0", f"v_permlane16_swap_b32 v{T}, v{T+1}", f"v_add_f32 v{T}, v{T}, v{T+1}",
          f"v_rcp_f32 v{T}, v{T}", "BG"]
    L += [f"v_pk_mul_f32 {vr(S+2*i,2)}, {vr(S+2*i,2)}, {vr(T,2)} op_sel_hi:[1,0]" for i in range(2)]
    L += [f"v_cvt_pk_bf16_f32 v{Kr+i}, v{S+2*i}, v{S+2*i+1}" for i in range(2)]
    L += [f"v_cndmask_b32 v{Q}, v{Kr}, 0, s[80:81]", f"v_cndmask_b32 v{Q+1}, v{Kr+1}, 0, s[80:81]",
          f"v_cndmask_b32 v{Q+2}, 0, v{Kr}, s[80:81]", f"v_cndmask_b32 v{Q+3}, 0, v{Kr+1}, s[80:81]"]
    L += ["WAITV"]
    L += [f"v_mfma_f32_16x16x32_bf16 {vr(S,4)}, {vr(V,4)}, {vr(Q,4)}, 0",
          f"v_mfma_f32_16x16x32_bf16 {vr(S+4,4)}, {vr(V+4,4)}, {vr(Q,4)}, 0", "BG", "s_nop 3"]
    L += [f"v_cvt_pk_bf16_f32 v{Kr+i}, v{S+2*i}, v{S+2*i+1}" for i in range(4)]
    W = []
    offs = (0, 4, 2048, 2052)
    for i in range(4):
        W += [f"s_mov_b64 exec, {mk(i)}", f"ds_write_b32 {aO}, v{Kr+i} offset:{offs[i] + 4096*u}"]
    return L, W

def gen_att(k):
    for ks in range(10, 14): k.bg += wn_load(ks)
    k(f"""
    s_mov_b32 s58, 0x3eae1a93
    s_mov_b32 s59, 0x3eae1a93
    s_waitcnt lgkmcnt(0)
    """)
    stamp(k)
    k("s_barrier")
    stamp(k)
    H = 2*2560
    k(f"""
    ds_read_b64 v[16:17], {aQ} offset:{FR + 512}
    ds_read_b64 v[18:19], {aQ} offset:{FR + 2560 + 512}
    ds_read_b64 v[72:73], {aQ} offset:{FR + H + 512}
    ds_read_b64 v[74:75], {aQ} offset:{FR + H + 2560 + 512}
    ds_read_b64 v[20:21], {aQ} offset:{FR + 5*2560}
    ds_read_b64 v[22:23], {aQ} offset:{FR + 6*2560}
    ds_read_b64 v[24:25], {aQ} offset:{FR + 5*2560 + 512}
    ds_read_b64 v[26:27], {aQ} offset:{FR + 6*2560 + 512}
    ds_read_b64 v[76:77], {aQ} offset:{FR + H + 5*2560}
    ds_read_b64 v[78:79], {aK}
    ds_read_b64 v[80:81], {aQ} offset:{FR + H + 5*2560 + 512}
    ds_read_b64 v[82:83], {aK} offset:512
    ds_read_b64 v[28:29], {aQ} offset:{FR + 9*2560}
    ds_read_b64 v[30:31], {aQ} offset:{FR + 9*2560 + 512}
    ds_read_b64 v[32:33], {aQ} offset:{FR + 10*2560}
    ds_read_b64 v[34:35], {aQ} offset:{FR + 10*2560 + 512}
    ds_read_b64 v[84:85], {aQ} offset:{FR + H + 9*2560}
    ds_read_b64 v[86:87], {aQ} offset:{FR + H + 9*2560 + 512}
    ds_read_b64 v[88:89], {aQ} offset:{FR + H + 10*2560}
    ds_read_b64 v[90:91], {aQ} offset:{FR + H + 10*2560 + 512}
    """)
    k.bgp(2)
    k(f"""
    s_lshl_b32 s5, s4, 10
    v_add_u32 v8, s5, {vL}
    s_lshl_b32 s5, s4, 7
    s_add_u32 s5, s5, 8192
    v_add_u32 v9, s5, {vL}
    s_mul_i32 s88, s3, {OBUF[1]-OBUF[0]}
    s_add_u32 s88, s88, {OBUF[0]}
    s_add_u32 s88, s88, s24
    s_mul_i32 s83, s20, 9216
    s_add_u32 s83, s83, s88
    s_lshl_b32 s90, s3, 13
    s_lshl_b32 s5, s21, 7
    s_add_u32 s90, s90, s5
    s_add_u32 s90, s90, {FLG}
    s_mov_b32 s91, s90
    s_waitcnt lgkmcnt(15)
    """)
    L0, W0 = att_unit(0); L1, W1 = att_unit(1)
    for a, b in zip(L0, L1):
        if a == "WAITK":
            if 'f' in EXP: stamp(k)
            k("s_waitcnt lgkmcnt(8)\ns_nop 0"); continue
        if a == "WAITV":
            if 'f' in EXP: stamp(k)
            k("s_waitcnt lgkmcnt(0)\ns_nop 0"); continue
        if a == "BG": k.bgp(2 if len(k.bg) > 2 else 1); continue
        k(a); k(b)
    for t in W0 + W1: k(t)
    k("s_mov_b64 exec, -1")
    k.bgp(12)
    if 'f' in EXP: stamp(k)
    k(f"""
    s_waitcnt lgkmcnt(0)
    s_barrier""")
    if 'f' in EXP: stamp(k)
    k(f"""
    ds_read_b128 v[24:27], v8 offset:{OIMG}
    s_mov_b64 exec, 0xff
    ds_read_b128 v[28:31], v9 offset:{OIMG}
    s_mov_b64 exec, -1
    s_waitcnt lgkmcnt(1)
    buffer_store_dwordx4 v[24:27], v8, s[12:15], s83 offen sc1
    s_mov_b64 exec, 0xff
    s_waitcnt lgkmcnt(0)
    buffer_store_dwordx4 v[28:31], v9, s[12:15], s83 offen sc1
    s_mov_b64 exec, -1
    """)
    for ks in (14, 15):
        for t in wn_load(ks): k(t)
    stamp(k)
    k(f"""
    s_and_b32 s5, s4, 1
    s_lshl_b32 s6, s5, 12
    s_and_b32 s7, s4, 2
    s_lshl_b32 s7, s7, 8
    s_add_u32 s6, s6, s7
    v_add_u32 v108, s6, {vA}
    v_add_u32 v109, {4*8192}, v108
    s_mul_i32 s5, s5, 4608
    s_lshr_b32 s6, s4, 2
    s_mul_i32 s6, s6, 3072
    s_add_u32 s6, s6, s5
    s_add_u32 s6, s6, {WOL}
    v_add_u32 v6, s6, {vL}
    v_add_u32 v110, {4*9216}, v6
    v_lshrrev_b32 v71, 4, v0
    v_and_b32 v69, 7, v0
    v_lshl_add_u32 v69, v71, 3, v69
    v_lshlrev_b32 v69, 4, v69
    s_add_u32 s5, s5, {WOL + 4096}
    v_add_u32 v69, s5, v69
    v_add_u32 v111, {4*9216}, v69
    s_lshl_b32 s5, s4, 10
    s_add_u32 s88, s88, s5
    s_mul_i32 s5, s4, 3072
    s_add_u32 s5, s5, {XI}
    v_add_u32 v56, s5, {vL}
    s_xor_b32 s6, s4, 1
    s_mul_i32 s6, s6, 3072
    s_add_u32 s6, s6, {XI}
    v_add_u32 v71, s6, {vL}
    """)
    for r in range(72, 96): k(f"v_mov_b32 v{r}, 0")
    signal(k, "M_sigA")
    stamp(k)
    guarded0(k, "M_g1", (0, 1, 2))
    poll(k, "M_pollA", False)
    stamp(k)

def gen_Bphase(k):
    def odma(st):
        k(f"""
        s_add_u32 m0, s26, {st*8192}
        s_nop 0
        buffer_load_dwordx4 {vL}, s[12:15], s88 offen{XSC} lds
        s_add_u32 s88, s88, 8192
        """)
    PF = 5
    for st in range(PF):
        k(f"s_setprio {max(3-st,0)}")
        odma(st)
    k(f"""
    s_cmp_ge_u32 s4, 4
    s_cbranch_scc1 M_Bh1
    """)
    OF = [8, 28]; WFb = [16, 36]
    GR = {0: 0, 1: 2, 3: 5, 6: 8}
    for half in range(2):
        k.label(f"M_Bh{half}")
        n = 3 if half == 0 else 2
        def reads(st):
            p = st % 2
            hi = st >= 4; s_ = st - 4 if hi else st
            for r in range(2):
                k(f"ds_read_b128 {vr(OF[p]+4*r,4)}, {'v109' if hi else 'v108'} offset:{8192*s_ + 256*r}")
            for ct in range(n):
                if half == 1 and ct == 1:
                    k(f"ds_read_b128 {vr(WFb[p]+4*ct,4)}, {'v111' if hi else 'v69'} offset:{9216*s_}")
                else:
                    k(f"ds_read_b128 {vr(WFb[p]+4*ct,4)}, {'v110' if hi else 'v6'} offset:{9216*s_ + 1024*ct}")
        def mm(p):
            for ct in range(n):
                for r in range(2):
                    d = vr(72+12*r+4*ct, 4)
                    k(f"v_mfma_f32_16x16x32_bf16 {d}, {vr(WFb[p]+4*ct,4)}, {vr(OF[p]+4*r,4)}, {d}")
        nreads = 2 + n
        issued = PF
        for st in range(9):
            if st in GR:
                k(f"s_waitcnt vmcnt({issued-1-GR[st]})")
                k("s_barrier")
                if st == 0 or 'f' in EXP: stamp(k)
            reads(st)
            for _ in range(2):
                if issued < 9: odma(issued); issued += 1
            if st > 0:
                k(f"s_waitcnt lgkmcnt({nreads})")
                mm((st-1) % 2)
            if st == 6:
                for ks in (16, 17):
                    for t in wn_load(ks): k(t)
                guarded0(k, f"M_g2{half}", (3, 4, 5, 6))
        k("s_waitcnt lgkmcnt(0)")
        mm(0)
        if 'f' in EXP: stamp(k)
        k(f"""
        s_and_b32 s7, s4, 1
        s_cmp_eq_u32 s7, 0
        s_nop 6
        s_cbranch_scc1 M_Bx{half}_k0
        """)
        for kh in (1, 0):
            if kh == 0: k.label(f"M_Bx{half}_k0")
            keep = 72 + 12*kh; send = 72 + 12*(1-kh)
            for ct in range(n):
                k(f"ds_write_b128 v56, {vr(send+4*ct,4)} offset:{1024*ct}")
            k("s_waitcnt lgkmcnt(0)\ns_barrier")
            for ct in range(n):
                k(f"ds_read_b128 {vr(8+4*ct,4)}, v71 offset:{1024*ct}")
            for ct in range(n):
                k(f"s_waitcnt lgkmcnt({n-1-ct})")
                for h in range(2):
                    k(f"v_pk_add_f32 {vr(96+4*ct+2*h,2)}, {vr(keep+4*ct+2*h,2)}, {vr(8+4*ct+2*h,2)}")
            if kh == 1: k(f"s_branch M_Bx{half}_j")
        k.label(f"M_Bx{half}_j")
        stamp(k)
        T = lambda ct, i: 8 + 10*ct + i
        steps = [
            lambda ct, d, x: f"v_cvt_pk_bf16_f32 v{T(ct,8)}, v{d}, v{d+1}",
            lambda ct, d, x: f"v_cvt_pk_bf16_f32 v{T(ct,9)}, v{d+2}, v{d+3}",
            lambda ct, d, x: f"v_lshlrev_b32 v{T(ct,4)}, 16, v{x}",
            lambda ct, d, x: f"v_and_b32 v{T(ct,5)}, 0xffff0000, v{x}",
            lambda ct, d, x: f"v_lshlrev_b32 v{T(ct,6)}, 16, v{x+1}",
            lambda ct, d, x: f"v_and_b32 v{T(ct,7)}, 0xffff0000, v{x+1}",
            lambda ct, d, x: f"v_lshlrev_b32 v{T(ct,0)}, 16, v{T(ct,8)}",
            lambda ct, d, x: f"v_and_b32 v{T(ct,1)}, 0xffff0000, v{T(ct,8)}",
            lambda ct, d, x: f"v_lshlrev_b32 v{T(ct,2)}, 16, v{T(ct,9)}",
            lambda ct, d, x: f"v_and_b32 v{T(ct,3)}, 0xffff0000, v{T(ct,9)}",
            lambda ct, d, x: f"v_pk_add_f32 {vr(T(ct,0),2)}, {vr(T(ct,0),2)}, {vr(T(ct,4),2)}",
            lambda ct, d, x: f"v_pk_add_f32 {vr(T(ct,2),2)}, {vr(T(ct,2),2)}, {vr(T(ct,6),2)}",
            lambda ct, d, x: f"v_cvt_pk_bf16_f32 v{x}, v{T(ct,0)}, v{T(ct,1)}",
            lambda ct, d, x: f"v_cvt_pk_bf16_f32 v{x+1}, v{T(ct,2)}, v{T(ct,3)}",
        ]
        k(f"""
        s_mul_i32 s5, s3, {XSTR}
        s_add_u32 s5, s5, s24
        s_mul_i32 s6, s20, 9216
        s_add_u32 s5, s5, s6
        s_add_u32 s5, s5, {XSTR}
        """)
        for stp in steps:
            for ct in range(n): k(stp(ct, 96 + 4*ct, RES + 2*ct))
        k(f"""
        s_cmp_eq_u32 s3, 3
        s_cbranch_scc1 M_Bf{half}
        """)
        for ct in range(n):
            x = RES + 2*ct
            if half == 1 and ct == 1: k("s_mov_b64 exec, 0xffffffff")
            k(f"buffer_store_dwordx2 {vr(x,2)}, {vBO}, s[12:15], s5 offen sc1\ns_add_u32 s5, s5, 2048")
        k("s_mov_b64 exec, -1\ns_branch M_Bdone")
        k.label(f"M_Bf{half}")
        for ct in range(n):
            x = RES + 2*ct
            if half == 1 and ct == 1: k("s_mov_b64 exec, 0xffffffff")
            k(f"buffer_store_dwordx2 {vr(x,2)}, {vBN}, s[92:95], 0 offen offset:{32*ct}")
        k("s_mov_b64 exec, -1\ns_branch M_fin")
    k.label("M_Bdone")
    stamp(k)
    k("s_add_u32 s91, s90, 4096")
    signal(k, "M_sigB")
    stamp(k)
    guarded0(k, "M_g3", (7, 8, 9))
    k(f"""
    s_add_u32 s3, s3, 1
    s_and_b32 s5, s3, 1
    s_cmp_eq_u32 s5, 0
    s_mov_b32 s29, {CS[1]}
    s_cselect_b32 s29, {CS[0]}, s29
    s_mov_b32 s28, {PQ[0]}
    s_cselect_b32 s28, {PQ[1]}, s28
    s_add_u32 s28, s28, s96
    s_cmp_eq_u32 s3, 3
    s_cselect_b32 s18, 0, s18
    """)
    x_setup(k)
    wo_setup(k, "s3")
    k("s_cmp_eq_u32 s4, 7\ns_cbranch_scc1 M_nowo")
    for i in range(6): wo_dma(k)
    k.label("M_nowo")
    poll(k, "M_pollB", True)
    stamp(k)
    k(f"""
    s_cmp_eq_u32 s4, 4
    s_cbranch_scc1 M_P2_loop
    s_cmp_eq_u32 s4, 7
    s_cbranch_scc1 M_P4_loop
    s_cmp_gt_u32 s4, 4
    s_cbranch_scc1 M_P3_loop
    s_branch M_P1_loop
    """)
    k.label("M_fin")
    if DBG:
        k(f"""
        s_waitcnt vmcnt(0)
        """)
        stamp(k)
        k(f"""
        s_lshl_b32 s5, s2, 3
        s_add_u32 s5, s5, s4
        s_lshl_b32 s5, s5, 8
        s_add_u32 s5, s5, {DBGO}
        v_lshlrev_b32 v2, 2, v0
        buffer_store_dword v68, v2, s[12:15], s5 offen
        """)

def kd(name, vgpr, sgpr=102):
    acc = (vgpr + 3)//4*4
    return f""".p2align 6
.amdhsa_kernel {name}
  .amdhsa_next_free_vgpr {vgpr}
  .amdhsa_next_free_sgpr {sgpr}
  .amdhsa_accum_offset {acc}
  .amdhsa_group_segment_fixed_size 0
  .amdhsa_kernarg_size 72
  .amdhsa_user_sgpr_count 2
  .amdhsa_user_sgpr_kernarg_segment_ptr 1
  .amdhsa_system_sgpr_workgroup_id_x 1
.end_amdhsa_kernel
"""

def main():
    out = sys.argv[1]
    global DBG
    DBG = len(sys.argv) > 2 and sys.argv[2] == '1'
    hdr = [f"; @launch kernel=p_kernel grid=({NP},1,1) block=(256,1,1) lds=16384",
           f"; @launch kernel=m_kernel grid=(256,1,1) block=(512,1,1) lds={LDSZ}"]
    k = K()
    k.raw('.amdgcn_target "amdgcn-amd-amdhsa--gfx950"\n.text')
    k.raw(f".globl p_kernel\n.p2align 8\n.type p_kernel,@function\np_kernel:")
    gen_P(k)
    k.raw(f".globl m_kernel\n.p2align 8\n.type m_kernel,@function\nm_kernel:")
    gen_M(k)
    k.raw('.section .rodata,"a"')
    k.raw(kd("p_kernel", 96))
    k.raw(kd("m_kernel", 256))
    open(out, "w").write("\n".join(hdr) + "\n" + k.text())
main()
```

```python
import sys

XB = 2048 * 576 * 2
WQB = 576 * 1728 * 2
WOB = 576 * 576 * 2
XSTR = 0x280000
XBUF = [0x000000, 0x280000, 0x500000, 0x780000]
OBUF = [0xA00000, 0xC80000, 0xF00000, 0x1180000]
PQ = [0x1400000, 0x1600000]
PO = [0x1800000, 0x1A00000]
CS = [0x1B00000, 0x1B10000]
FLG = 0x1B20000
DBGO = 0x1900000
WSZ = 0x2000000
BLK = 73728

class K:
    def __init__(self): self.l = []; self.bg = []
    def bgp(self, n=1):
        for _ in range(n):
            if self.bg: self(self.bg.pop(0))
    def __call__(self, s):
        for x in s.strip().split("\n"):
            x = x.strip()
            if x: self.l.append("    " + x)
    def label(self, n): self.l.append(n + ":")
    def raw(self, s): self.l.append(s)
    def text(self): return "\n".join(self.l) + "\n"

DBG = False
import os
EXP = os.environ.get("EXP", "")
def stamp(k):
    if DBG:
        k("""s_memtime s[98:99]
        s_waitcnt lgkmcnt(0)
        s_mov_b32 m0, s100
        v_writelane_b32 v68, s98, m0
        s_add_u32 s100, s100, 1""")
def rts(k, idx, main):
    if 'r' not in EXP: return
    lab = f"rts_{len(k.l)}"
    k(f"""s_or_b32 s5, s2, s4
    s_cmp_lg_u32 s5, 0
    s_cbranch_scc1 {lab}
    s_memrealtime s[98:99]
    s_waitcnt lgkmcnt(0)
    s_add_u32 s6, s46, {0 if main else 512}
    s_addc_u32 s7, s47, 0
    s_mov_b64 exec, 1
    v_mov_b32 v2, {idx}
    v_lshlrev_b32 v2, 2, v2
    v_mov_b32 v3, s98
    global_store_dword v2, v3, s[6:7]
    s_mov_b64 exec, -1""")
    k.label(lab)
def vr(a, n): return f"v[{a}:{a+n-1}]"

def head(k, pfx, nwg):
    k(f"""
    s_cmp_ge_u32 s2, {nwg}
    s_cbranch_scc1 {pfx}_exit
    s_load_dwordx16 s[32:47], s[0:1], 0
    s_load_dwordx2 s[48:49], s[0:1], 64
    v_lshrrev_b32 v1, 6, v0
    v_and_b32 v0, 63, v0
    v_readfirstlane_b32 s4, v1
    """)

def emit_k_from_rho(k, vk, vrho, vt):
    k(f"""
    v_and_b32 {vk}, 0x78, {vrho}
    v_bfe_u32 {vt}, {vrho}, 1, 2
    v_or_b32 {vk}, {vk}, {vt}
    v_and_b32 {vt}, 1, {vrho}
    v_lshl_or_b32 {vk}, {vt}, 2, {vk}
    """)

def tile_off(t):
    if t < 4: return 32*t
    if t == 4: return None
    if t < 9: return 144 + 32*(t-5)
    return 288 + 32*(t-9)

NQ, NO, NC = 288, 96, 54
NX = 72
NW = 16 if 'w' in EXP else 0
NP0 = NQ + NO + NC + 1 + NX
NP = NP0 + NW
def gen_P(k):
    k.label("P_body")
    head(k, "P", NP)
    k(f"""
    s_waitcnt lgkmcnt(0)""")
    rts(k, 0, False)
    k(f"""
    s_mov_b32 s16, s48
    s_mov_b32 s17, s49
    s_mov_b32 s18, {WSZ}
    s_mov_b32 s19, 0x20000
    s_mov_b32 s11, 0x20000
    v_lshrrev_b32 v3, 4, v0
    v_bfe_u32 v4, v0, 2, 2
    v_lshlrev_b32 v4, 1, v4
    v_lshl_add_u32 v12, v3, 3, v4
    v_and_b32 v13, 3, v0
    v_lshlrev_b32 v13, 3, v13
    v_lshlrev_b32 v14, 4, v0
    v_and_b32 v4, 7, v0
    v_lshl_add_u32 v15, v3, 3, v4
    v_lshlrev_b32 v15, 4, v15
    v_and_b32 v4, 8, v0
    v_cmp_eq_u32 s[50:51], 0, v4
    v_bfrev_b32 v16, 1
    s_cmp_ge_u32 s2, {NP0}
    s_cbranch_scc1 P_warm
    s_cmp_gt_u32 s2, {NQ+NO+NC}
    s_cbranch_scc1 P_x
    s_cmp_eq_u32 s2, {NQ+NO+NC}
    s_cbranch_scc1 P_flg
    s_cmp_ge_u32 s2, {NQ+NO}
    s_cbranch_scc1 P_cs
    s_cmp_ge_u32 s2, {NQ}
    s_cbranch_scc1 P_o
    """)
    k(f"""
    s_cmp_ge_u32 s2, 144
    s_cselect_b32 s5, 144, 0
    s_cselect_b64 s[8:9], s[40:41], s[34:35]
    s_mov_b32 s22, {PQ[0]}
    s_cselect_b32 s22, {PQ[1]}, s22
    s_mov_b32 s10, {WQB}
    s_sub_u32 s5, s2, s5
    s_mul_i32 s6, s5, 3641
    s_lshr_b32 s6, s6, 16
    s_mul_i32 s7, s6, 18
    s_sub_u32 s7, s5, s7
    s_mul_i32 s23, s5, 13824
    s_add_u32 s22, s22, s23
    s_mul_i32 s24, s7, {32*3456}
    s_mul_i32 s25, s6, 144
    s_add_u32 s24, s24, s25
    """)
    for n in range(4):
        k(f"""
        s_lshl_b32 s26, s4, 6
        s_add_u32 s26, s26, {256*n}
        v_add_u32 v2, s26, v0
        v_cmp_gt_u32 vcc, 864, v2
        v_mul_u32_u24 v3, 2428, v2
        v_lshrrev_b32 v3, 16, v3
        v_mul_u32_u24 v4, 27, v3
        v_sub_u32 v2, v2, v4
        v_mul_u32_u24 v4, 57, v2
        v_lshrrev_b32 v4, 9, v4
        v_mul_u32_u24 v5, 9, v4
        v_sub_u32 v2, v2, v5
        """)
        emit_k_from_rho(k, "v5", "v3", "v6")
        k(f"""
        v_mul_u32_u24 v5, 3456, v5
        v_mul_u32_u24 v4, 1152, v4
        v_add_u32 v5, v5, v4
        v_lshl_add_u32 v5, v2, 4, v5
        v_cndmask_b32 v5, v16, v5, vcc
        s_lshl_b32 s26, s26, 4
        s_mov_b32 m0, s26
        s_nop 0
        buffer_load_dwordx4 v5, s[8:11], s24 offen lds
        """)
    k(f"""
    v_mul_u32_u24 v12, 432, v12
    v_add_u32 v12, v12, v13
    v_bfe_u32 v5, v0, 1, 1
    v_lshlrev_b32 v5, 7, v5
    v_add_u32 v5, 128, v5
    v_add_u32 v13, v12, v5
    s_waitcnt vmcnt(0)
    s_barrier
    """)
    for w in range(1, 4): k(f"s_cmp_eq_u32 s4, {w}\ns_cbranch_scc1 P_q{w}")
    for w in range(4):
        k.label(f"P_q{w}")
        ts = [t for t in range(w, 14, 4)]
        for i, t in enumerate(ts):
            for b in range(2):
                if t == 4: k(f"ds_read_b64_tr_b16 {vr(20+4*i+2*b,2)}, v13 offset:{b*432}")
                else: k(f"ds_read_b64_tr_b16 {vr(20+4*i+2*b,2)}, v12 offset:{b*432 + tile_off(t)}")
        for i, t in enumerate(ts):
            k(f"s_waitcnt lgkmcnt({2*(len(ts)-1-i)})")
            k(f"s_add_u32 s26, s22, {t*1024}")
            if t == 13:
                k("s_mov_b64 exec, s[50:51]")
                k(f"buffer_store_dwordx4 {vr(20+4*i,4)}, v15, s[16:19], s26 offen")
            else:
                k(f"buffer_store_dwordx4 {vr(20+4*i,4)}, v14, s[16:19], s26 offen")
        k("s_endpgm")
    k.label("P_o")
    k(f"""
    s_sub_u32 s5, s2, {NQ}
    s_cmp_ge_u32 s5, 48
    s_cselect_b32 s6, 48, 0
    s_cselect_b64 s[8:9], s[42:43], s[36:37]
    s_mov_b32 s22, {PO[0]}
    s_cselect_b32 s22, {PO[1]}, s22
    s_mov_b32 s10, {WOB}
    s_sub_u32 s5, s5, s6
    s_mul_i32 s6, s5, 43
    s_lshr_b32 s6, s6, 8
    s_mul_i32 s7, s6, 6
    s_sub_u32 s7, s5, s7
    s_mul_i32 s23, s5, 13824
    s_add_u32 s22, s22, s23
    s_mul_i32 s24, s7, {96*1152}
    s_mul_i32 s25, s6, 144
    s_add_u32 s24, s24, s25
    """)
    for n in range(4):
        k(f"""
        s_lshl_b32 s26, s4, 6
        s_add_u32 s26, s26, {256*n}
        v_add_u32 v2, s26, v0
        v_cmp_gt_u32 vcc, 864, v2
        v_mul_u32_u24 v3, 7282, v2
        v_lshrrev_b32 v3, 16, v3
        v_mul_u32_u24 v4, 9, v3
        v_sub_u32 v2, v2, v4
        """)
        emit_k_from_rho(k, "v5", "v3", "v6")
        k(f"""
        v_mul_u32_u24 v5, 1152, v5
        v_lshl_add_u32 v5, v2, 4, v5
        v_cndmask_b32 v5, v16, v5, vcc
        s_lshl_b32 s26, s26, 4
        s_mov_b32 m0, s26
        s_nop 0
        buffer_load_dwordx4 v5, s[8:11], s24 offen lds
        """)
    k(f"""
    v_mul_u32_u24 v12, 144, v12
    v_add_u32 v12, v12, v13
    s_waitcnt vmcnt(0)
    s_barrier
    """)
    for w in range(1, 4): k(f"s_cmp_eq_u32 s4, {w}\ns_cbranch_scc1 P_o{w}")
    for w in range(4):
        k.label(f"P_o{w}")
        ts = [t for t in range(w, 15, 4)]
        for i, t in enumerate(ts):
            ks, ct = t // 5, t % 5
            for b in range(2):
                k(f"ds_read_b64_tr_b16 {vr(20+4*i+2*b,2)}, v12 offset:{ks*4608 + b*144 + 32*ct}")
        for i, t in enumerate(ts):
            ks, ct = t // 5, t % 5
            k(f"s_waitcnt lgkmcnt({2*(len(ts)-1-i)})")
            k(f"s_add_u32 s26, s22, {ks*4608 + ct*1024}")
            if ct == 4:
                k("s_mov_b64 exec, s[50:51]")
                k(f"buffer_store_dwordx4 {vr(20+4*i,4)}, v15, s[16:19], s26 offen")
                k("s_mov_b64 exec, -1")
            else:
                k(f"buffer_store_dwordx4 {vr(20+4*i,4)}, v14, s[16:19], s26 offen")
        k("s_endpgm")
    k.label("P_cs")
    k(f"""
    s_sub_u32 s5, s2, {NQ+NO}
    s_cmp_ge_u32 s5, 27
    s_cselect_b32 s6, 27, 0
    s_cselect_b64 s[8:9], s[40:41], s[34:35]
    s_mov_b32 s22, {CS[0]}
    s_cselect_b32 s22, {CS[1]}, s22
    s_mov_b32 s10, {WQB}
    s_sub_u32 s5, s5, s6
    s_lshl_b32 s24, s5, 7
    s_lshl_b32 s23, s5, 8
    s_add_u32 s22, s22, s23
    s_lshl_b32 s6, s4, 3
    v_lshrrev_b32 v2, 3, v0
    v_add_u32 v2, s6, v2
    v_and_b32 v3, 7, v0
    v_mul_u32_u24 v4, 3456, v2
    v_lshl_add_u32 v4, v3, 4, v4
    """)
    for r in range(18):
        k(f"buffer_load_dwordx4 {vr(24+4*r,4)}, v4, s[8:11], s24 offen")
        k(f"s_add_u32 s24, s24, {32*3456}")
    for i in range(8): k(f"v_mov_b32 v{8+i}, 0")
    for r in range(18):
        k(f"s_waitcnt vmcnt({17-r})")
        for d in range(4):
            k(f"""
            v_lshlrev_b32 v5, 16, v{24+4*r+d}
            v_and_b32 v6, 0xffff0000, v{24+4*r+d}
            v_add_f32 v{8+2*d}, v{8+2*d}, v5
            v_add_f32 v{9+2*d}, v{9+2*d}, v6
            """)
    k(f"""
    v_lshlrev_b32 v5, 8, v2
    v_lshl_add_u32 v5, v3, 5, v5
    ds_write_b128 v5, v[8:11]
    ds_write_b128 v5, v[12:15] offset:16
    s_waitcnt lgkmcnt(0)
    s_barrier
    s_cmp_lg_u32 s4, 0
    s_cbranch_scc1 P_exit
    v_lshlrev_b32 v5, 2, v0
    """)
    for r in range(32): k(f"ds_read_b32 v{24+r}, v5 offset:{256*r}")
    k("s_waitcnt lgkmcnt(0)")
    for st in (16, 8, 4, 2, 1):
        for i in range(st): k(f"v_add_f32 v{24+i}, v{24+i}, v{24+i+st}")
    k("buffer_store_dword v24, v5, s[16:19], s22 offen")
    k("s_endpgm")
    k.label("P_flg")
    k(f"""
    v_mov_b32 v8, 0
    v_mov_b32 v9, 0
    v_mov_b32 v10, 0
    v_mov_b32 v11, 0
    s_lshl_b32 s5, s4, 13
    s_add_u32 s5, s5, {FLG}
    """)
    for i in range(8):
        k(f"buffer_store_dwordx4 v[8:11], v14, s[16:19], s5 offen\ns_add_u32 s5, s5, 1024")
    k("s_endpgm")
    k.label("P_warm")
    k(f"""
    s_getpc_b64 s[20:21]
    s_add_u32 s20, s20, m_kernel - . + 4
    s_addc_u32 s21, s21, 0
    s_mul_i32 s5, s4, 12288
    v_add_u32 v2, s5, v14
    """)
    for i in range(12):
        k(f"v_min_u32 v3, M_exit - m_kernel - 16, v2\nglobal_load_dwordx4 {vr(20+4*i,4)}, v3, s[20:21]\nv_add_u32 v2, 1024, v2")
    k("s_waitcnt vmcnt(0)\ns_endpgm")
    k.label("P_x")
    k(f"""
    s_sub_u32 s5, s2, {NQ+NO+NC+1}
    s_lshl_b32 s5, s5, 2
    s_add_u32 s5, s5, s4
    s_mul_i32 s6, s5, 7282
    s_lshr_b32 s6, s6, 16
    s_mul_i32 s7, s6, 9
    s_sub_u32 s7, s5, s7
    s_mov_b32 s8, s32
    s_mov_b32 s9, s33
    s_mov_b32 s10, {XB}
    s_lshr_b32 s22, s6, 4
    s_and_b32 s23, s6, 15
    s_mul_i32 s24, s23, {128*1152}
    s_mul_i32 s25, s22, 1152
    s_add_u32 s24, s24, s25
    s_lshl_b32 s25, s7, 7
    s_add_u32 s24, s24, s25
    s_mul_i32 s26, s6, {BLK}
    s_lshl_b32 s25, s7, 13
    s_add_u32 s26, s26, s25
    s_add_u32 s26, s26, {XBUF[0]}
    v_lshrrev_b32 v2, 3, v0
    v_and_b32 v3, 7, v0
    v_mul_u32_u24 v4, 2304, v2
    v_lshl_add_u32 v4, v3, 4, v4
    v_lshlrev_b32 v5, 10, v3
    v_lshl_add_u32 v5, v2, 4, v5
    """)
    for i in range(8):
        k(f"buffer_load_dwordx4 {vr(20+4*i,4)}, v4, s[8:11], s24 offen\ns_add_u32 s24, s24, {8*2304}")
    for i in range(8):
        k(f"s_waitcnt vmcnt({7-i + i})" if False else f"s_waitcnt vmcnt(7)")
        k(f"buffer_store_dwordx4 {vr(20+4*i,4)}, v5, s[16:19], s26 offen offset:{128*i}")
    k.label("P_exit")
    k("s_endpgm")

XI = 1024
HALO = XI + BLK
FR = 1024
OIMG = 40960
WOL = 80896
LDSZ = 163840
A0, A1, ACC, WF = 8, 28, 72, 112
CSR = 48
vA, vAh, vH = "v1", "v4", "v5"
vX2, vW0, vW1, vBN, vBO, vL = "v57", "v58", "v59", "v66", "v67", "v70"
RES = 60
HI = 9*4096

def mkcol(kind, rts): return dict(kind=kind, rts=rts)
PROGS = {
    'P1': [mkcol('T', [1,2,3,4]), mkcol('T', [0,1,2,3,4])],
    'P2': [mkcol('T', [0,1,2,3,4]), mkcol('N', [0,1,2,3,4])],
    'P3': [mkcol('N', [0,1,2,3,4]), mkcol('N', [0,1,2,3,4])],
    'P4': [mkcol('S', [0,1,2,3,4]), mkcol('R', [0,1,2,3,4])],
}
XSC = "" if 'L' in EXP else " sc1"

def gen_M(k):
    MAP = """s_and_b32 s7, s5, 1
    s_lshl_b32 s7, s7, 2
    s_and_b32 s20, s6, 3
    s_add_u32 s20, s20, s7
    s_lshr_b32 s7, s5, 1
    s_lshl_b32 s7, s7, 3
    s_lshr_b32 s21, s6, 2
    s_add_u32 s21, s21, s7"""
    if 'x' in EXP:
        MAP = """s_and_b32 s20, s6, 7
        s_lshl_b32 s7, s5, 2
        s_lshr_b32 s21, s6, 3
        s_add_u32 s21, s21, s7"""
    k.label("M_body")
    head(k, "M", 256)
    k(f"""
    s_and_b32 s5, s2, 7
    s_lshr_b32 s6, s2, 3
    {MAP}
    s_lshr_b32 s22, s21, 4
    s_and_b32 s23, s21, 15
    s_mul_i32 s24, s21, {BLK}
    s_mul_i32 s25, s20, 144
    s_mov_b32 s3, 0
    s_mov_b32 s100, 0
    v_mov_b32 v68, 0
    s_waitcnt lgkmcnt(0)
    s_mov_b32 s12, s48
    s_mov_b32 s13, s49
    s_mov_b32 s14, {WSZ}
    s_mov_b32 s15, 0x20000
    s_mov_b32 s16, s48
    s_mov_b32 s17, s49
    s_mov_b32 s18, {WSZ}
    s_mov_b32 s19, 0x20000
    s_mov_b32 s92, s44
    s_mov_b32 s93, s45
    s_mov_b32 s94, {XB}
    s_mov_b32 s95, 0x20000
    s_mul_i32 s96, s20, {18*13824}
    s_add_u32 s28, s96, {PQ[0]}
    s_lshl_b32 s26, s4, 10
    s_add_u32 s26, s26, {XI}
    s_add_u32 s31, s4, 5
    s_mov_b32 s30, s4
    s_cmp_lt_u32 s4, 5
    s_cbranch_scc1 M_tiles_ok
    s_lshl_b32 s30, s4, 1
    s_add_u32 s31, s30, 1
    """)
    k.label("M_tiles_ok")
    stamp(k)
    rts(k, 1, True)
    k(f"""
    v_lshlrev_b32 {vL}, 4, v0
    s_lshl_b32 s5, s30, 10
    v_add_u32 {vW0}, s5, {vL}
    s_lshl_b32 s5, s31, 10
    v_add_u32 {vW1}, s5, {vL}
    v_and_b32 v2, 15, v0
    v_lshrrev_b32 v3, 4, v0
    v_lshlrev_b32 v6, 4, v2
    v_lshl_add_u32 {vA}, v3, 10, v6
    v_add_u32 {vA}, {XI}, {vA}
    v_add_u32 {vAh}, {HI}, {vA}
    v_and_b32 v8, 0x70, v6
    v_lshl_add_u32 {vH}, v3, 7, v8
    v_add_u32 {vH}, {HALO}, {vH}
    v_lshrrev_b32 v8, 3, v0
    v_and_b32 v9, 7, v0
    v_lshlrev_b32 v9, 4, v9
    v_lshl_add_u32 v8, v8, 10, v9
    v_add_u32 v8, 896, v8
    v_bfrev_b32 v9, 1
    s_cmp_eq_u32 s23, 0
    s_cselect_b64 vcc, -1, 0
    s_and_b32 s6, s4, 3
    s_lshl_b32 s6, s6, 4
    v_cndmask_b32 {vX2}, v8, v9, vcc
    v_add_u32 v8, s6, v2
    v_lshrrev_b32 v9, 1, v3
    v_lshlrev_b32 v9, 10, v9
    v_lshl_add_u32 v9, v8, 4, v9
    v_and_b32 v10, 1, v3
    v_lshl_add_u32 v9, v10, 3, v9
    s_lshr_b32 s7, s4, 2
    s_mul_i32 s5, s7, 6144
    v_add_u32 {vBO}, s5, v9
    s_lshl_b32 s5, s23, 6
    v_add_u32 v8, s5, v8
    v_lshlrev_b32 v8, 1, v8
    v_add_u32 v8, s22, v8
    v_mul_u32_u24 v8, 1152, v8
    v_lshl_add_u32 v8, v3, 3, v8
    s_mul_i32 s7, s7, 96
    s_add_u32 s7, s7, s25
    v_add_u32 {vBN}, s7, v8
    s_cmp_eq_u32 s4, 4
    s_cbranch_scc1 M_P2
    s_cmp_eq_u32 s4, 7
    s_cbranch_scc1 M_P4
    s_cmp_gt_u32 s4, 4
    s_cbranch_scc1 M_P3
    """)
    for p in ['P1', 'P2', 'P3', 'P4']:
        k.label(f"M_{p}")
        gen_prog(k, p)
    k.label("M_att")
    gen_att(k)
    gen_Bphase(k)
    k.label("M_exit")
    k("s_endpgm")

def poll(k, name, two):
    k(f"""
    s_cmp_lg_u32 s4, 7
    s_cbranch_scc1 {name}_done
    v_and_b32 v2, 7, v0
    v_lshlrev_b32 v2, 2, v2
    """)
    if two:
        k(f"""
        s_cmp_eq_u32 s23, 0
        s_cselect_b32 s5, 128, 0
        v_and_b32 v3, 8, v0
        v_lshlrev_b32 v3, 4, v3
        v_max_u32 v3, s5, v3
        v_add_u32 v2, v2, v3
        s_sub_u32 s91, s91, 128
        s_mov_b64 exec, 0xffff
        """)
    else:
        k("s_mov_b64 exec, 0xff")
    k(f"""
    s_mov_b32 s5, 0x20000
    buffer_load_dword v8, v2, s[12:15], s91 offen sc1
    s_sleep 2
    buffer_load_dword v9, v2, s[12:15], s91 offen sc1
    s_sleep 2
    """)
    k.label(f"{name}_loop")
    for r in (10, 8, 9):
        chk = {10: 8, 8: 9, 9: 10}[r]
        k(f"""
        buffer_load_dword v{r}, v2, s[12:15], s91 offen sc1
        s_waitcnt vmcnt(2)
        v_cmp_ne_u32 vcc, 0, v{chk}
        s_nop 1
        s_cmp_eq_u64 vcc, exec
        s_cbranch_scc1 {name}_ok
        """)
    k(f"""
    s_sub_u32 s5, s5, 1
    s_cmp_lg_u32 s5, 0
    s_cbranch_scc1 {name}_loop
    """)
    k.label(f"{name}_ok")
    k("s_mov_b64 exec, -1")
    k.label(f"{name}_done")
    k("s_barrier")

def signal(k, name):
    k(f"""
    s_waitcnt vmcnt(0)
    s_barrier
    s_cmp_lg_u32 s4, 0
    s_cbranch_scc1 {name}_ns
    s_mov_b64 exec, 1
    v_mov_b32 v2, s20
    v_lshlrev_b32 v2, 2, v2
    v_mov_b32 v3, 1
    buffer_store_dword v3, v2, s[12:15], s91 offen sc1
    s_mov_b64 exec, -1
    """)
    k.label(f"{name}_ns")

def wo_dma(k):
    k(f"""
    s_min_u32 s6, s87, {80*1024}
    s_add_u32 m0, s6, {WOL}
    s_add_u32 s7, s6, s89
    buffer_load_dwordx4 {vL}, s[12:15], s7 offen lds
    s_add_u32 s87, s87, 7168
    """)
def wo_setup(k, layer_sgpr):
    k(f"""
    s_and_b32 s5, {layer_sgpr}, 1
    s_cmp_eq_u32 s5, 0
    s_mov_b32 s89, {PO[1]}
    s_cselect_b32 s89, {PO[0]}, s89
    s_mul_i32 s5, s20, {18*4608}
    s_add_u32 s89, s89, s5
    s_lshl_b32 s87, s4, 10
    s_add_u32 s87, s87, 3072
    """)
def x_setup(k):
    k(f"""
    s_mul_i32 s27, s3, {XSTR}
    s_add_u32 s27, s27, s24
    s_sub_u32 s85, s27, {BLK}
    s_max_i32 s85, s85, 0
    s_lshl_b32 s5, s4, 10
    s_add_u32 s27, s27, s5
    """)
def wn_load(ks):
    return [f"s_add_u32 s84, s28, {ks*13824}\nbuffer_load_dwordx4 {vr(WF + 8*ks, 4)}, {vW0}, s[16:19], s84 offen",
            f"buffer_load_dwordx4 {vr(WF + 8*ks + 4, 4)}, {vW1}, s[16:19], s84 offen"]
def guarded0(k, name, kss):
    k(f"s_cmp_lg_u32 s3, 0\ns_cbranch_scc1 {name}")
    for ks in kss:
        for t in wn_load(ks): k(t)
    k.label(name)

D0 = 10
LAG = 8
BARS = {1: 2, 5: 4, 9: 6, 13: 8}
eT, eN, eF0, eF1, aQ, aK, aO, vT = "v224", "v225", "v226", "v227", "v228", "v229", "v230", "v231"
CB = 232

def setup_list():
    L = f"""
    v_and_b32 v2, 15, v0
    v_lshrrev_b32 {vT}, 4, v0
    v_lshlrev_b32 {eT}, 2, v2
    v_lshlrev_b32 {eN}, 4, {vT}
    v_lshlrev_b32 v6, 3, v0
    s_mul_i32 s5, s30, 2560
    v_add_u32 {eF0}, s5, v6
    s_mul_i32 s5, s31, 2560
    v_add_u32 {eF1}, s5, v6
    s_and_b32 s97, s4, 3
    s_lshr_b32 s6, s4, 2
    s_lshl_b32 s5, s97, 9
    s_mul_i32 s7, s6, 2560
    s_add_u32 s7, s7, s5
    v_add_u32 {aQ}, s7, v6
    v_add_u32 v6, 256, v6
    v_and_b32 v6, 0x1ff, v6
    s_add_u32 s5, s5, {FR + 4*2560}
    v_add_u32 v6, s5, v6
    v_add_u32 {aK}, {FR + 8*2560}, {aQ}
    s_cmp_eq_u32 s6, 1
    s_cselect_b64 vcc, -1, 0
    s_lshl_b32 s5, s97, 4
    v_add_u32 v3, s5, v2
    v_cndmask_b32 {aK}, {aK}, v6, vcc
    v_lshlrev_b32 v3, 4, v3
    v_lshrrev_b32 v6, 1, {vT}
    v_lshl_add_u32 v3, v6, 10, v3
    v_and_b32 v6, 1, {vT}
    v_lshl_add_u32 v3, v6, 3, v3
    s_lshl_b32 s7, s6, 11
    s_add_u32 s7, s7, {OIMG}
    v_add_u32 {aO}, s7, v3
    v_lshlrev_b32 v3, 2, {vT}
    v_add_u32 v6, 2, v3
    s_lshl_b32 s76, s6, 1
    s_add_u32 s77, s76, 2
    s_add_u32 s78, s76, 4
    s_add_u32 s79, s76, 6
    v_cmp_le_u32 s[60:61], s76, v3
    v_cmp_le_u32 s[62:63], s76, v6
    v_cmp_gt_u32 s[64:65], s77, v3
    v_cmp_gt_u32 s[66:67], s77, v6
    v_cmp_le_u32 s[50:51], s78, v3
    v_cmp_le_u32 s[52:53], s78, v6
    v_cmp_gt_u32 s[54:55], s79, v3
    v_cmp_gt_u32 s[56:57], s79, v6
    v_cmp_le_u32 s[80:81], v3, v2
    v_sub_u32 v6, v2, v3
    v_mov_b32 v2, 0xf149f2ca
    s_or_b32 s5, s97, s23
    s_cmp_lg_u32 s5, 0
    s_cselect_b32 s5, 8, 0
    """
    for i in range(4):
        L += f"""
        v_add_u32 v3, {16-i}, v6
        v_cmp_gt_u32 s[76:77], s5, v3
        v_subrev_u32 v3, {i}, v6
        v_cmp_gt_u32 s[78:79], 8, v3
        s_nop 0
        v_cndmask_b32 v{CB+i}, v2, 0, s[76:77]
        v_cndmask_b32 v{CB+4+i}, v2, 0, s[78:79]
        """
    return [x.strip() for x in L.strip().split("\n") if x.strip()]

def gen_prog(k, p):
    cols = [dict(c) for c in PROGS[p]]
    a = ACC
    for c in cols:
        c['acc'] = {}
        for rt in c['rts']:
            c['acc'][rt] = a; a += 4
    nacc = a
    hasW = p != 'P4'
    ONES = WF
    if p == 'P3':
        k(f"""
        s_cmp_lg_u32 s4, 6
        s_cbranch_scc1 M_P3_nh
        v_and_b32 v2, 7, v0
        v_lshl_add_u32 v2, v3, 3, v2
        v_lshlrev_b32 v2, 4, v2
        v_add_u32 {vW1}, {13*1024}, v2
        """)
        k.label("M_P3_nh")
    if p == 'P4':
        k("s_mov_b32 s18, 0")
    vq = []
    def issue_x(s, sc):
        k(f"""
        s_add_u32 m0, s26, {s*8192}
        s_nop 0
        buffer_load_dwordx4 {vL}, s[12:15], s27 offen{sc} lds
        s_add_u32 s27, s27, 8192
        """)
        vq.append(('x', s))
        if p == 'P4':
            k(f"""
            s_mov_b32 m0, {HALO + s*1024}
            s_nop 0
            buffer_load_dwordx4 {vX2}, s[12:15], s85 offen{sc} lds
            s_add_u32 s85, s85, 8192
            """)
            vq.append(('x', s))
    def issue_w0(ks):
        if not hasW: return
        for c in range(2):
            k(f"buffer_load_dwordx4 {vr(WF + 8*ks + 4*c, 4)}, {vW0 if c == 0 else vW1}, s[16:19], s86 offen")
            vq.append(('w', ks))
        k(f"s_add_u32 s86, s86, 13824")
    def issue_wn(ks):
        if not hasW: return
        for t in wn_load(ks): k(t); vq.append(('wn', ks))
    def vwait(tag):
        idx = -1
        for i, t in enumerate(vq):
            if t == tag: idx = i
        if idx >= 0:
            k(f"s_waitcnt vmcnt({len(vq)-1-idx})")
            del vq[:idx+1]
    def issue_cs():
        if not hasW: return
        k(f"""
        v_lshrrev_b32 v3, 4, v0
        v_and_b32 v2, 15, v0
        s_lshl_b32 s5, s25, 1
        s_add_u32 s5, s5, s29
        """)
        for ci, c in enumerate(cols):
            st = "s30" if ci == 0 else "s31"
            if p == 'P1':
                k(f"s_lshl_b32 s6, s4, 6\ns_add_u32 s6, s6, {0 if ci == 0 else 576*4}\ns_add_u32 s6, s6, s5")
                k(f"v_lshlrev_b32 v6, 4, v3\nbuffer_load_dwordx4 {vr(CSR+4*ci,4)}, v6, s[12:15], s6 offen")
            elif p == 'P2':
                if ci == 0:
                    k(f"""
                    v_lshlrev_b32 v6, 4, v3
                    v_lshrrev_b32 v69, 1, v3
                    v_mul_u32_u24 v69, {576*4 - 32}, v69
                    v_add_u32 v6, v6, v69
                    s_add_u32 s6, s5, 256
                    buffer_load_dwordx4 {vr(CSR,4)}, v6, s[12:15], s6 offen
                    """)
                else:
                    k(f"v_lshlrev_b32 v6, 2, v2\ns_add_u32 s6, s5, {1152*4}\nbuffer_load_dword v{CSR+4}, v6, s[12:15], s6 offen")
            else:
                k(f"s_sub_u32 s6, {st}, 9\ns_lshl_b32 s6, s6, 6\ns_add_u32 s6, s6, {1152*4}\ns_add_u32 s6, s6, s5")
                k(f"v_lshlrev_b32 v6, 2, v2\nbuffer_load_dword v{CSR+4*ci}, v6, s[12:15], s6 offen")
            vq.append(('cs', 0))
    def rdA(ks):
        base = A0 if ks % 2 == 0 else A1
        k(f"ds_read_b128 {vr(base,4)}, {vH} offset:{ks*512}")
        for rt in range(1, 5):
            off = ks*4096 + (rt-1)*256
            if off >= HI: k(f"ds_read_b128 {vr(base+4*rt,4)}, {vAh} offset:{off-HI}")
            else: k(f"ds_read_b128 {vr(base+4*rt,4)}, {vA} offset:{off}")
    def main_loop(first):
        sc = "" if first else XSC
        su = setup_list()
        for r in range(ACC, nacc): k(f"v_mov_b32 v{r}, 0")
        if p == 'P4':
            for i in range(4): k(f"v_mov_b32 v{ONES+i}, 0x3f803f80")
            k("s_setprio 1")
        vwait(('x', 0))
        k("s_barrier")
        stamp(k)
        rdA(0)
        for ks in range(18):
            base = A0 if ks % 2 == 0 else A1
            if ks + 1 < 18:
                if ks in BARS:
                    vwait(('x', BARS[ks]))
                    k("s_barrier")
                rdA(ks + 1)
                k("s_waitcnt lgkmcnt(5)")
            else:
                k("s_waitcnt lgkmcnt(0)")
            if first: vwait(('w', ks))
            for ci, c in enumerate(cols):
                wf = vr(WF + 8*ks + 4*ci, 4)
                for rt in c['rts']:
                    d = vr(c['acc'][rt], 4); x = vr(base+4*rt, 4)
                    if c['kind'] == 'T': k(f"v_mfma_f32_16x16x32_bf16 {d}, {wf}, {x}, {d}")
                    elif c['kind'] == 'N': k(f"v_mfma_f32_16x16x32_bf16 {d}, {x}, {wf}, {d}")
                    elif c['kind'] == 'S': k(f"v_mfma_f32_16x16x32_bf16 {d}, {x}, {x}, {d}")
                    else: k(f"v_mfma_f32_16x16x32_bf16 {d}, {vr(ONES,4)}, {x}, {d}")
                    if ks >= 16:
                        for _ in range(5):
                            if su: k(su.pop(0))
                if ci == 0:
                    if ks % 2 == 0 and ks // 2 + 4 < 9: issue_x(ks // 2 + 4, sc)
                    if first and ks + D0 < 18: issue_w0(ks + D0)
            if ks == 1: issue_cs()
            if first and ks == 3:
                k(f"s_mul_i32 s5, s20, 9216\ns_add_u32 s5, s5, s24")
                for ct in range(3):
                    k(f"buffer_load_dwordx2 {vr(RES+2*ct,2)}, {vBO}, s[12:15], s5 offen\ns_add_u32 s5, s5, 2048")
                    vq.append(('res', 0))
            if not first and LAG <= ks < 16: issue_wn(ks - LAG)
            if hasW and ks < 16:
                n = 0
                if first and ks >= 10: n = 2
                if not first and ks in (1, 3, 5, 7, 9, 11): n = 1
                for _ in range(n):
                    wo_dma(k); vq.append(('wo', 0))
        while su: k(su.pop(0))
        if not first:
            issue_wn(8); issue_wn(9)
    k(f"s_mov_b32 s29, {CS[0]}\ns_mov_b32 s86, s28\ns_add_u32 s28, s96, {PQ[1]}")
    x_setup(k)
    wo_setup(k, "s3")
    for s in range(5):
        k(f"s_setprio {max(3-s,0)}")
        if s < 4: issue_x(s, "")
        issue_w0(2*s); issue_w0(2*s+1)
    main_loop(True)
    vwait(('cs', 0))
    k(f"s_branch M_{p}_epi")
    k.label(f"M_{p}_loop")
    del vq[:]
    for s in range(4):
        k(f"s_setprio {3-s}")
        issue_x(s, XSC)
    main_loop(False)
    vwait(('cs', 0))
    k.label(f"M_{p}_epi")
    k("s_nop 7")
    stamp(k)
    if p == 'P4':
        S = cols[0]; R = cols[1]
        k(f"""
        v_and_b32 v2, 15, v0
        v_lshrrev_b32 v6, 2, v2
        v_cmp_eq_u32 s[68:69], {vT}, v6
        v_and_b32 v6, 3, v0
        v_cmp_eq_u32 s[70:71], 1, v6
        v_cmp_eq_u32 s[72:73], 2, v6
        v_cmp_eq_u32 s[74:75], 3, v6
        s_mov_b32 s58, 0x3ae38e39
        s_mov_b32 s59, 0x3727c5ac
        """)
        ops = [
            lambda rt, s, r: f"v_cndmask_b32 v{8+rt}, v{s}, v{s+1}, s[70:71]",
            lambda rt, s, r: f"v_cndmask_b32 v{8+rt}, v{8+rt}, v{s+2}, s[72:73]",
            lambda rt, s, r: f"v_cndmask_b32 v{8+rt}, v{8+rt}, v{s+3}, s[74:75]",
            lambda rt, s, r: f"v_mul_f32 v{16+rt}, s58, v{r}",
            lambda rt, s, r: f"v_mul_f32 v{8+rt}, s58, v{8+rt}",
            lambda rt, s, r: f"v_fma_f32 v{8+rt}, -v{16+rt}, v{16+rt}, v{8+rt}",
            lambda rt, s, r: f"v_max_f32 v{8+rt}, 0, v{8+rt}",
            lambda rt, s, r: f"v_add_f32 v{8+rt}, s59, v{8+rt}",
            lambda rt, s, r: f"v_rsq_f32 v{8+rt}, v{8+rt}",
            lambda rt, s, r: f"v_mul_f32 v{16+rt}, v{16+rt}, v{8+rt}",
        ]
        for op in ops:
            for rt in range(5): k(op(rt, S['acc'][rt], R['acc'][rt]))
        k("s_mov_b64 exec, s[68:69]")
        for rt in range(5):
            k(f"ds_write2_b32 {eT}, v{8+rt}, v{16+rt} offset0:{16*rt} offset1:{80+16*rt}")
        k("s_mov_b64 exec, -1")
        k("s_setprio 0")
        k("s_waitcnt lgkmcnt(0)")
        k("s_barrier")
        stamp(k)
        k("s_branch M_att")
        return
    k("s_barrier")
    stamp(k)
    loaded = None
    for ci, c in enumerate(cols):
        cs = CSR + 4*ci
        if loaded != c['kind']:
            if c['kind'] == 'T':
                for rt in range(5): k(f"ds_read2_b32 {vr(8+2*rt,2)}, {eT} offset0:{16*rt} offset1:{80+16*rt}")
            else:
                for rt in range(5):
                    k(f"ds_read_b128 {vr(8+8*rt,4)}, {eN} offset:{rt*64}")
                    k(f"ds_read_b128 {vr(8+8*rt+4,4)}, {eN} offset:{320+rt*64}")
            loaded = c['kind']
            if ci == 0 and p == 'P1':
                k(f"""
                s_cmp_gt_u32 s4, 2
                s_cbranch_scc1 M_P1_nowo
                s_lshl_b32 s6, s4, 10
                s_add_u32 m0, s6, {WOL}
                s_add_u32 s7, s6, s89
                buffer_load_dwordx4 {vL}, s[12:15], s7 offen lds
                """)
                k.label("M_P1_nowo")
            k("s_waitcnt lgkmcnt(0)")
        for rt in c['rts']:
            a = c['acc'][rt]
            for h in range(2):
                if c['kind'] == 'T':
                    k(f"v_pk_mul_f32 {vr(a+2*h,2)}, {vr(a+2*h,2)}, {vr(8+2*rt,2)} op_sel_hi:[1,0]")
                else:
                    k(f"v_pk_mul_f32 {vr(a+2*h,2)}, {vr(a+2*h,2)}, {vr(8+8*rt+2*h,2)}")
        for rt in c['rts']:
            a = c['acc'][rt]
            for h in range(2):
                if c['kind'] == 'T':
                    k(f"v_pk_fma_f32 {vr(a+2*h,2)}, {vr(cs+2*h,2)}, {vr(8+2*rt,2)}, {vr(a+2*h,2)} op_sel:[0,1,0] op_sel_hi:[1,1,1] neg_lo:[0,1,0] neg_hi:[0,1,0]")
                else:
                    k(f"v_pk_fma_f32 {vr(a+2*h,2)}, {vr(8+8*rt+4+2*h,2)}, {vr(cs,2)}, {vr(a+2*h,2)} op_sel_hi:[1,0,1] neg_lo:[1,0,0] neg_hi:[1,0,0]")
        for rt in c['rts']:
            a = c['acc'][rt]
            k(f"v_cvt_pk_bf16_f32 v{a}, v{a}, v{a+1}")
            k(f"v_cvt_pk_bf16_f32 v{a+1}, v{a+2}, v{a+3}")
            k(f"ds_write_b64 {eF0 if ci == 0 else eF1}, {vr(a,2)} offset:{FR + rt*512}")
    k("s_branch M_att")

def att_unit(u):
    Q, Kr, V, S, T = ((16, 20, 28, 36, 44), (72, 76, 84, 92, 100))[u]
    M = (60, 50)[u]
    mk = lambda i: f"s[{M+2*i}:{M+2*i+1}]"
    L = []
    L += [f"v_cndmask_b32 v{Q+i}, 0, v{Q+i}, {mk(i)}" for i in range(4)]
    L += ["WAITK"]
    L += [f"v_mfma_f32_16x16x32_bf16 {vr(S,4)}, {vr(Kr,4)}, {vr(Q,4)}, {vr(CB,4)}",
          f"v_mfma_f32_16x16x32_bf16 {vr(S+4,4)}, {vr(Kr+4,4)}, {vr(Q,4)}, {vr(CB+4,4)}", "BG", "s_nop 3"]
    L += [f"v_max_f32 v{S+i}, v{S+i}, v{S+4+i}" for i in range(4)]
    L += [f"v_max3_f32 v{T}, v{S}, v{S+1}, v{S+2}", f"v_max_f32 v{T}, v{T}, v{S+3}",
          f"v_mov_b32 v{T+1}, v{T}", "s_nop 0", f"v_permlane32_swap_b32 v{T}, v{T+1}", f"v_max_f32 v{T}, v{T}, v{T+1}",
          f"v_mov_b32 v{T+1}, v{T}", "s_nop 0", f"v_permlane16_swap_b32 v{T}, v{T+1}", f"v_max_f32 v{T}, v{T}, v{T+1}",
          f"v_mul_f32 v{T}, s58, v{T}"]
    L += [f"v_pk_fma_f32 {vr(S+2*i,2)}, {vr(S+2*i,2)}, s[58:59], {vr(T,2)} op_sel_hi:[1,1,0] neg_lo:[0,0,1] neg_hi:[0,0,1]" for i in range(2)]
    L += [f"v_exp_f32 v{S+i}, v{S+i}" for i in range(4)]
    L += ["BG"]
    L += [f"v_pk_add_f32 {vr(Kr,2)}, {vr(S,2)}, {vr(S+2,2)}", f"v_add_f32 v{T}, v{Kr}, v{Kr+1}",
          f"v_mov_b32 v{T+1}, v{T}", "s_nop 0", f"v_permlane32_swap_b32 v{T}, v{T+1}", f"v_add_f32 v{T}, v{T}, v{T+1}",
          f"v_mov_b32 v{T+1}, v{T}", "s_nop 0", f"v_permlane16_swap_b32 v{T}, v{T+1}", f"v_add_f32 v{T}, v{T}, v{T+1}",
          f"v_rcp_f32 v{T}, v{T}", "BG"]
    L += [f"v_pk_mul_f32 {vr(S+2*i,2)}, {vr(S+2*i,2)}, {vr(T,2)} op_sel_hi:[1,0]" for i in range(2)]
    L += [f"v_cvt_pk_bf16_f32 v{Kr+i}, v{S+2*i}, v{S+2*i+1}" for i in range(2)]
    L += [f"v_cndmask_b32 v{Q}, v{Kr}, 0, s[80:81]", f"v_cndmask_b32 v{Q+1}, v{Kr+1}, 0, s[80:81]",
          f"v_cndmask_b32 v{Q+2}, 0, v{Kr}, s[80:81]", f"v_cndmask_b32 v{Q+3}, 0, v{Kr+1}, s[80:81]"]
    L += ["WAITV"]
    L += [f"v_mfma_f32_16x16x32_bf16 {vr(S,4)}, {vr(V,4)}, {vr(Q,4)}, 0",
          f"v_mfma_f32_16x16x32_bf16 {vr(S+4,4)}, {vr(V+4,4)}, {vr(Q,4)}, 0", "BG", "s_nop 3"]
    L += [f"v_cvt_pk_bf16_f32 v{Kr+i}, v{S+2*i}, v{S+2*i+1}" for i in range(4)]
    W = []
    offs = (0, 4, 2048, 2052)
    for i in range(4):
        W += [f"s_mov_b64 exec, {mk(i)}", f"ds_write_b32 {aO}, v{Kr+i} offset:{offs[i] + 4096*u}"]
    return L, W

def gen_att(k):
    for ks in range(10, 14): k.bg += wn_load(ks)
    k(f"""
    s_mov_b32 s58, 0x3eae1a93
    s_mov_b32 s59, 0x3eae1a93
    s_waitcnt lgkmcnt(0)
    """)
    stamp(k)
    k("s_barrier")
    stamp(k)
    H = 2*2560
    k(f"""
    ds_read_b64 v[16:17], {aQ} offset:{FR + 512}
    ds_read_b64 v[18:19], {aQ} offset:{FR + 2560 + 512}
    ds_read_b64 v[72:73], {aQ} offset:{FR + H + 512}
    ds_read_b64 v[74:75], {aQ} offset:{FR + H + 2560 + 512}
    ds_read_b64 v[20:21], {aQ} offset:{FR + 5*2560}
    ds_read_b64 v[22:23], {aQ} offset:{FR + 6*2560}
    ds_read_b64 v[24:25], {aQ} offset:{FR + 5*2560 + 512}
    ds_read_b64 v[26:27], {aQ} offset:{FR + 6*2560 + 512}
    ds_read_b64 v[76:77], {aQ} offset:{FR + H + 5*2560}
    ds_read_b64 v[78:79], {aK}
    ds_read_b64 v[80:81], {aQ} offset:{FR + H + 5*2560 + 512}
    ds_read_b64 v[82:83], {aK} offset:512
    ds_read_b64 v[28:29], {aQ} offset:{FR + 9*2560}
    ds_read_b64 v[30:31], {aQ} offset:{FR + 9*2560 + 512}
    ds_read_b64 v[32:33], {aQ} offset:{FR + 10*2560}
    ds_read_b64 v[34:35], {aQ} offset:{FR + 10*2560 + 512}
    ds_read_b64 v[84:85], {aQ} offset:{FR + H + 9*2560}
    ds_read_b64 v[86:87], {aQ} offset:{FR + H + 9*2560 + 512}
    ds_read_b64 v[88:89], {aQ} offset:{FR + H + 10*2560}
    ds_read_b64 v[90:91], {aQ} offset:{FR + H + 10*2560 + 512}
    """)
    k.bgp(2)
    k(f"""
    s_lshl_b32 s5, s4, 10
    v_add_u32 v8, s5, {vL}
    s_lshl_b32 s5, s4, 7
    s_add_u32 s5, s5, 8192
    v_add_u32 v9, s5, {vL}
    s_mul_i32 s88, s3, {OBUF[1]-OBUF[0]}
    s_add_u32 s88, s88, {OBUF[0]}
    s_add_u32 s88, s88, s24
    s_mul_i32 s83, s20, 9216
    s_add_u32 s83, s83, s88
    s_lshl_b32 s90, s3, 13
    s_lshl_b32 s5, s21, 7
    s_add_u32 s90, s90, s5
    s_add_u32 s90, s90, {FLG}
    s_mov_b32 s91, s90
    s_waitcnt lgkmcnt(15)
    """)
    L0, W0 = att_unit(0); L1, W1 = att_unit(1)
    for a, b in zip(L0, L1):
        if a == "WAITK":
            if 'f' in EXP: stamp(k)
            k("s_waitcnt lgkmcnt(8)\ns_nop 0"); continue
        if a == "WAITV":
            if 'f' in EXP: stamp(k)
            k("s_waitcnt lgkmcnt(0)\ns_nop 0"); continue
        if a == "BG": k.bgp(2 if len(k.bg) > 2 else 1); continue
        k(a); k(b)
    for t in W0 + W1: k(t)
    k("s_mov_b64 exec, -1")
    k.bgp(12)
    if 'f' in EXP: stamp(k)
    k(f"""
    s_waitcnt lgkmcnt(0)
    s_barrier""")
    if 'f' in EXP: stamp(k)
    k(f"""
    ds_read_b128 v[24:27], v8 offset:{OIMG}
    s_mov_b64 exec, 0xff
    ds_read_b128 v[28:31], v9 offset:{OIMG}
    s_mov_b64 exec, -1
    s_waitcnt lgkmcnt(1)
    buffer_store_dwordx4 v[24:27], v8, s[12:15], s83 offen sc1
    s_mov_b64 exec, 0xff
    s_waitcnt lgkmcnt(0)
    buffer_store_dwordx4 v[28:31], v9, s[12:15], s83 offen sc1
    s_mov_b64 exec, -1
    """)
    for ks in (14, 15):
        for t in wn_load(ks): k(t)
    stamp(k)
    k(f"""
    s_and_b32 s5, s4, 1
    s_lshl_b32 s6, s5, 12
    s_and_b32 s7, s4, 2
    s_lshl_b32 s7, s7, 8
    s_add_u32 s6, s6, s7
    v_add_u32 v108, s6, {vA}
    v_add_u32 v109, {4*8192}, v108
    s_mul_i32 s5, s5, 4608
    s_lshr_b32 s6, s4, 2
    s_mul_i32 s6, s6, 3072
    s_add_u32 s6, s6, s5
    s_add_u32 s6, s6, {WOL}
    v_add_u32 v6, s6, {vL}
    v_add_u32 v110, {4*9216}, v6
    v_lshrrev_b32 v71, 4, v0
    v_and_b32 v69, 7, v0
    v_lshl_add_u32 v69, v71, 3, v69
    v_lshlrev_b32 v69, 4, v69
    s_add_u32 s5, s5, {WOL + 4096}
    v_add_u32 v69, s5, v69
    v_add_u32 v111, {4*9216}, v69
    s_lshl_b32 s5, s4, 10
    s_add_u32 s88, s88, s5
    s_mul_i32 s5, s4, 3072
    s_add_u32 s5, s5, {XI}
    v_add_u32 v56, s5, {vL}
    s_xor_b32 s6, s4, 1
    s_mul_i32 s6, s6, 3072
    s_add_u32 s6, s6, {XI}
    v_add_u32 v71, s6, {vL}
    """)
    for r in range(72, 96): k(f"v_mov_b32 v{r}, 0")
    signal(k, "M_sigA")
    stamp(k)
    guarded0(k, "M_g1", (0, 1, 2))
    poll(k, "M_pollA", False)
    stamp(k)

def gen_Bphase(k):
    def odma(st):
        k(f"""
        s_add_u32 m0, s26, {st*8192}
        s_nop 0
        buffer_load_dwordx4 {vL}, s[12:15], s88 offen{XSC} lds
        s_add_u32 s88, s88, 8192
        """)
    PF = 5
    for st in range(PF):
        k(f"s_setprio {max(3-st,0)}")
        odma(st)
    k(f"""
    s_cmp_ge_u32 s4, 4
    s_cbranch_scc1 M_Bh1
    """)
    OF = [8, 28]; WFb = [16, 36]
    GR = {0: 0, 1: 2, 3: 5, 6: 8}
    for half in range(2):
        k.label(f"M_Bh{half}")
        n = 3 if half == 0 else 2
        def reads(st):
            p = st % 2
            hi = st >= 4; s_ = st - 4 if hi else st
            for r in range(2):
                k(f"ds_read_b128 {vr(OF[p]+4*r,4)}, {'v109' if hi else 'v108'} offset:{8192*s_ + 256*r}")
            for ct in range(n):
                if half == 1 and ct == 1:
                    k(f"ds_read_b128 {vr(WFb[p]+4*ct,4)}, {'v111' if hi else 'v69'} offset:{9216*s_}")
                else:
                    k(f"ds_read_b128 {vr(WFb[p]+4*ct,4)}, {'v110' if hi else 'v6'} offset:{9216*s_ + 1024*ct}")
        def mm(p):
            for ct in range(n):
                for r in range(2):
                    d = vr(72+12*r+4*ct, 4)
                    k(f"v_mfma_f32_16x16x32_bf16 {d}, {vr(WFb[p]+4*ct,4)}, {vr(OF[p]+4*r,4)}, {d}")
        nreads = 2 + n
        issued = PF
        for st in range(9):
            if st in GR:
                k(f"s_waitcnt vmcnt({issued-1-GR[st]})")
                k("s_barrier")
                if st == 0 or 'f' in EXP: stamp(k)
            reads(st)
            for _ in range(2):
                if issued < 9: odma(issued); issued += 1
            if st > 0:
                k(f"s_waitcnt lgkmcnt({nreads})")
                mm((st-1) % 2)
            if st == 6:
                for ks in (16, 17):
                    for t in wn_load(ks): k(t)
                guarded0(k, f"M_g2{half}", (3, 4, 5, 6))
        k("s_waitcnt lgkmcnt(0)")
        mm(0)
        if 'f' in EXP: stamp(k)
        k(f"""
        s_and_b32 s7, s4, 1
        s_cmp_eq_u32 s7, 0
        s_nop 6
        s_cbranch_scc1 M_Bx{half}_k0
        """)
        for kh in (1, 0):
            if kh == 0: k.label(f"M_Bx{half}_k0")
            keep = 72 + 12*kh; send = 72 + 12*(1-kh)
            for ct in range(n):
                k(f"ds_write_b128 v56, {vr(send+4*ct,4)} offset:{1024*ct}")
            k("s_waitcnt lgkmcnt(0)\ns_barrier")
            for ct in range(n):
                k(f"ds_read_b128 {vr(8+4*ct,4)}, v71 offset:{1024*ct}")
            for ct in range(n):
                k(f"s_waitcnt lgkmcnt({n-1-ct})")
                for h in range(2):
                    k(f"v_pk_add_f32 {vr(96+4*ct+2*h,2)}, {vr(keep+4*ct+2*h,2)}, {vr(8+4*ct+2*h,2)}")
            if kh == 1: k(f"s_branch M_Bx{half}_j")
        k.label(f"M_Bx{half}_j")
        stamp(k)
        T = lambda ct, i: 8 + 10*ct + i
        steps = [
            lambda ct, d, x: f"v_cvt_pk_bf16_f32 v{T(ct,8)}, v{d}, v{d+1}",
            lambda ct, d, x: f"v_cvt_pk_bf16_f32 v{T(ct,9)}, v{d+2}, v{d+3}",
            lambda ct, d, x: f"v_lshlrev_b32 v{T(ct,4)}, 16, v{x}",
            lambda ct, d, x: f"v_and_b32 v{T(ct,5)}, 0xffff0000, v{x}",
            lambda ct, d, x: f"v_lshlrev_b32 v{T(ct,6)}, 16, v{x+1}",
            lambda ct, d, x: f"v_and_b32 v{T(ct,7)}, 0xffff0000, v{x+1}",
            lambda ct, d, x: f"v_lshlrev_b32 v{T(ct,0)}, 16, v{T(ct,8)}",
            lambda ct, d, x: f"v_and_b32 v{T(ct,1)}, 0xffff0000, v{T(ct,8)}",
            lambda ct, d, x: f"v_lshlrev_b32 v{T(ct,2)}, 16, v{T(ct,9)}",
            lambda ct, d, x: f"v_and_b32 v{T(ct,3)}, 0xffff0000, v{T(ct,9)}",
            lambda ct, d, x: f"v_pk_add_f32 {vr(T(ct,0),2)}, {vr(T(ct,0),2)}, {vr(T(ct,4),2)}",
            lambda ct, d, x: f"v_pk_add_f32 {vr(T(ct,2),2)}, {vr(T(ct,2),2)}, {vr(T(ct,6),2)}",
            lambda ct, d, x: f"v_cvt_pk_bf16_f32 v{x}, v{T(ct,0)}, v{T(ct,1)}",
            lambda ct, d, x: f"v_cvt_pk_bf16_f32 v{x+1}, v{T(ct,2)}, v{T(ct,3)}",
        ]
        k(f"""
        s_mul_i32 s5, s3, {XSTR}
        s_add_u32 s5, s5, s24
        s_mul_i32 s6, s20, 9216
        s_add_u32 s5, s5, s6
        s_add_u32 s5, s5, {XSTR}
        """)
        for stp in steps:
            for ct in range(n): k(stp(ct, 96 + 4*ct, RES + 2*ct))
        k(f"""
        s_cmp_eq_u32 s3, 3
        s_cbranch_scc1 M_Bf{half}
        """)
        for ct in range(n):
            x = RES + 2*ct
            if half == 1 and ct == 1: k("s_mov_b64 exec, 0xffffffff")
            k(f"buffer_store_dwordx2 {vr(x,2)}, {vBO}, s[12:15], s5 offen sc1\ns_add_u32 s5, s5, 2048")
        k("s_mov_b64 exec, -1\ns_branch M_Bdone")
        k.label(f"M_Bf{half}")
        for ct in range(n):
            x = RES + 2*ct
            if half == 1 and ct == 1: k("s_mov_b64 exec, 0xffffffff")
            k(f"buffer_store_dwordx2 {vr(x,2)}, {vBN}, s[92:95], 0 offen offset:{32*ct}")
        k("s_mov_b64 exec, -1\ns_branch M_fin")
    k.label("M_Bdone")
    stamp(k)
    k("s_add_u32 s91, s90, 4096")
    signal(k, "M_sigB")
    stamp(k)
    guarded0(k, "M_g3", (7, 8, 9))
    k(f"""
    s_add_u32 s3, s3, 1
    s_and_b32 s5, s3, 1
    s_cmp_eq_u32 s5, 0
    s_mov_b32 s29, {CS[1]}
    s_cselect_b32 s29, {CS[0]}, s29
    s_mov_b32 s28, {PQ[0]}
    s_cselect_b32 s28, {PQ[1]}, s28
    s_add_u32 s28, s28, s96
    s_cmp_eq_u32 s3, 3
    s_cselect_b32 s18, 0, s18
    """)
    x_setup(k)
    wo_setup(k, "s3")
    k("s_cmp_eq_u32 s4, 7\ns_cbranch_scc1 M_nowo")
    for i in range(6): wo_dma(k)
    k.label("M_nowo")
    poll(k, "M_pollB", True)
    stamp(k)
    if 'r' in EXP: k("s_add_u32 s84, s3, 1")
    rts(k, "s84", True)
    k(f"""
    s_cmp_eq_u32 s4, 4
    s_cbranch_scc1 M_P2_loop
    s_cmp_eq_u32 s4, 7
    s_cbranch_scc1 M_P4_loop
    s_cmp_gt_u32 s4, 4
    s_cbranch_scc1 M_P3_loop
    s_branch M_P1_loop
    """)
    k.label("M_fin")
    if 'r' in EXP: k("s_waitcnt vmcnt(0)")
    rts(k, 5, True)
    if DBG:
        k(f"""
        s_waitcnt vmcnt(0)
        """)
        stamp(k)
        k(f"""
        s_lshl_b32 s5, s2, 3
        s_add_u32 s5, s5, s4
        s_lshl_b32 s5, s5, 8
        s_add_u32 s5, s5, {DBGO}
        v_lshlrev_b32 v2, 2, v0
        buffer_store_dword v68, v2, s[12:15], s5 offen
        """)

def kd(name, vgpr, sgpr=102):
    acc = (vgpr + 3)//4*4
    return f""".p2align 6
.amdhsa_kernel {name}
  .amdhsa_next_free_vgpr {vgpr}
  .amdhsa_next_free_sgpr {sgpr}
  .amdhsa_accum_offset {acc}
  .amdhsa_group_segment_fixed_size 0
  .amdhsa_kernarg_size 72
  .amdhsa_user_sgpr_count 2
  .amdhsa_user_sgpr_kernarg_segment_ptr 1
  .amdhsa_system_sgpr_workgroup_id_x 1
.end_amdhsa_kernel
"""

def main():
    out = sys.argv[1]
    global DBG
    DBG = len(sys.argv) > 2 and sys.argv[2] == '1'
    hdr = [f"; @launch kernel=p_kernel grid=({NP},1,1) block=(256,1,1) lds=16384",
           f"; @launch kernel=m_kernel grid=(256,1,1) block=(512,1,1) lds={LDSZ}"]
    k = K()
    k.raw('.amdgcn_target "amdgcn-amd-amdhsa--gfx950"\n.text')
    k.raw(f".globl p_kernel\n.p2align 8\n.type p_kernel,@function\np_kernel:")
    gen_P(k)
    k.raw(f".globl m_kernel\n.p2align 8\n.type m_kernel,@function\nm_kernel:")
    gen_M(k)
    k.raw('.section .rodata,"a"')
    k.raw(kd("p_kernel", 96))
    k.raw(kd("m_kernel", 256))
    open(out, "w").write("\n".join(hdr) + "\n" + k.text())
main()
```

```python
import sys, os
EXP = os.environ.get("EXP", "")
NAME = "interleave_layers__sliding_local_dilated__sliding_local_dilated__prompt_kernel"

XB = 2048 * 576 * 2
WQB = 576 * 1728 * 2
WOB = 576 * 576 * 2
XSTR = 0x280000
OBUF = [0xA00000, 0xC80000, 0xF00000, 0x1180000]
PQ = [0x1400000, 0x1600000]
PO = [0x1800000, 0x1A00000]
PCS = [0x1B00000, 0x1B40000]
FLG = 0x1B80000
PF = 0x1B90000
DBGO = 0x1900000
WSZ = 0x2000000
BLK = 73728

class K:
    def __init__(self): self.l = []; self.bg = []
    def bgp(self, n=1):
        for _ in range(n):
            if self.bg: self(self.bg.pop(0))
    def __call__(self, s):
        for x in s.strip().split("\n"):
            x = x.strip()
            if x: self.l.append("    " + x)
    def label(self, n): self.l.append(n + ":")
    def raw(self, s): self.l.append(s)
    def text(self): return "\n".join(self.l) + "\n"

DBG = False
def stamp(k):
    if DBG:
        k("""s_memtime s[98:99]
        s_waitcnt lgkmcnt(0)
        s_mov_b32 m0, s100
        v_writelane_b32 v68, s98, m0
        s_add_u32 s100, s100, 1
        s_min_u32 s100, s100, 63""")
def rts(k, idx):
    if 'r' not in EXP: return
    lab = f"rts_{len(k.l)}"
    k(f"""s_or_b32 s5, s2, s4
    s_cmp_lg_u32 s5, 0
    s_cbranch_scc1 {lab}
    s_memrealtime s[98:99]
    s_waitcnt lgkmcnt(0)
    s_mov_b64 exec, 1
    v_mov_b32 v2, {idx}
    v_lshlrev_b32 v2, 2, v2
    v_mov_b32 v3, s98
    global_store_dword v2, v3, s[46:47]
    s_mov_b64 exec, -1""")
    k.label(lab)
def vr(a, n): return f"v[{a}:{a+n-1}]"

def emit_k_from_rho(k, vk, vrho, vt):
    k(f"""
    v_and_b32 {vk}, 0x78, {vrho}
    v_bfe_u32 {vt}, {vrho}, 1, 2
    v_or_b32 {vk}, {vk}, {vt}
    v_and_b32 {vt}, 1, {vrho}
    v_lshl_or_b32 {vk}, {vt}, 2, {vk}
    """)

CSL = 640
XI = 2048
HALO = XI + BLK
FR = XI
OIMG = 40960
WOL = 80896
NLATE = 4
LDSZ = 163840
XS0 = 9216
RING = XI + 9*XS0
RSL = 14336
PS = RING + 4*RSL
A0, A1, ACC, WF = 8, 28, 72, 112
CSR = 48
vA, vAh, vH = "v1", "v4", "v5"
vX2, vW0, vW1, vBN, vBO, vL = "v57", "v58", "v59", "v66", "v67", "v70"
RES = 60
HI = 9*4096
nA = [144, 145, 146, 147]
nH = [148, 149, 150, 151]
vR = ["v152", "v153"]
vTr = ["v154", "v155"]
ONE0 = 156
vX0, vX0b = "v160", "v161"
HI0 = 40960

def mkcol(kind, rts): return dict(kind=kind, rts=rts)
PROGS = {
    'P1': [mkcol('T', [1,2,3,4]), mkcol('T', [0,1,2,3,4])],
    'P2': [mkcol('T', [0,1,2,3,4]), mkcol('N', [0,1,2,3,4])],
    'P3': [mkcol('N', [0,1,2,3,4]), mkcol('N', [0,1,2,3,4])],
    'P4': [mkcol('S', [0,1,2,3,4]), mkcol('R', [0,1,2,3,4])],
}
XSC = " sc1"

def woff27(k, vdst, s_p0, s_add):
    k(f"""
    v_add_u32 v2, {s_p0}, v0
    v_cmp_gt_u32 vcc, 864, v2
    v_mul_u32_u24 v3, 2428, v2
    v_lshrrev_b32 v3, 16, v3
    v_mul_u32_u24 v6, 27, v3
    v_sub_u32 v2, v2, v6
    v_mul_u32_u24 v6, 57, v2
    v_lshrrev_b32 v6, 9, v6
    v_mul_u32_u24 v8, 9, v6
    v_sub_u32 v2, v2, v8
    """)
    emit_k_from_rho(k, "v8", "v3", "v9")
    k(f"""
    v_mul_u32_u24 v8, 3456, v8
    v_mul_u32_u24 v6, 1152, v6
    v_add3_u32 v8, v8, v6, {s_add}
    v_lshl_add_u32 v8, v2, 4, v8
    v_bfrev_b32 v9, 1
    v_cndmask_b32 {vdst}, v9, v8, vcc
    """)
def woff9(k, vdst, s_p0, s_add):
    k(f"""
    v_add_u32 v2, {s_p0}, v0
    v_cmp_gt_u32 vcc, 864, v2
    v_mul_u32_u24 v3, 7282, v2
    v_lshrrev_b32 v3, 16, v3
    v_mul_u32_u24 v6, 9, v3
    v_sub_u32 v2, v2, v6
    """)
    emit_k_from_rho(k, "v8", "v3", "v9")
    k(f"""
    v_mul_u32_u24 v8, 1152, v8
    v_add_u32 v8, {s_add}, v8
    v_lshl_add_u32 v8, v2, 4, v8
    v_bfrev_b32 v9, 1
    v_cndmask_b32 {vdst}, v9, v8, vcc
    """)
def xoff0(k, vdst, s_r0):
    k(f"""
    v_lshrrev_b32 v2, 3, v0
    v_add_u32 v2, {s_r0}, v2
    v_bfe_u32 v3, v2, 1, 3
    v_and_b32 v6, 7, v0
    v_xor_b32 v6, v6, v3
    s_lshl_b32 s7, s23, 6
    s_sub_u32 s7, s7, 16
    v_add_u32 v2, s7, v2
    v_lshlrev_b32 v3, 1, v2
    v_add_u32 v3, s22, v3
    v_mul_u32_u24 v3, 1152, v3
    v_lshl_add_u32 {vdst}, v6, 4, v3
    v_bfrev_b32 v3, 1
    v_cmp_gt_i32 vcc, 0, v2
    s_nop 1
    v_cndmask_b32 {vdst}, {vdst}, v3, vcc
    """)

def x0_dma(k, s, w7):
    k(f"""
    s_add_u32 m0, s26, {s*XS0}
    s_nop 0
    buffer_load_dwordx4 {vX0}, s[72:75], s27 offen lds
    """)
    if w7:
        k(f"""
        s_mov_b32 m0, {XI + s*XS0 + 8192}
        s_nop 0
        buffer_load_dwordx4 {vX0b}, s[72:75], s27 offen lds
        """)
    k("s_add_u32 s27, s27, 128")
def ring_dma(k, ks, which=(0, 1)):
    for i in which:
        k(f"""
        s_add_u32 m0, s84, {(ks % 4)*RSL + 1024*i}
        s_nop 0
        buffer_load_dwordx4 {vR[i]}, s[8:11], s86 offen lds
        """)
        if i == 1: k(f"s_add_u32 s86, s86, {32*3456}")

def gen_M(k):
    k(f"""
    s_cmp_ge_u32 s2, 256
    s_cbranch_scc1 M_exit
    s_load_dwordx16 s[32:47], s[0:1], 0
    s_load_dwordx2 s[48:49], s[0:1], 64
    v_lshrrev_b32 v1, 6, v0
    v_and_b32 v0, 63, v0
    v_readfirstlane_b32 s4, v1
    s_and_b32 s5, s2, 7
    s_lshr_b32 s6, s2, 3
    s_and_b32 s7, s5, 1
    s_lshl_b32 s7, s7, 2
    s_and_b32 s20, s6, 3
    s_add_u32 s20, s20, s7
    s_lshr_b32 s7, s5, 1
    s_lshl_b32 s7, s7, 3
    s_lshr_b32 s21, s6, 2
    s_add_u32 s21, s21, s7
    s_lshr_b32 s22, s21, 4
    s_and_b32 s23, s21, 15
    s_mul_i32 s24, s21, {BLK}
    s_mul_i32 s25, s20, 144
    s_mov_b32 s3, 0
    s_mov_b32 s100, 0
    s_mov_b32 s101, 0
    v_mov_b32 v68, 0
    v_lshlrev_b32 {vL}, 4, v0
    s_lshl_b32 s26, s4, 10
    s_add_u32 s26, s26, {XI}
    s_lshl_b32 s84, s4, 11
    s_add_u32 s84, s84, {RING}
    """)
    k(f"""
    s_lshl_b32 s5, s4, 3
    s_add_u32 s5, s5, 8
    """)
    xoff0(k, vX0, "s5")
    k("s_mov_b32 s5, 72")
    xoff0(k, vX0b, "s5")
    k("s_lshl_b32 s5, s4, 7")
    woff27(k, vR[0], "s5", "s25")
    k("s_lshl_b32 s5, s4, 7\ns_add_u32 s5, s5, 64")
    woff27(k, vR[1], "s5", "s25")
    k(f"""
    s_waitcnt lgkmcnt(0)
    s_mov_b32 s8, s34
    s_mov_b32 s9, s35
    s_mov_b32 s10, {WQB}
    s_mov_b32 s11, 0x20000
    s_mov_b32 s72, s32
    s_mov_b32 s73, s33
    s_mov_b32 s74, {XB}
    s_mov_b32 s75, 0x20000
    s_mov_b32 s27, 0
    s_mov_b32 s86, 0
    s_setprio 3
    """)
    stamp(k)
    k(f"""
    s_cmp_eq_u32 s4, 7
    s_cbranch_scc1 M_pro7
    """)
    for it in ("x0", "r0", "x1", "r1", "r2", "r3", "x2", "x3"):
        if it == "x1": k("s_setprio 2")
        if it == "r2": k("s_setprio 1")
        if it == "x2": k("s_setprio 0")
        if it[0] == 'x': x0_dma(k, int(it[1]), False)
        else: ring_dma(k, int(it[1]))
    k("s_branch M_pro_j")
    k.label("M_pro7")
    for s in range(4): x0_dma(k, s, True)
    k("s_setprio 0")
    k.label("M_pro_j")
    if 'g' in EXP: stamp(k)
    k(f"""
    s_mov_b32 s12, s48
    s_mov_b32 s13, s49
    s_mov_b32 s14, {WSZ}
    s_mov_b32 s15, 0x20000
    s_mov_b32 s16, s48
    s_mov_b32 s17, s49
    s_mov_b32 s18, {WSZ}
    s_mov_b32 s19, 0x20000
    s_mov_b32 s92, s44
    s_mov_b32 s93, s45
    s_mov_b32 s94, {XB}
    s_mov_b32 s95, 0x20000
    s_mul_i32 s96, s20, {18*13824}
    s_add_u32 s28, s96, {PQ[1]}
    """)
    k(f"""
    s_lshl_b32 s5, s21, 3
    s_add_u32 s5, s5, s20
    s_mov_b32 s85, 2
    s_lshl_b32 s91, s4, 7
    s_cmp_ge_u32 s5, 240
    s_cbranch_scc1 M_pk_none
    s_cmp_ge_u32 s5, 144
    s_cbranch_scc1 M_pk_wo
    s_mov_b32 s85, 0
    s_mul_i32 s6, s5, 3641
    s_lshr_b32 s6, s6, 16
    s_mul_i32 s7, s6, 18
    s_sub_u32 s7, s5, s7
    s_mul_i32 s88, s5, 13824
    s_add_u32 s88, s88, {PQ[1]}
    s_mul_i32 s89, s7, {32*3456}
    s_mul_i32 s87, s6, 144
    s_lshl_b32 s90, s7, 13
    s_lshl_b32 s97, s87, 1
    s_add_u32 s90, s90, s97
    s_add_u32 s90, s90, {PCS[1]}
    s_lshl_b32 s97, s6, 7
    s_lshl_b32 s29, s7, 2
    s_add_u32 s29, s29, s97
    s_add_u32 s29, s29, {PF}
    """)
    k(f"""
    s_mov_b32 s76, s40
    s_mov_b32 s77, s41
    s_mov_b32 s78, {WQB}
    s_mov_b32 s79, 0x20000
    s_cmp_lg_u32 s4, 7
    s_cbranch_scc1 M_pk_go
    s_mov_b32 s91, 0
    """)
    k.label("M_pk_l27")
    woff27(k, "v192", "s91", "s87")
    k(f"""
    s_lshl_b32 s5, s91, 4
    s_add_u32 m0, s5, {PS}
    s_add_u32 s91, s91, 64
    buffer_load_dwordx4 v192, s[76:79], s89 offen lds
    s_cmp_lt_u32 s91, 864
    s_cbranch_scc1 M_pk_l27
    s_branch M_pk_go
    """)
    k.label("M_pk_wo")
    k(f"""
    s_mov_b32 s85, 1
    s_sub_u32 s5, s5, 144
    s_cmp_ge_u32 s5, 48
    s_cselect_b32 s6, 48, 0
    s_mov_b32 s88, {PO[0]}
    s_cselect_b32 s88, {PO[1]}, s88
    s_cselect_b32 s29, 24, 0
    s_cselect_b64 s[76:77], s[42:43], s[36:37]
    s_mov_b32 s90, 0
    s_sub_u32 s5, s5, s6
    s_mul_i32 s6, s5, 43
    s_lshr_b32 s6, s6, 8
    s_mul_i32 s7, s6, 6
    s_sub_u32 s7, s5, s7
    s_mul_i32 s97, s5, 13824
    s_add_u32 s88, s88, s97
    s_mul_i32 s89, s7, {96*1152}
    s_mul_i32 s87, s6, 144
    s_lshl_b32 s97, s6, 7
    s_add_u32 s29, s29, s97
    s_lshl_b32 s97, s7, 2
    s_add_u32 s29, s29, s97
    s_add_u32 s29, s29, {PF + 72}
    """)
    k(f"""
    s_mov_b32 s78, {WOB}
    s_mov_b32 s79, 0x20000
    s_cmp_lg_u32 s4, 7
    s_cbranch_scc1 M_pk_go
    s_mov_b32 s91, 0
    """)
    k.label("M_pk_l9")
    woff9(k, "v192", "s91", "s87")
    k(f"""
    s_lshl_b32 s5, s91, 4
    s_add_u32 m0, s5, {PS}
    s_add_u32 s91, s91, 64
    buffer_load_dwordx4 v192, s[76:79], s89 offen lds
    s_cmp_lt_u32 s91, 864
    s_cbranch_scc1 M_pk_l9
    s_branch M_pk_go
    """)
    k.label("M_pk_none")
    k(f"""
    s_mov_b32 s76, s36
    s_mov_b32 s77, s37
    s_mov_b32 s78, 0
    s_mov_b32 s89, 0
    s_mov_b32 s88, 0
    s_mov_b32 s29, 0
    s_mov_b32 s90, 0
    s_mov_b32 s87, 0
    s_mov_b32 s79, 0x20000
    s_mov_b32 s91, 0
    s_cmp_eq_u32 s4, 7
    s_cbranch_scc1 M_pk_l9
    """)
    k.label("M_pk_go")
    k(f"""
    s_mov_b32 s79, 0x20000
    s_add_u32 s31, s4, 5
    s_mov_b32 s30, s4
    s_cmp_lt_u32 s4, 5
    s_cbranch_scc1 M_tiles_ok
    s_lshl_b32 s30, s4, 1
    s_add_u32 s31, s30, 1
    """)
    k.label("M_tiles_ok")
    k(f"""
    s_lshl_b32 s5, s30, 10
    v_add_u32 {vW0}, s5, {vL}
    s_lshl_b32 s5, s31, 10
    v_add_u32 {vW1}, s5, {vL}
    v_and_b32 v2, 15, v0
    v_lshrrev_b32 v3, 4, v0
    v_lshlrev_b32 v6, 4, v2
    v_lshl_add_u32 {vA}, v3, 10, v6
    v_add_u32 {vA}, {XI}, {vA}
    v_add_u32 {vAh}, {HI}, {vA}
    v_and_b32 v8, 0x70, v6
    v_lshl_add_u32 {vH}, v3, 7, v8
    v_add_u32 {vH}, {HALO}, {vH}
    v_lshrrev_b32 v8, 3, v0
    v_and_b32 v9, 7, v0
    v_lshlrev_b32 v9, 4, v9
    v_lshl_add_u32 v8, v8, 10, v9
    v_add_u32 v8, 896, v8
    v_bfrev_b32 v9, 1
    s_cmp_eq_u32 s23, 0
    s_cselect_b64 vcc, -1, 0
    s_and_b32 s6, s4, 3
    s_lshl_b32 s6, s6, 4
    v_cndmask_b32 {vX2}, v8, v9, vcc
    v_add_u32 v8, s6, v2
    v_lshrrev_b32 v9, 1, v3
    v_lshlrev_b32 v9, 10, v9
    v_lshl_add_u32 v9, v8, 4, v9
    v_and_b32 v10, 1, v3
    v_lshl_add_u32 v9, v10, 3, v9
    s_lshr_b32 s7, s4, 2
    s_mul_i32 s5, s7, 6144
    v_add_u32 {vBO}, s5, v9
    s_lshl_b32 s5, s23, 6
    v_add_u32 v8, s5, v8
    v_lshlrev_b32 v8, 1, v8
    v_add_u32 v8, s22, v8
    v_mul_u32_u24 v8, 1152, v8
    v_lshl_add_u32 v8, v3, 3, v8
    s_mul_i32 s7, s7, 96
    s_add_u32 s7, s7, s25
    v_add_u32 {vBN}, s7, v8
    v_and_b32 v8, 7, v0
    v_lshl_add_u32 v197, v3, 3, v8
    v_lshlrev_b32 v197, 4, v197
    v_and_b32 v9, 8, v0
    v_cmp_eq_u32 s[50:51], 0, v9
    s_mov_b64 s[82:83], -1
    s_cmp_lg_u32 s4, 6
    s_cbranch_scc1 M_nh
    v_add_u32 {vW1}, {13*1024}, v197
    s_mov_b64 s[82:83], s[50:51]
    """)
    k.label("M_nh")
    k(f"""
    v_bfe_u32 v9, v0, 1, 3
    v_xor_b32 v9, v9, v3
    v_lshlrev_b32 v9, 4, v9
    v_lshl_add_u32 v9, v2, 7, v9
    v_add_u32 v{nA[0]}, {XI + 1024}, v9
    v_xor_b32 v{nA[1]}, 64, v{nA[0]}
    v_add_u32 v{nA[2]}, {HI0}, v{nA[0]}
    v_add_u32 v{nA[3]}, {HI0}, v{nA[1]}
    v_bfe_u32 v9, v0, 1, 2
    v_or_b32 v9, 4, v9
    v_xor_b32 v9, v9, v3
    v_lshlrev_b32 v9, 4, v9
    v_lshl_add_u32 v9, v8, 7, v9
    v_add_u32 v{nH[0]}, {XI}, v9
    v_xor_b32 v{nH[1]}, 64, v{nH[0]}
    v_add_u32 v{nH[2]}, {HI0}, v{nH[0]}
    v_add_u32 v{nH[3]}, {HI0}, v{nH[1]}
    v_bfe_u32 v9, v0, 2, 2
    v_lshlrev_b32 v9, 1, v9
    v_lshl_add_u32 v194, v3, 3, v9
    v_and_b32 v195, 3, v0
    v_lshlrev_b32 v195, 3, v195
    v_mul_u32_u24 v196, 432, v194
    v_add_u32 v196, v196, v195
    v_bfe_u32 v9, v0, 1, 1
    v_lshlrev_b32 v9, 7, v9
    v_add_u32 v9, 128, v9
    v_add_u32 v198, v196, v9
    s_lshl_b32 s5, s30, 5
    s_add_u32 s5, s5, {RING}
    v_add_u32 {vTr[0]}, s5, v196
    s_lshl_b32 s5, s31, 5
    s_cmp_lt_u32 s4, 4
    s_cselect_b32 s6, 16, 0
    s_sub_u32 s5, s5, s6
    s_add_u32 s5, s5, {RING}
    v_add_u32 {vTr[1]}, s5, v196
    s_cmp_lg_u32 s4, 4
    s_cbranch_scc1 M_nt4
    v_add_u32 {vTr[0]}, {RING}, v198
    """)
    k.label("M_nt4")
    for i in range(4): k(f"v_mov_b32 v{ONE0+i}, 0x3f803f80")
    k(f"""
    s_cmp_eq_u32 s4, 4
    s_cbranch_scc1 M_P2
    s_cmp_eq_u32 s4, 7
    s_cbranch_scc1 M_P4
    s_cmp_gt_u32 s4, 4
    s_cbranch_scc1 M_P3
    s_branch M_P1
    """)
    k.label("M_pack")
    k(f"""
    s_cmp_eq_u32 s85, 2
    s_cbranch_scc1 M_pk_done
    s_cmp_eq_u32 s85, 1
    s_cbranch_scc1 M_pk_pwo
    s_lshl_b32 s5, s4, 5
    s_cmp_gt_u32 s4, 4
    s_cselect_b32 s6, 16, 0
    s_sub_u32 s5, s5, s6
    s_add_u32 s5, s5, {PS}
    v_add_u32 v199, s5, v196
    v_add_u32 v200, {PS}, v198
    s_cmp_eq_u32 s4, 4
    s_cselect_b64 vcc, -1, 0
    s_lshl_b32 s5, s4, 5
    s_add_u32 s5, s5, {PS + 256}
    v_cndmask_b32 v199, v199, v200, vcc
    s_cmp_eq_u32 s4, 0
    s_cselect_b32 s6, 16, 0
    s_sub_u32 s5, s5, s6
    v_add_u32 v200, s5, v196
    ds_read_b64_tr_b16 v[204:205], v199
    ds_read_b64_tr_b16 v[206:207], v199 offset:432
    ds_read_b64_tr_b16 v[208:209], v200
    ds_read_b64_tr_b16 v[210:211], v200 offset:432
    v_and_b32 v220, 15, v0
    v_lshlrev_b32 v201, 2, v220
    s_lshl_b32 s5, s4, 6
    s_cmp_gt_u32 s4, 4
    s_cselect_b32 s6, {2304-320}, 0
    s_add_u32 s5, s5, s6
    v_add_u32 v202, s5, v201
    v_lshrrev_b32 v203, 3, v220
    v_mul_u32_u24 v203, {2304-32}, v203
    v_add_u32 v203, v202, v203
    v_cndmask_b32 v202, v202, v203, vcc
    s_lshl_b32 s5, s4, 6
    s_cmp_eq_u32 s4, 0
    s_movk_i32 s6, {4608-64}
    s_cselect_b32 s6, {2304+192}, s6
    s_add_u32 s5, s5, s6
    v_add_u32 v203, s5, v201
    s_lshl_b32 s5, s4, 10
    s_add_u32 s5, s5, s88
    s_waitcnt lgkmcnt(0)
    buffer_store_dwordx4 v[204:207], {vL}, s[12:15], s5 offen sc1
    v_mfma_f32_16x16x32_bf16 v[212:215], {vr(ONE0,4)}, v[204:207], 0
    s_add_u32 s5, s5, 8192
    v_mfma_f32_16x16x32_bf16 v[216:219], {vr(ONE0,4)}, v[208:211], 0
    s_cmp_gt_u32 s4, 5
    s_cbranch_scc1 M_pk_q1
    s_cmp_eq_u32 s4, 5
    s_cbranch_scc1 M_pk_q13
    buffer_store_dwordx4 v[208:211], {vL}, s[12:15], s5 offen sc1
    s_nop 7
    s_mov_b64 exec, 0xffff
    buffer_store_dword v216, v203, s[12:15], s90 offen sc1
    s_branch M_pk_q1
    """)
    k.label("M_pk_q13")
    k(f"""
    s_mov_b64 exec, s[50:51]
    buffer_store_dwordx4 v[208:211], v197, s[12:15], s5 offen sc1
    s_nop 7
    s_mov_b64 exec, 0xff
    buffer_store_dword v216, v203, s[12:15], s90 offen sc1
    """)
    k.label("M_pk_q1")
    k(f"""
    s_nop 7
    s_mov_b64 exec, 0xffff
    buffer_store_dword v212, v202, s[12:15], s90 offen sc1
    s_mov_b64 exec, -1
    s_branch M_pk_done
    """)
    k.label("M_pk_pwo")
    k(f"""
    v_mul_u32_u24 v199, 144, v194
    v_add_u32 v199, v199, v195
    """)
    for i in range(2):
        k(f"""
        s_add_u32 s5, s4, {8*i}
        s_mul_i32 s6, s5, 52
        s_lshr_b32 s6, s6, 8
        s_mul_i32 s7, s6, 5
        s_sub_u32 s7, s5, s7
        s_mul_i32 s60, s6, 4608
        s_lshl_b32 s61, s7, 5
        s_add_u32 s61, s61, s60
        s_add_u32 s61, s61, {PS}
        v_add_u32 v200, s61, v199
        ds_read_b64_tr_b16 {vr(204+4*i,2)}, v200
        ds_read_b64_tr_b16 {vr(206+4*i,2)}, v200 offset:144
        s_lshl_b32 s61, s7, 10
        s_add_u32 s61, s61, s60
        s_add_u32 s61, s61, s88
        s_waitcnt lgkmcnt(0)
        s_cmp_eq_u32 s5, 15
        s_cbranch_scc1 M_pk_wo_s{i}
        s_cmp_eq_u32 s7, 4
        s_cbranch_scc1 M_pk_wo_h{i}
        buffer_store_dwordx4 {vr(204+4*i,4)}, {vL}, s[12:15], s61 offen sc1
        s_branch M_pk_wo_s{i}
        """)
        k.label(f"M_pk_wo_h{i}")
        k(f"""
        s_mov_b64 exec, s[50:51]
        buffer_store_dwordx4 {vr(204+4*i,4)}, v197, s[12:15], s61 offen sc1
        s_mov_b64 exec, -1
        """)
        k.label(f"M_pk_wo_s{i}")
    k.label("M_pk_done")
    k("s_setpc_b64 s[58:59]")
    for p in ['P1', 'P2', 'P3', 'P4']:
        k.label(f"M_{p}")
        gen_prog(k, p)
    k.label("M_att")
    gen_att(k)
    gen_Bphase(k)
    k.label("M_exit")
    k("s_endpgm")

def poll_core(k, name):
    k(f"""
    s_mov_b32 s5, 0x20000
    buffer_load_dword v8, v2, s[12:15], s91 offen sc1
    s_sleep 2
    buffer_load_dword v9, v2, s[12:15], s91 offen sc1
    s_sleep 2
    """)
    k.label(f"{name}_loop")
    for r in (10, 8, 9):
        chk = {10: 8, 8: 9, 9: 10}[r]
        k(f"""
        buffer_load_dword v{r}, v2, s[12:15], s91 offen sc1
        s_waitcnt vmcnt(2)
        v_cmp_eq_u32 vcc, s101, v{chk}
        s_nop 1
        s_cmp_eq_u64 vcc, exec
        s_cbranch_scc1 {name}_ok
        """)
    k(f"""
    s_sub_u32 s5, s5, 1
    s_cmp_lg_u32 s5, 0
    s_cbranch_scc1 {name}_loop
    """)
    k.label(f"{name}_ok")
    k("s_mov_b64 exec, -1")

def poll_simple(k, name, vtmp):
    k("s_mov_b32 s5, 0x40000")
    k.label(f"{name}_loop")
    k(f"""
    buffer_load_dword {vtmp}, v2, s[12:15], s91 offen sc1
    s_waitcnt vmcnt(0)
    v_cmp_eq_u32 vcc, s101, {vtmp}
    s_nop 1
    s_cmp_eq_u64 vcc, exec
    s_cbranch_scc1 {name}_ok
    s_sleep 2
    s_sub_u32 s5, s5, 1
    s_cmp_lg_u32 s5, 0
    s_cbranch_scc1 {name}_loop
    """)
    k.label(f"{name}_ok")
    k("s_mov_b64 exec, -1")

def poll(k, name, two):
    k(f"""
    s_cmp_lg_u32 s4, 7
    s_cbranch_scc1 {name}_done
    v_and_b32 v2, 7, v0
    v_lshlrev_b32 v2, 2, v2
    """)
    if two:
        k(f"""
        s_cmp_eq_u32 s23, 0
        s_cselect_b32 s5, 128, 0
        v_and_b32 v3, 8, v0
        v_lshlrev_b32 v3, 4, v3
        v_max_u32 v3, s5, v3
        v_add_u32 v2, v2, v3
        s_sub_u32 s91, s91, 128
        s_mov_b64 exec, 0xffff
        """)
    else:
        k("s_mov_b64 exec, 0xff")
    poll_core(k, name)
    k.label(f"{name}_done")
    k("s_barrier")

def flag_store(k, soff, voff_expr):
    k(f"""
    s_mov_b64 exec, 1
    v_mov_b32 v2, {voff_expr}
    v_mov_b32 v3, s101
    buffer_store_dword v3, v2, s[12:15], {soff} offen sc1
    s_mov_b64 exec, -1
    """)

def signal(k, name, extra=None):
    k(f"""
    s_waitcnt vmcnt(0)
    s_barrier
    s_cmp_lg_u32 s4, 7
    s_cbranch_scc1 {name}_ns
    s_lshl_b32 s5, s20, 2
    """)
    flag_store(k, "s91", "s5")
    if extra: extra()
    k.label(f"{name}_ns")

def wo_dma(k):
    k(f"""
    s_min_u32 s6, s87, {80*1024}
    s_add_u32 m0, s6, {WOL}
    s_add_u32 s7, s6, s89
    buffer_load_dwordx4 {vL}, s[12:15], s7 offen lds
    s_add_u32 s87, s87, 7168
    """)
def wo_setup(k):
    k(f"""
    s_and_b32 s5, s3, 1
    s_cmp_eq_u32 s5, 0
    s_mov_b32 s89, {PO[1]}
    s_cselect_b32 s89, {PO[0]}, s89
    s_mul_i32 s5, s20, {18*4608}
    s_add_u32 s89, s89, s5
    s_lshl_b32 s87, s4, 10
    s_add_u32 s87, s87, {NLATE*1024}
    """)
def x_setup(k):
    k(f"""
    s_mul_i32 s27, s3, {XSTR}
    s_add_u32 s27, s27, s24
    s_sub_u32 s85, s27, {BLK}
    s_lshl_b32 s5, s4, 10
    s_add_u32 s27, s27, s5
    """)
def wn_load(ks):
    return [f"s_add_u32 s84, s28, {ks*13824}\nbuffer_load_dwordx4 {vr(WF + 8*ks, 4)}, {vW0}, s[16:19], s84 offen",
            f"buffer_load_dwordx4 {vr(WF + 8*ks + 4, 4)}, {vW1}, s[16:19], s84 offen"]
def guarded0(k, name, kss, nwo=0):
    k(f"s_cmp_lg_u32 s3, 0\ns_cbranch_scc1 {name}\ns_cmp_eq_u32 s4, 7\ns_cbranch_scc1 {name}")
    for _ in range(nwo): wo_dma(k)
    for ks in kss:
        for t in wn_load(ks): k(t)
    k.label(name)

LAG = 8
BARS = {1: 2, 5: 4, 9: 6, 13: 8}
eT, eN, eF0, eF1, aQ, aK, aO, vT = "v224", "v225", "v226", "v227", "v228", "v229", "v230", "v231"
CB = 232

def setup_list():
    L = f"""
    v_and_b32 v2, 15, v0
    v_lshrrev_b32 {vT}, 4, v0
    v_lshlrev_b32 {eT}, 2, v2
    v_lshlrev_b32 {eN}, 4, {vT}
    v_lshlrev_b32 v6, 3, v0
    s_mul_i32 s5, s30, 2560
    v_add_u32 {eF0}, s5, v6
    s_mul_i32 s5, s31, 2560
    v_add_u32 {eF1}, s5, v6
    s_and_b32 s97, s4, 3
    s_lshr_b32 s6, s4, 2
    s_lshl_b32 s5, s97, 9
    s_mul_i32 s7, s6, 2560
    s_add_u32 s7, s7, s5
    v_add_u32 {aQ}, s7, v6
    v_add_u32 v6, 256, v6
    v_and_b32 v6, 0x1ff, v6
    s_add_u32 s5, s5, {FR + 4*2560}
    v_add_u32 v6, s5, v6
    v_add_u32 {aK}, {FR + 8*2560}, {aQ}
    s_cmp_eq_u32 s6, 1
    s_cselect_b64 vcc, -1, 0
    s_lshl_b32 s5, s97, 4
    v_add_u32 v3, s5, v2
    v_cndmask_b32 {aK}, {aK}, v6, vcc
    v_lshlrev_b32 v3, 4, v3
    v_lshrrev_b32 v6, 1, {vT}
    v_lshl_add_u32 v3, v6, 10, v3
    v_and_b32 v6, 1, {vT}
    v_lshl_add_u32 v3, v6, 3, v3
    s_lshl_b32 s7, s6, 11
    s_add_u32 s7, s7, {OIMG}
    v_add_u32 {aO}, s7, v3
    v_lshlrev_b32 v3, 2, {vT}
    v_add_u32 v6, 2, v3
    s_lshl_b32 s76, s6, 1
    s_add_u32 s77, s76, 2
    s_add_u32 s78, s76, 4
    s_add_u32 s79, s76, 6
    v_cmp_le_u32 s[60:61], s76, v3
    v_cmp_le_u32 s[62:63], s76, v6
    v_cmp_gt_u32 s[64:65], s77, v3
    v_cmp_gt_u32 s[66:67], s77, v6
    v_cmp_le_u32 s[50:51], s78, v3
    v_cmp_le_u32 s[52:53], s78, v6
    v_cmp_gt_u32 s[54:55], s79, v3
    v_cmp_gt_u32 s[56:57], s79, v6
    v_cmp_le_u32 s[80:81], v3, v2
    v_sub_u32 v6, v2, v3
    v_mov_b32 v2, 0xf149f2ca
    s_or_b32 s5, s97, s23
    s_cmp_lg_u32 s5, 0
    s_cselect_b32 s5, 8, 0
    """
    for i in range(4):
        L += f"""
        v_add_u32 v3, {16-i}, v6
        v_cmp_gt_u32 s[76:77], s5, v3
        v_subrev_u32 v3, {i}, v6
        v_cmp_gt_u32 s[78:79], 8, v3
        s_nop 0
        v_cndmask_b32 v{CB+i}, v2, 0, s[76:77]
        v_cndmask_b32 v{CB+4+i}, v2, 0, s[78:79]
        """
    return [x.strip() for x in L.strip().split("\n") if x.strip()]

def cs_lds_addr(k, p):
    k(f"""
    v_lshrrev_b32 v3, 4, v0
    v_and_b32 v2, 15, v0
    """)
    if p == 'P1':
        k(f"""
        s_lshl_b32 s5, s4, 6
        s_add_u32 s5, s5, {CSL}
        v_lshlrev_b32 v6, 4, v3
        v_add_u32 v69, s5, v6
        v_add_u32 v71, 288, v69
        """)
    elif p == 'P2':
        k(f"""
        v_lshlrev_b32 v6, 4, v3
        v_lshrrev_b32 v69, 1, v3
        v_lshlrev_b32 v69, 8, v69
        v_add3_u32 v69, v69, v6, 0
        v_add_u32 v69, {CSL + 256}, v69
        v_lshlrev_b32 v71, 2, v2
        v_add_u32 v71, {CSL + 576}, v71
        """)
    else:
        k(f"""
        s_lshl_b32 s5, s30, 6
        s_add_u32 s5, s5, {CSL}
        v_lshlrev_b32 v6, 2, v2
        v_add_u32 v69, s5, v6
        v_add_u32 v71, 64, v69
        """)

def gen_prog(k, p):
    cols = [dict(c) for c in PROGS[p]]
    a = ACC
    for c in cols:
        c['acc'] = {}
        for rt in c['rts']:
            c['acc'][rt] = a; a += 4
    nacc = a
    hasW = p != 'P4'
    ONES = WF
    vq = []
    def vwait(tag, extra=""):
        idx = -1
        for i, t in enumerate(vq):
            if t == tag: idx = i
        if idx >= 0:
            k(f"s_waitcnt vmcnt({len(vq)-1-idx}){extra}")
            del vq[:idx+1]
        elif extra: k(f"s_waitcnt{extra}")
    def mfma(c, ci, rt, wf, x, ones):
        d = vr(c['acc'][rt], 4)
        if c['kind'] == 'T': k(f"v_mfma_f32_16x16x32_bf16 {d}, {wf}, {x}, {d}")
        elif c['kind'] == 'N': k(f"v_mfma_f32_16x16x32_bf16 {d}, {x}, {wf}, {d}")
        elif c['kind'] == 'S': k(f"v_mfma_f32_16x16x32_bf16 {d}, {x}, {x}, {d}")
        else: k(f"v_mfma_f32_16x16x32_bf16 {d}, {ones}, {x}, {d}")
    if hasW: vq += [('x',0),('r',0),('r',0),('x',1),('r',1),('r',1),('r',2),('r',2),('r',3),('r',3),('x',2),('x',3)]
    else: vq += [('x',0),('x',0),('x',1),('x',1),('x',2),('x',2),('x',3),('x',3)] + [('pk',0)]*14
    def rd0(ks):
        base = A0 if ks % 2 == 0 else A1
        st = ks // 2
        off = st*XS0
        h = 2 if off >= HI0 else 0
        o = off - (HI0 if h else 0)
        k(f"ds_read_b128 {vr(base,4)}, v{nH[h + ks % 2]} offset:{o}")
        for rt in range(1, 5):
            k(f"ds_read_b128 {vr(base+4*rt,4)}, v{nA[h + ks % 2]} offset:{o + (rt-1)*2048}")
        if hasW:
            for ci in range(2):
                for b in range(2):
                    k(f"ds_read_b64_tr_b16 {vr(WF + 8*(ks%4) + 4*ci + 2*b, 2)}, {vTr[ci]} offset:{(ks%4)*RSL + b*432}")
    for r in range(ACC, nacc): k(f"v_mov_b32 v{r}, 0")
    for r in range(CSR, CSR+8): k(f"v_mov_b32 v{r}, 0")
    cs_lds_addr(k, p) if hasW else None
    if hasW:
        k(f"""
        v_lshlrev_b32 v6, 2, v2
        s_lshl_b32 s97, s21, 13
        s_lshl_b32 s5, s25, 1
        s_add_u32 s97, s97, s5
        s_add_u32 s97, s97, {PCS[0]}
        s_mul_i32 s91, s21, 13824
        s_add_u32 s91, s91, s96
        s_add_u32 s91, s91, {PQ[0]}
        """)
        if p == 'P1':
            k(f"s_lshl_b32 s5, s4, 6\nv_add_u32 v162, s5, v6\nv_add_u32 v163, 2304, v162")
        elif p == 'P2':
            k(f"""
            v_lshrrev_b32 v162, 3, v2
            v_mul_u32_u24 v162, {2304-32}, v162
            v_add3_u32 v162, v162, v6, 0
            v_add_u32 v162, 256, v162
            v_add_u32 v163, 4608, v6
            """)
        else:
            k(f"s_lshl_b32 s5, s30, 6\ns_add_u32 s5, s5, {4608-576}\nv_add_u32 v162, s5, v6\nv_add_u32 v163, 64, v162")
    if hasW and 'n' not in EXP:
        k(f"""
        s_and_b32 s5, s21, 7
        s_add_u32 s5, s5, 4
        s_mul_i32 s5, s5, {32*3456}
        buffer_load_dwordx4 v[176:179], {vR[0]}, s[8:11], s5 offen
        buffer_load_dwordx4 v[180:183], {vR[1]}, s[8:11], s5 offen
        s_add_u32 s5, s5, {8*32*3456}
        buffer_load_dwordx4 v[184:187], {vR[0]}, s[8:11], s5 offen
        buffer_load_dwordx4 v[188:191], {vR[1]}, s[8:11], s5 offen
        """)
        vq += [('p', 0)]*4
    if p == 'P4':
        k(f"""
        s_setprio 1
        s_mov_b32 s18, 0
        s_cmp_lg_u32 s2, 0
        s_cbranch_scc1 M_nonce_skip
        s_memrealtime s[98:99]
        s_waitcnt lgkmcnt(0)
        s_or_b32 s101, s98, 1
        s_mov_b64 exec, 1
        v_mov_b32 v2, 0
        v_mov_b32 v3, s101
        global_store_dword v2, v3, s[46:47] sc1
        s_mov_b64 exec, -1
        """)
        k.label("M_nonce_skip")
    vwait(('r', 0) if hasW else ('x', 0))
    k("s_barrier")
    stamp(k)
    rd0(0)
    for ks in range(18):
        base = A0 if ks % 2 == 0 else A1
        if ks + 1 < 18:
            honest = [('r', ks+1)] if hasW else []
            if (ks + 1) % 2 == 0: honest.append(('x', (ks+1)//2))
            best = None
            for i, t in enumerate(vq):
                if t in honest: best = t
            if 'g' in EXP: stamp(k)
            if best: vwait(best, " lgkmcnt(0)")
            else: k("s_waitcnt lgkmcnt(0)")
            if 'g' in EXP: stamp(k)
            k("s_barrier")
            if 'g' in EXP: stamp(k)
            rd0(ks + 1)
        else:
            k("s_waitcnt lgkmcnt(0)")
        for ci, c in enumerate(cols):
            wf = vr(WF + 8*(ks%4) + 4*ci, 4)
            if hasW and ks + 4 < 18 and p == 'P1':
                ring_dma(k, ks + 4, (ci,)); vq.append(('r', ks+4))
            for rt in c['rts']: mfma(c, ci, rt, wf, vr(base+4*rt, 4), vr(ONE0,4))
            if hasW and ks + 4 < 18 and p != 'P1':
                ring_dma(k, ks + 4, (ci,)); vq.append(('r', ks+4))
            if ci == 1 and ks % 2 == 0 and ks // 2 + 4 < 9:
                x0_dma(k, ks // 2 + 4, not hasW); vq.append(('x', ks//2+4))
                if not hasW: vq.append(('x', ks//2+4))
            if hasW:
                d = vr(CSR + 4*ci, 4)
                if c['kind'] == 'T': k(f"v_mfma_f32_16x16x32_bf16 {d}, {wf}, {vr(ONE0,4)}, {d}")
                else: k(f"v_mfma_f32_16x16x32_bf16 {d}, {vr(ONE0,4)}, {wf}, {d}")
        if hasW:
            lab = f"M_{p}_st{ks}"
            w0 = WF + 8*(ks%4)
            k(f"""
            s_cmp_lg_u32 s21, {ks}
            s_cbranch_scc1 {lab}
            v_mfma_f32_16x16x32_bf16 v[164:167], {vr(ONE0,4)}, {vr(w0,4)}, 0
            v_mfma_f32_16x16x32_bf16 v[168:171], {vr(ONE0,4)}, {vr(w0+4,4)}, 0
            buffer_store_dwordx4 {vr(w0,4)}, {vW0}, s[12:15], s91 offen sc1
            s_mov_b64 exec, s[82:83]
            buffer_store_dwordx4 {vr(w0+4,4)}, {vW1}, s[12:15], s91 offen sc1
            s_nop 7
            s_and_b64 exec, exec, 0xffff
            buffer_store_dword v168, v163, s[12:15], s97 offen sc1
            s_mov_b64 exec, 0xffff
            buffer_store_dword v164, v162, s[12:15], s97 offen sc1
            s_mov_b64 exec, -1
            """)
            k.label(lab)
        if ks == 15:
            for ct in range(3):
                k(f"buffer_load_dwordx2 {vr(RES+2*ct,2)}, {vBN}, s[72:75], 0 offen offset:{32*ct}")
                vq.append(('res', 0))
        if ks == 8:
            k("s_call_b64 s[58:59], M_pack")
        if p == 'P4' and ks == 12:
            k(f"""
            s_mov_b64 exec, 1
            v_mov_b32 v2, 0
            s_mov_b32 s5, 0x40000
            """)
            k.label("M_nonce_loop")
            k(f"""
            global_load_dword v3, v2, s[46:47] sc1
            s_waitcnt vmcnt(0)
            v_readfirstlane_b32 s101, v3
            s_cmp_lg_u32 s101, 0
            s_cbranch_scc1 M_nonce_ok
            s_sleep 2
            s_sub_u32 s5, s5, 1
            s_cmp_lg_u32 s5, 0
            s_cbranch_scc1 M_nonce_loop
            """)
            k.label("M_nonce_ok")
            k("s_mov_b64 exec, -1")
            del vq[:]
            k(f"s_cmp_eq_u32 s85, 2\ns_cbranch_scc1 M_P4_nopf")
            flag_store(k, "s29", "0")
            k.label("M_P4_nopf")
    for t in setup_list(): k(t)
    wo_setup(k)
    if hasW:
        k("v_and_b32 v2, 15, v0\nv_cmp_eq_u32 vcc, 0, v2\ns_nop 1")
        for ci, c in enumerate(cols):
            ad = "v69" if ci == 0 else "v71"
            if c['kind'] == 'T':
                k(f"s_mov_b64 exec, vcc\nds_write_b128 {ad}, {vr(CSR+4*ci,4)}")
            else:
                k(f"s_mov_b64 exec, 0xffff\nds_write_b32 {ad}, v{CSR+4*ci}")
        k("s_mov_b64 exec, -1\ns_waitcnt lgkmcnt(0)")
    k(f"s_branch M_{p}_epi")
    k.label(f"M_{p}_loop")
    del vq[:]
    def issue_x(s):
        k(f"""
        s_add_u32 m0, s26, {s*8192}
        s_nop 0
        buffer_load_dwordx4 {vL}, s[12:15], s27 offen{XSC} lds
        s_add_u32 s27, s27, 8192
        """)
        vq.append(('x', s))
        if p == 'P4':
            k(f"""
            s_mov_b32 m0, {HALO + s*1024}
            s_nop 0
            buffer_load_dwordx4 {vX2}, s[12:15], s85 offen{XSC} lds
            s_add_u32 s85, s85, 8192
            """)
            vq.append(('x', s))
    def issue_wn(ks):
        if not hasW: return
        for t in wn_load(ks): k(t); vq.append(('wn', ks))
    def rdA(ks):
        base = A0 if ks % 2 == 0 else A1
        k(f"ds_read_b128 {vr(base,4)}, {vH} offset:{ks*512}")
        for rt in range(1, 5):
            off = ks*4096 + (rt-1)*256
            if off >= HI: k(f"ds_read_b128 {vr(base+4*rt,4)}, {vAh} offset:{off-HI}")
            else: k(f"ds_read_b128 {vr(base+4*rt,4)}, {vA} offset:{off}")
    for s in range(4):
        k(f"s_setprio {3-s}")
        issue_x(s)
    su = setup_list()
    for r in range(ACC, nacc): k(f"v_mov_b32 v{r}, 0")
    if hasW: cs_lds_addr(k, p)
    else:
        for i in range(4): k(f"v_mov_b32 v{ONES+i}, 0x3f803f80")
        k(f"""
        s_setprio 1
        v_mul_u32_u24 v2, 3641, v0
        v_lshrrev_b32 v2, 16, v2
        v_mul_u32_u24 v3, {2304-288}, v2
        v_lshl_add_u32 v69, v0, 4, v3
        s_lshl_b32 s5, s25, 1
        s_add_u32 s29, s29, s5
        """)
    vwait(('x', 0))
    k("s_barrier")
    stamp(k)
    rdA(0)
    for ks in range(18):
        base = A0 if ks % 2 == 0 else A1
        if ks + 1 < 18:
            if ks in BARS:
                vwait(('x', BARS[ks]))
                k("s_barrier")
            rdA(ks + 1)
            k("s_waitcnt lgkmcnt(5)")
        else:
            k("s_waitcnt lgkmcnt(0)")
        for ci, c in enumerate(cols):
            wf = vr(WF + 8*ks + 4*ci, 4)
            for rt in c['rts']:
                mfma(c, ci, rt, wf, vr(base+4*rt, 4), vr(ONES,4))
                if ks >= 16:
                    for _ in range(5):
                        if su: k(su.pop(0))
            if ci == 0 and ks % 2 == 0 and ks // 2 + 4 < 9: issue_x(ks // 2 + 4)
        if LAG <= ks < 16: issue_wn(ks - LAG)
        if hasW and ks in (1, 3, 5, 7, 9):
            wo_dma(k); vq.append(('wo', 0))
        if not hasW:
            if 1 <= ks <= 9:
                for i in range(2):
                    r = 2*(ks-1) + i
                    k(f"buffer_load_dwordx4 {vr(120+4*r,4)}, v69, s[12:15], s29 offen\ns_add_u32 s29, s29, 8192")
                    vq.append(('pcs', r))
            if ks == 14:
                vwait(('pcs', 17))
                for st in (9,):
                    for r in range(9):
                        for h in range(2): k(f"v_pk_add_f32 {vr(120+4*r+2*h,2)}, {vr(120+4*r+2*h,2)}, {vr(120+4*(r+9)+2*h,2)}")
                for r in range(1, 9):
                    for h in range(2): k(f"v_pk_add_f32 {vr(120+2*h,2)}, {vr(120+2*h,2)}, {vr(120+4*r+2*h,2)}")
                k(f"""
                s_mov_b32 exec_hi, 0x3fffff
                ds_write_b128 {vL}, v[120:123] offset:{CSL}
                s_mov_b64 exec, -1
                """)
    while su: k(su.pop(0))
    issue_wn(8); issue_wn(9)
    k.label(f"M_{p}_epi")
    k("s_nop 7")
    stamp(k)
    if p == 'P4':
        S = cols[0]; R = cols[1]
        k(f"""
        v_and_b32 v2, 15, v0
        v_lshrrev_b32 v6, 2, v2
        v_cmp_eq_u32 s[68:69], {vT}, v6
        v_and_b32 v6, 3, v0
        v_cmp_eq_u32 s[70:71], 1, v6
        v_cmp_eq_u32 s[72:73], 2, v6
        v_cmp_eq_u32 s[74:75], 3, v6
        s_mov_b32 s58, 0x3ae38e39
        s_mov_b32 s59, 0x3727c5ac
        """)
        ops = [
            lambda rt, s, r: f"v_cndmask_b32 v{8+rt}, v{s}, v{s+1}, s[70:71]",
            lambda rt, s, r: f"v_cndmask_b32 v{8+rt}, v{8+rt}, v{s+2}, s[72:73]",
            lambda rt, s, r: f"v_cndmask_b32 v{8+rt}, v{8+rt}, v{s+3}, s[74:75]",
            lambda rt, s, r: f"v_mul_f32 v{16+rt}, s58, v{r}",
            lambda rt, s, r: f"v_mul_f32 v{8+rt}, s58, v{8+rt}",
            lambda rt, s, r: f"v_fma_f32 v{8+rt}, -v{16+rt}, v{16+rt}, v{8+rt}",
            lambda rt, s, r: f"v_max_f32 v{8+rt}, 0, v{8+rt}",
            lambda rt, s, r: f"v_add_f32 v{8+rt}, s59, v{8+rt}",
            lambda rt, s, r: f"v_rsq_f32 v{8+rt}, v{8+rt}",
            lambda rt, s, r: f"v_mul_f32 v{16+rt}, v{16+rt}, v{8+rt}",
        ]
        for op in ops:
            for rt in range(5): k(op(rt, S['acc'][rt], R['acc'][rt]))
        k("s_mov_b64 exec, s[68:69]")
        for rt in range(5):
            k(f"ds_write2_b32 {eT}, v{8+rt}, v{16+rt} offset0:{16*rt} offset1:{80+16*rt}")
        k("s_mov_b64 exec, -1")
        k("s_setprio 0")
        k(f"""
        s_cmp_lg_u32 s3, 0
        s_cbranch_scc1 M_P4_nopoll
        v_lshlrev_b32 v2, 2, v0
        s_lshl_b32 s91, s20, 7
        s_add_u32 s91, s91, {PF}
        s_mov_b64 exec, 0x3fffffff
        """)
        poll_simple(k, "M_pollPF", "v3")
        k.label("M_P4_nopoll")
        k("s_waitcnt lgkmcnt(0)")
        k("s_barrier")
        stamp(k)
        k("s_branch M_att")
        return
    k("s_barrier")
    stamp(k)
    for ci, c in enumerate(cols):
        ad = "v69" if ci == 0 else "v71"
        if c['kind'] == 'T': k(f"ds_read_b128 {vr(CSR+4*ci,4)}, {ad}")
        else: k(f"ds_read_b32 v{CSR+4*ci}, {ad}")
    loaded = None
    for ci, c in enumerate(cols):
        cs = CSR + 4*ci
        if loaded != c['kind']:
            if c['kind'] == 'T':
                for rt in range(5): k(f"ds_read2_b32 {vr(8+2*rt,2)}, {eT} offset0:{16*rt} offset1:{80+16*rt}")
            else:
                for rt in range(5):
                    k(f"ds_read_b128 {vr(8+8*rt,4)}, {eN} offset:{rt*64}")
                    k(f"ds_read_b128 {vr(8+8*rt+4,4)}, {eN} offset:{320+rt*64}")
            loaded = c['kind']
            if ci == 0 and p == 'P1':
                k(f"""
                s_lshl_b32 s6, s4, 10
                s_add_u32 m0, s6, {WOL}
                s_add_u32 s7, s6, s89
                buffer_load_dwordx4 {vL}, s[12:15], s7 offen lds
                """)
            k("s_waitcnt lgkmcnt(0)")
        for rt in c['rts']:
            a = c['acc'][rt]
            for h in range(2):
                if c['kind'] == 'T':
                    k(f"v_pk_mul_f32 {vr(a+2*h,2)}, {vr(a+2*h,2)}, {vr(8+2*rt,2)} op_sel_hi:[1,0]")
                else:
                    k(f"v_pk_mul_f32 {vr(a+2*h,2)}, {vr(a+2*h,2)}, {vr(8+8*rt+2*h,2)}")
        for rt in c['rts']:
            a = c['acc'][rt]
            for h in range(2):
                if c['kind'] == 'T':
                    k(f"v_pk_fma_f32 {vr(a+2*h,2)}, {vr(cs+2*h,2)}, {vr(8+2*rt,2)}, {vr(a+2*h,2)} op_sel:[0,1,0] op_sel_hi:[1,1,1] neg_lo:[0,1,0] neg_hi:[0,1,0]")
                else:
                    k(f"v_pk_fma_f32 {vr(a+2*h,2)}, {vr(8+8*rt+4+2*h,2)}, {vr(cs,2)}, {vr(a+2*h,2)} op_sel_hi:[1,0,1] neg_lo:[1,0,0] neg_hi:[1,0,0]")
        for rt in c['rts']:
            a = c['acc'][rt]
            k(f"v_cvt_pk_bf16_f32 v{a}, v{a}, v{a+1}")
            k(f"v_cvt_pk_bf16_f32 v{a+1}, v{a+2}, v{a+3}")
            k(f"ds_write_b64 {eF0 if ci == 0 else eF1}, {vr(a,2)} offset:{FR + rt*512}")
    k("s_branch M_att")

def att_unit(u):
    Q, Kr, V, S, T = ((16, 20, 28, 36, 44), (72, 76, 84, 92, 100))[u]
    M = (60, 50)[u]
    mk = lambda i: f"s[{M+2*i}:{M+2*i+1}]"
    L = []
    L += [f"v_cndmask_b32 v{Q+i}, 0, v{Q+i}, {mk(i)}" for i in range(4)]
    L += ["WAITK"]
    L += [f"v_mfma_f32_16x16x32_bf16 {vr(S,4)}, {vr(Kr,4)}, {vr(Q,4)}, {vr(CB,4)}",
          f"v_mfma_f32_16x16x32_bf16 {vr(S+4,4)}, {vr(Kr+4,4)}, {vr(Q,4)}, {vr(CB+4,4)}", "BG", "s_nop 3"]
    L += [f"v_max_f32 v{S+i}, v{S+i}, v{S+4+i}" for i in range(4)]
    L += [f"v_max3_f32 v{T}, v{S}, v{S+1}, v{S+2}", f"v_max_f32 v{T}, v{T}, v{S+3}",
          f"v_mov_b32 v{T+1}, v{T}", "s_nop 0", f"v_permlane32_swap_b32 v{T}, v{T+1}", f"v_max_f32 v{T}, v{T}, v{T+1}",
          f"v_mov_b32 v{T+1}, v{T}", "s_nop 0", f"v_permlane16_swap_b32 v{T}, v{T+1}", f"v_max_f32 v{T}, v{T}, v{T+1}",
          f"v_mul_f32 v{T}, s58, v{T}"]
    L += [f"v_pk_fma_f32 {vr(S+2*i,2)}, {vr(S+2*i,2)}, s[58:59], {vr(T,2)} op_sel_hi:[1,1,0] neg_lo:[0,0,1] neg_hi:[0,0,1]" for i in range(2)]
    L += [f"v_exp_f32 v{S+i}, v{S+i}" for i in range(4)]
    L += ["BG"]
    L += [f"v_pk_add_f32 {vr(Kr,2)}, {vr(S,2)}, {vr(S+2,2)}", f"v_add_f32 v{T}, v{Kr}, v{Kr+1}",
          f"v_mov_b32 v{T+1}, v{T}", "s_nop 0", f"v_permlane32_swap_b32 v{T}, v{T+1}", f"v_add_f32 v{T}, v{T}, v{T+1}",
          f"v_mov_b32 v{T+1}, v{T}", "s_nop 0", f"v_permlane16_swap_b32 v{T}, v{T+1}", f"v_add_f32 v{T}, v{T}, v{T+1}",
          f"v_rcp_f32 v{T}, v{T}", "BG"]
    L += [f"v_pk_mul_f32 {vr(S+2*i,2)}, {vr(S+2*i,2)}, {vr(T,2)} op_sel_hi:[1,0]" for i in range(2)]
    L += [f"v_cvt_pk_bf16_f32 v{Kr+i}, v{S+2*i}, v{S+2*i+1}" for i in range(2)]
    L += [f"v_cndmask_b32 v{Q}, v{Kr}, 0, s[80:81]", f"v_cndmask_b32 v{Q+1}, v{Kr+1}, 0, s[80:81]",
          f"v_cndmask_b32 v{Q+2}, 0, v{Kr}, s[80:81]", f"v_cndmask_b32 v{Q+3}, 0, v{Kr+1}, s[80:81]"]
    L += ["WAITV"]
    L += [f"v_mfma_f32_16x16x32_bf16 {vr(S,4)}, {vr(V,4)}, {vr(Q,4)}, 0",
          f"v_mfma_f32_16x16x32_bf16 {vr(S+4,4)}, {vr(V+4,4)}, {vr(Q,4)}, 0", "BG", "s_nop 3"]
    L += [f"v_cvt_pk_bf16_f32 v{Kr+i}, v{S+2*i}, v{S+2*i+1}" for i in range(4)]
    W = []
    offs = (0, 4, 2048, 2052)
    for i in range(4):
        W += [f"s_mov_b64 exec, {mk(i)}", f"ds_write_b32 {aO}, v{Kr+i} offset:{offs[i] + 4096*u}"]
    return L, W

def gen_att(k):
    for ks in range(10, 14): k.bg += wn_load(ks)
    guarded0(k, "M_g0", (), 6)
    k(f"""
    s_mov_b32 s58, 0x3eae1a93
    s_mov_b32 s59, 0x3eae1a93
    s_waitcnt lgkmcnt(0)
    """)
    stamp(k)
    k("s_barrier")
    stamp(k)
    H = 2*2560
    k(f"""
    ds_read_b64 v[16:17], {aQ} offset:{FR + 512}
    ds_read_b64 v[18:19], {aQ} offset:{FR + 2560 + 512}
    ds_read_b64 v[72:73], {aQ} offset:{FR + H + 512}
    ds_read_b64 v[74:75], {aQ} offset:{FR + H + 2560 + 512}
    ds_read_b64 v[20:21], {aQ} offset:{FR + 5*2560}
    ds_read_b64 v[22:23], {aQ} offset:{FR + 6*2560}
    ds_read_b64 v[24:25], {aQ} offset:{FR + 5*2560 + 512}
    ds_read_b64 v[26:27], {aQ} offset:{FR + 6*2560 + 512}
    ds_read_b64 v[76:77], {aQ} offset:{FR + H + 5*2560}
    ds_read_b64 v[78:79], {aK}
    ds_read_b64 v[80:81], {aQ} offset:{FR + H + 5*2560 + 512}
    ds_read_b64 v[82:83], {aK} offset:512
    ds_read_b64 v[28:29], {aQ} offset:{FR + 9*2560}
    ds_read_b64 v[30:31], {aQ} offset:{FR + 9*2560 + 512}
    ds_read_b64 v[32:33], {aQ} offset:{FR + 10*2560}
    ds_read_b64 v[34:35], {aQ} offset:{FR + 10*2560 + 512}
    ds_read_b64 v[84:85], {aQ} offset:{FR + H + 9*2560}
    ds_read_b64 v[86:87], {aQ} offset:{FR + H + 9*2560 + 512}
    ds_read_b64 v[88:89], {aQ} offset:{FR + H + 10*2560}
    ds_read_b64 v[90:91], {aQ} offset:{FR + H + 10*2560 + 512}
    """)
    k.bgp(2)
    k(f"""
    s_lshl_b32 s5, s4, 10
    v_add_u32 v8, s5, {vL}
    s_lshl_b32 s5, s4, 7
    s_add_u32 s5, s5, 8192
    v_add_u32 v9, s5, {vL}
    s_mul_i32 s88, s3, {OBUF[1]-OBUF[0]}
    s_add_u32 s88, s88, {OBUF[0]}
    s_add_u32 s88, s88, s24
    s_mul_i32 s83, s20, 9216
    s_add_u32 s83, s83, s88
    s_lshl_b32 s90, s3, 13
    s_lshl_b32 s5, s21, 7
    s_add_u32 s90, s90, s5
    s_add_u32 s90, s90, {FLG}
    s_mov_b32 s91, s90
    s_waitcnt lgkmcnt(15)
    """)
    L0, W0 = att_unit(0); L1, W1 = att_unit(1)
    for a, b in zip(L0, L1):
        if a == "WAITK":
            if 'f' in EXP: stamp(k)
            k("s_waitcnt lgkmcnt(8)\ns_nop 0"); continue
        if a == "WAITV":
            if 'f' in EXP: stamp(k)
            k("s_waitcnt lgkmcnt(0)\ns_nop 0"); continue
        if a == "BG": k.bgp(2 if len(k.bg) > 2 else 1); continue
        k(a); k(b)
    for t in W0 + W1: k(t)
    k("s_mov_b64 exec, -1")
    k.bgp(12)
    if 'f' in EXP: stamp(k)
    k(f"""
    s_waitcnt lgkmcnt(0)
    s_barrier""")
    if 'f' in EXP: stamp(k)
    k(f"""
    ds_read_b128 v[24:27], v8 offset:{OIMG}
    s_mov_b64 exec, 0xff
    ds_read_b128 v[28:31], v9 offset:{OIMG}
    s_mov_b64 exec, -1
    s_waitcnt lgkmcnt(1)
    buffer_store_dwordx4 v[24:27], v8, s[12:15], s83 offen sc1
    s_mov_b64 exec, 0xff
    s_waitcnt lgkmcnt(0)
    buffer_store_dwordx4 v[28:31], v9, s[12:15], s83 offen sc1
    s_mov_b64 exec, -1
    """)
    for ks in (14, 15):
        for t in wn_load(ks): k(t)
    guarded0(k, "M_g0b", (), 5)
    stamp(k)
    k(f"""
    s_and_b32 s5, s4, 1
    s_lshl_b32 s6, s5, 12
    s_and_b32 s7, s4, 2
    s_lshl_b32 s7, s7, 8
    s_add_u32 s6, s6, s7
    v_add_u32 v108, s6, {vA}
    v_add_u32 v109, {4*8192}, v108
    s_mul_i32 s5, s5, 4608
    s_lshr_b32 s6, s4, 2
    s_mul_i32 s6, s6, 3072
    s_add_u32 s6, s6, s5
    s_add_u32 s6, s6, {WOL}
    v_add_u32 v6, s6, {vL}
    v_add_u32 v110, {4*9216}, v6
    v_lshrrev_b32 v71, 4, v0
    v_and_b32 v69, 7, v0
    v_lshl_add_u32 v69, v71, 3, v69
    v_lshlrev_b32 v69, 4, v69
    s_add_u32 s5, s5, {WOL + 4096}
    v_add_u32 v69, s5, v69
    v_add_u32 v111, {4*9216}, v69
    s_lshl_b32 s5, s4, 10
    s_add_u32 s88, s88, s5
    s_mul_i32 s5, s4, 3072
    s_add_u32 s5, s5, {XI}
    v_add_u32 v56, s5, {vL}
    s_xor_b32 s6, s4, 1
    s_mul_i32 s6, s6, 3072
    s_add_u32 s6, s6, {XI}
    v_add_u32 v71, s6, {vL}
    """)
    for r in range(72, 96): k(f"v_mov_b32 v{r}, 0")
    def extra():
        k(f"""
        s_cmp_lg_u32 s3, 0
        s_cbranch_scc1 M_sigA_ns
        s_cmp_ge_u32 s21, 18
        s_cbranch_scc1 M_sigA_ns
        s_lshl_b32 s5, s20, 7
        s_add_u32 s5, s5, {PF + 1024}
        s_lshl_b32 s6, s21, 2
        """)
        flag_store(k, "s5", "s6")
    signal(k, "M_sigA", extra)
    stamp(k)
    guarded0(k, "M_g1", (0, 1, 2))
    poll(k, "M_pollA", False)
    stamp(k)

def gen_Bphase(k):
    def odma(st):
        k(f"""
        s_add_u32 m0, s26, {st*8192}
        s_nop 0
        buffer_load_dwordx4 {vL}, s[12:15], s88 offen{XSC} lds
        s_add_u32 s88, s88, 8192
        """)
    PFD = 5
    for st in range(PFD):
        k(f"s_setprio {max(3-st,0)}")
        odma(st)
    k(f"""
    s_cmp_ge_u32 s4, 4
    s_cbranch_scc1 M_Bh1
    """)
    OF = [8, 28]; WFb = [16, 36]
    GR = {0: 0, 1: 2, 3: 5, 6: 8}
    for half in range(2):
        k.label(f"M_Bh{half}")
        n = 3 if half == 0 else 2
        def reads(st):
            p = st % 2
            hi = st >= 4; s_ = st - 4 if hi else st
            for r in range(2):
                k(f"ds_read_b128 {vr(OF[p]+4*r,4)}, {'v109' if hi else 'v108'} offset:{8192*s_ + 256*r}")
            for ct in range(n):
                if half == 1 and ct == 1:
                    k(f"ds_read_b128 {vr(WFb[p]+4*ct,4)}, {'v111' if hi else 'v69'} offset:{9216*s_}")
                else:
                    k(f"ds_read_b128 {vr(WFb[p]+4*ct,4)}, {'v110' if hi else 'v6'} offset:{9216*s_ + 1024*ct}")
        def mm(p):
            for ct in range(n):
                for r in range(2):
                    d = vr(72+12*r+4*ct, 4)
                    k(f"v_mfma_f32_16x16x32_bf16 {d}, {vr(WFb[p]+4*ct,4)}, {vr(OF[p]+4*r,4)}, {d}")
        nreads = 2 + n
        issued = PFD
        for st in range(9):
            if st in GR:
                k(f"s_waitcnt vmcnt({issued-1-GR[st]})")
                k("s_barrier")
                if st == 0 or 'f' in EXP: stamp(k)
            reads(st)
            for _ in range(2):
                if issued < 9: odma(issued); issued += 1
            if st > 0:
                k(f"s_waitcnt lgkmcnt({nreads})")
                mm((st-1) % 2)
            if st == 6:
                for ks in (16, 17):
                    for t in wn_load(ks): k(t)
                guarded0(k, f"M_g2{half}", (3, 4, 5, 6))
        k("s_waitcnt lgkmcnt(0)")
        mm(0)
        if 'f' in EXP: stamp(k)
        k(f"""
        s_and_b32 s7, s4, 1
        s_cmp_eq_u32 s7, 0
        s_nop 6
        s_cbranch_scc1 M_Bx{half}_k0
        """)
        for kh in (1, 0):
            if kh == 0: k.label(f"M_Bx{half}_k0")
            keep = 72 + 12*kh; send = 72 + 12*(1-kh)
            for ct in range(n):
                k(f"ds_write_b128 v56, {vr(send+4*ct,4)} offset:{1024*ct}")
            k("s_waitcnt lgkmcnt(0)\ns_barrier")
            for ct in range(n):
                k(f"ds_read_b128 {vr(8+4*ct,4)}, v71 offset:{1024*ct}")
            for ct in range(n):
                k(f"s_waitcnt lgkmcnt({n-1-ct})")
                for h in range(2):
                    k(f"v_pk_add_f32 {vr(96+4*ct+2*h,2)}, {vr(keep+4*ct+2*h,2)}, {vr(8+4*ct+2*h,2)}")
            if kh == 1: k(f"s_branch M_Bx{half}_j")
        k.label(f"M_Bx{half}_j")
        stamp(k)
        T = lambda ct, i: 8 + 10*ct + i
        steps = [
            lambda ct, d, x: f"v_cvt_pk_bf16_f32 v{T(ct,8)}, v{d}, v{d+1}",
            lambda ct, d, x: f"v_cvt_pk_bf16_f32 v{T(ct,9)}, v{d+2}, v{d+3}",
            lambda ct, d, x: f"v_lshlrev_b32 v{T(ct,4)}, 16, v{x}",
            lambda ct, d, x: f"v_and_b32 v{T(ct,5)}, 0xffff0000, v{x}",
            lambda ct, d, x: f"v_lshlrev_b32 v{T(ct,6)}, 16, v{x+1}",
            lambda ct, d, x: f"v_and_b32 v{T(ct,7)}, 0xffff0000, v{x+1}",
            lambda ct, d, x: f"v_lshlrev_b32 v{T(ct,0)}, 16, v{T(ct,8)}",
            lambda ct, d, x: f"v_and_b32 v{T(ct,1)}, 0xffff0000, v{T(ct,8)}",
            lambda ct, d, x: f"v_lshlrev_b32 v{T(ct,2)}, 16, v{T(ct,9)}",
            lambda ct, d, x: f"v_and_b32 v{T(ct,3)}, 0xffff0000, v{T(ct,9)}",
            lambda ct, d, x: f"v_pk_add_f32 {vr(T(ct,0),2)}, {vr(T(ct,0),2)}, {vr(T(ct,4),2)}",
            lambda ct, d, x: f"v_pk_add_f32 {vr(T(ct,2),2)}, {vr(T(ct,2),2)}, {vr(T(ct,6),2)}",
            lambda ct, d, x: f"v_cvt_pk_bf16_f32 v{x}, v{T(ct,0)}, v{T(ct,1)}",
            lambda ct, d, x: f"v_cvt_pk_bf16_f32 v{x+1}, v{T(ct,2)}, v{T(ct,3)}",
        ]
        k(f"""
        s_mul_i32 s5, s3, {XSTR}
        s_add_u32 s5, s5, s24
        s_mul_i32 s6, s20, 9216
        s_add_u32 s5, s5, s6
        s_add_u32 s5, s5, {XSTR}
        """)
        for stp in steps:
            for ct in range(n): k(stp(ct, 96 + 4*ct, RES + 2*ct))
        k(f"""
        s_cmp_eq_u32 s3, 3
        s_cbranch_scc1 M_Bf{half}
        """)
        for ct in range(n):
            x = RES + 2*ct
            if half == 1 and ct == 1: k("s_mov_b64 exec, 0xffffffff")
            k(f"buffer_store_dwordx2 {vr(x,2)}, {vBO}, s[12:15], s5 offen sc1\ns_add_u32 s5, s5, 2048")
        k("s_mov_b64 exec, -1\ns_branch M_Bdone")
        k.label(f"M_Bf{half}")
        for ct in range(n):
            x = RES + 2*ct
            if half == 1 and ct == 1: k("s_mov_b64 exec, 0xffffffff")
            k(f"buffer_store_dwordx2 {vr(x,2)}, {vBN}, s[92:95], 0 offen offset:{32*ct}")
        k("s_mov_b64 exec, -1\ns_branch M_fin")
    k.label("M_Bdone")
    stamp(k)
    k("s_add_u32 s91, s90, 4096")
    signal(k, "M_sigB")
    stamp(k)
    guarded0(k, "M_g3", (7, 8, 9))
    k(f"""
    s_add_u32 s3, s3, 1
    s_and_b32 s5, s3, 1
    s_cmp_eq_u32 s5, 0
    s_mov_b32 s29, {PCS[1]}
    s_cselect_b32 s29, {PCS[0]}, s29
    s_mov_b32 s28, {PQ[0]}
    s_cselect_b32 s28, {PQ[1]}, s28
    s_add_u32 s28, s28, s96
    s_cmp_eq_u32 s3, 3
    s_cselect_b32 s18, 0, s18
    """)
    x_setup(k)
    wo_setup(k)
    k("s_cmp_eq_u32 s4, 7\ns_cbranch_scc1 M_nowo")
    for i in range(6): wo_dma(k)
    k("s_branch M_nowo2")
    k.label("M_nowo")
    k(f"""
    s_cmp_lg_u32 s3, 1
    s_cbranch_scc1 M_nowo2
    s_mov_b32 s7, s91
    v_lshlrev_b32 v2, 2, v0
    s_lshl_b32 s91, s20, 7
    s_add_u32 s91, s91, {PF + 1024}
    s_mov_b64 exec, 0x3ffff
    """)
    poll_simple(k, "M_pollPF2", "v3")
    k("s_mov_b32 s91, s7")
    k.label("M_nowo2")
    poll(k, "M_pollB", True)
    stamp(k)
    if 'r' in EXP: k("s_add_u32 s84, s3, 1")
    rts(k, "s84")
    k(f"""
    s_cmp_eq_u32 s4, 4
    s_cbranch_scc1 M_P2_loop
    s_cmp_eq_u32 s4, 7
    s_cbranch_scc1 M_P4_loop
    s_cmp_gt_u32 s4, 4
    s_cbranch_scc1 M_P3_loop
    s_branch M_P1_loop
    """)
    k.label("M_fin")
    if 'r' in EXP: k("s_waitcnt vmcnt(0)")
    rts(k, 5)
    if DBG:
        k(f"""
        s_waitcnt vmcnt(0)
        """)
        stamp(k)
        k(f"""
        s_lshl_b32 s5, s2, 3
        s_add_u32 s5, s5, s4
        s_lshl_b32 s5, s5, 8
        s_add_u32 s5, s5, {DBGO}
        v_lshlrev_b32 v2, 2, v0
        buffer_store_dword v68, v2, s[12:15], s5 offen
        """)


def main():
    out = sys.argv[1]
    global DBG
    DBG = len(sys.argv) > 2 and sys.argv[2] == '1'
    hdr = [f"; @launch grid=(256,1,1) block=(512,1,1) lds={LDSZ}"]
    k = K()
    k.raw('.amdgcn_target "amdgcn-amd-amdhsa--gfx950"\n.text')
    k.raw(f".globl {NAME}\n.p2align 8\n.type {NAME},@function\n{NAME}:")
    gen_M(k)
    k.raw('.section .rodata,"a"')
    k.raw(f""".p2align 6
.amdhsa_kernel {NAME}
  .amdhsa_next_free_vgpr 256
  .amdhsa_next_free_sgpr 102
  .amdhsa_accum_offset 256
  .amdhsa_group_segment_fixed_size 0
  .amdhsa_kernarg_size 72
  .amdhsa_user_sgpr_count 2
  .amdhsa_user_sgpr_kernarg_segment_ptr 1
  .amdhsa_system_sgpr_workgroup_id_x 1
.end_amdhsa_kernel
""")
    open(out, "w").write("\n".join(hdr) + "\n" + k.text())
main()
```

```python
import sys, os
EXP = os.environ.get("EXP", "")
NAME = "interleave_layers__sliding_local_dilated__sliding_local_dilated__prompt_kernel"

XB = 2048 * 576 * 2
WQB = 576 * 1728 * 2
WOB = 576 * 576 * 2
XSTR = 0x280000
OBUF = [0xA00000, 0xC80000, 0xF00000, 0x1180000]
PQ = [0x1400000, 0x1600000]
PO = [0x1800000, 0x1A00000]
PCS = [0x1B00000, 0x1B40000]
FLG = 0x1B80000
PF = 0x1B90000
DBGO = 0x1900000
WSZ = 0x2000000
BLK = 73728

class K:
    def __init__(self): self.l = []; self.bg = []
    def bgp(self, n=1):
        for _ in range(n):
            if self.bg: self(self.bg.pop(0))
    def __call__(self, s):
        for x in s.strip().split("\n"):
            x = x.strip()
            if x: self.l.append("    " + x)
    def label(self, n): self.l.append(n + ":")
    def raw(self, s): self.l.append(s)
    def text(self): return "\n".join(self.l) + "\n"

DBG = False
def stamp(k):
    if DBG:
        k("""s_memtime s[98:99]
        s_waitcnt lgkmcnt(0)
        s_mov_b32 m0, s100
        v_writelane_b32 v68, s98, m0
        s_add_u32 s100, s100, 1
        s_min_u32 s100, s100, 63""")
def rts(k, idx):
    if 'r' not in EXP: return
    lab = f"rts_{len(k.l)}"
    k(f"""s_or_b32 s5, s2, s4
    s_cmp_lg_u32 s5, 0
    s_cbranch_scc1 {lab}
    s_memrealtime s[98:99]
    s_waitcnt lgkmcnt(0)
    s_mov_b64 exec, 1
    v_mov_b32 v2, {idx}
    v_lshlrev_b32 v2, 2, v2
    v_mov_b32 v3, s98
    global_store_dword v2, v3, s[46:47]
    s_mov_b64 exec, -1""")
    k.label(lab)
def vr(a, n): return f"v[{a}:{a+n-1}]"

def emit_k_from_rho(k, vk, vrho, vt):
    k(f"""
    v_and_b32 {vk}, 0x78, {vrho}
    v_bfe_u32 {vt}, {vrho}, 1, 2
    v_or_b32 {vk}, {vk}, {vt}
    v_and_b32 {vt}, 1, {vrho}
    v_lshl_or_b32 {vk}, {vt}, 2, {vk}
    """)

CSL = 640
XI = 2048
HALO = XI + BLK
FR = XI
OIMG = 40960
WOL = 80896
NLATE = 4
LDSZ = 163840
XS0 = 9216
PS1 = XI + 9*XS0
PS2 = PS1 + 16384
A0, A1, ACC, WF = 8, 28, 72, 112
CSR = 48
vA, vAh, vH = "v1", "v4", "v5"
vX2, vW0, vW1, vBN, vBO, vL = "v57", "v58", "v59", "v66", "v67", "v70"
RES = 60
HI = 9*4096
nA = [48, 49, 50, 51]
nH = [52, 53, 54, 55]
vR = ["v152", "v153"]
vTr = ["v154", "v155"]
ONE0 = 156
vX0, vX0b = "v160", "v161"
HI0 = 40960

def mkcol(kind, rts): return dict(kind=kind, rts=rts)
PROGS = {
    'P1': [mkcol('T', [1,2,3,4]), mkcol('T', [0,1,2,3,4])],
    'P2': [mkcol('T', [0,1,2,3,4]), mkcol('N', [0,1,2,3,4])],
    'P3': [mkcol('N', [0,1,2,3,4]), mkcol('N', [0,1,2,3,4])],
    'P4': [mkcol('S', [0,1,2,3,4]), mkcol('R', [0,1,2,3,4])],
}
XSC = " sc1"

def retemp(k, start, m):
    import re
    for i in range(start, len(k.l)):
        k.l[i] = re.sub(r"\bv(2|3|6|8|9)\b", lambda x: m[x.group(1)], k.l[i])
HT = {'2': 'v221', '3': 'v222', '6': 'v223', '8': 'v193', '9': 'v220'}
def woff27(k, vdst, s_p0, s_add):
    k(f"""
    v_add_u32 v2, {s_p0}, v0
    v_cmp_gt_u32 vcc, 864, v2
    v_mul_u32_u24 v3, 2428, v2
    v_lshrrev_b32 v3, 16, v3
    v_mul_u32_u24 v6, 27, v3
    v_sub_u32 v2, v2, v6
    v_mul_u32_u24 v6, 57, v2
    v_lshrrev_b32 v6, 9, v6
    v_mul_u32_u24 v8, 9, v6
    v_sub_u32 v2, v2, v8
    """)
    emit_k_from_rho(k, "v8", "v3", "v9")
    k(f"""
    v_mul_u32_u24 v8, 3456, v8
    v_mul_u32_u24 v6, 1152, v6
    v_add3_u32 v8, v8, v6, {s_add}
    v_lshl_add_u32 v8, v2, 4, v8
    v_bfrev_b32 v9, 1
    v_cndmask_b32 {vdst}, v9, v8, vcc
    """)
def woff9(k, vdst, s_p0, s_add):
    k(f"""
    v_add_u32 v2, {s_p0}, v0
    v_cmp_gt_u32 vcc, 864, v2
    v_mul_u32_u24 v3, 7282, v2
    v_lshrrev_b32 v3, 16, v3
    v_mul_u32_u24 v6, 9, v3
    v_sub_u32 v2, v2, v6
    """)
    emit_k_from_rho(k, "v8", "v3", "v9")
    k(f"""
    v_mul_u32_u24 v8, 1152, v8
    v_add_u32 v8, {s_add}, v8
    v_lshl_add_u32 v8, v2, 4, v8
    v_bfrev_b32 v9, 1
    v_cndmask_b32 {vdst}, v9, v8, vcc
    """)
def xoff0(k, vdst, s_r0):
    k(f"""
    v_lshrrev_b32 v2, 3, v0
    v_add_u32 v2, {s_r0}, v2
    v_bfe_u32 v3, v2, 1, 3
    v_and_b32 v6, 7, v0
    v_xor_b32 v6, v6, v3
    s_lshl_b32 s7, s23, 6
    s_sub_u32 s7, s7, 16
    v_add_u32 v2, s7, v2
    v_lshlrev_b32 v3, 1, v2
    v_add_u32 v3, s22, v3
    v_mul_u32_u24 v3, 1152, v3
    v_lshl_add_u32 {vdst}, v6, 4, v3
    v_bfrev_b32 v3, 1
    v_cmp_gt_i32 vcc, 0, v2
    s_nop 1
    v_cndmask_b32 {vdst}, {vdst}, v3, vcc
    """)

def x0_dma(k, s, w7):
    k(f"""
    s_add_u32 m0, s26, {s*XS0}
    s_nop 0
    buffer_load_dwordx4 {vX0}, s[72:75], s27 offen lds
    """)
    if w7:
        k(f"""
        s_mov_b32 m0, {XI + s*XS0 + 8192}
        s_nop 0
        buffer_load_dwordx4 {vX0b}, s[72:75], s27 offen lds
        """)
    k("s_add_u32 s27, s27, 128")
def ring_dma(k, ks, which=(0, 1)):
    for i in which:
        k(f"""
        s_add_u32 m0, s84, {(ks % 4)*RSL + 1024*i}
        s_nop 0
        buffer_load_dwordx4 {vR[i]}, s[8:11], s86 offen lds
        """)
        if i == 1: k(f"s_add_u32 s86, s86, {32*3456}")

def dec_qkv(k, su, m, sD, sS, sA, sP, sF):
    k(f"""
    s_mul_i32 s6, {su}, 3641
    s_lshr_b32 s6, s6, 16
    s_mul_i32 s7, s6, 18
    s_sub_u32 s7, {su}, s7
    s_mul_i32 {sD}, {su}, 13824
    s_add_u32 {sD}, {sD}, {PQ[m]}
    s_mul_i32 {sS}, s7, {32*3456}
    s_mul_i32 {sA}, s6, 144
    s_lshl_b32 {sP}, s7, 13
    s_lshl_b32 s97, {sA}, 1
    s_add_u32 {sP}, {sP}, s97
    s_add_u32 {sP}, {sP}, {PCS[m]}
    s_lshl_b32 s97, s6, 7
    s_lshl_b32 {sF}, s7, 2
    s_add_u32 {sF}, {sF}, s97
    s_add_u32 {sF}, {sF}, {PF + (1024 if m == 0 else 0)}
    """)

def gen_M(k):
    k(f"""
    s_cmp_ge_u32 s2, 256
    s_cbranch_scc1 M_exit
    s_load_dwordx16 s[32:47], s[0:1], 0
    s_load_dwordx2 s[48:49], s[0:1], 64
    v_lshrrev_b32 v1, 6, v0
    v_and_b32 v0, 63, v0
    v_readfirstlane_b32 s4, v1
    s_and_b32 s5, s2, 7
    s_lshr_b32 s6, s2, 3
    s_and_b32 s7, s5, 1
    s_lshl_b32 s7, s7, 2
    s_and_b32 s20, s6, 3
    s_add_u32 s20, s20, s7
    s_lshr_b32 s7, s5, 1
    s_lshl_b32 s7, s7, 3
    s_lshr_b32 s21, s6, 2
    s_add_u32 s21, s21, s7
    s_lshr_b32 s22, s21, 4
    s_and_b32 s23, s21, 15
    s_mul_i32 s24, s21, {BLK}
    s_mul_i32 s25, s20, 144
    s_mov_b32 s3, 0
    s_mov_b32 s100, 0
    s_mov_b32 s101, 0
    v_mov_b32 v68, 0
    v_lshlrev_b32 {vL}, 4, v0
    s_lshl_b32 s26, s4, 10
    s_add_u32 s26, s26, {XI}
    s_lshl_b32 s69, s21, 3
    s_add_u32 s69, s69, s20
    s_lshl_b32 s91, s4, 7
    s_add_u32 s70, s91, 64
    s_mov_b32 s85, 2
    s_cmp_ge_u32 s69, 240
    s_cbranch_scc1 M_pk_none
    s_cmp_ge_u32 s69, 144
    s_cbranch_scc1 M_pk_wo
    s_mov_b32 s85, 0
    """)
    dec_qkv(k, "s69", 0, "s88", "s89", "s87", "s90", "s29")
    woff27(k, "v10", "s91", "s87")
    woff27(k, "v11", "s70", "s87")
    k(f"""
    s_waitcnt lgkmcnt(0)
    s_mov_b32 s76, s34
    s_mov_b32 s77, s35
    s_mov_b32 s78, {WQB}
    s_branch M_pk_go
    """)
    k.label("M_pk_wo")
    k(f"""
    s_mov_b32 s85, 1
    s_sub_u32 s5, s69, 144
    s_cmp_ge_u32 s5, 48
    s_cselect_b32 s6, 48, 0
    s_mov_b32 s88, {PO[0]}
    s_cselect_b32 s88, {PO[1]}, s88
    s_cselect_b32 s29, 24, 0
    s_cselect_b32 s90, 1, 0
    s_sub_u32 s5, s5, s6
    s_mul_i32 s6, s5, 43
    s_lshr_b32 s6, s6, 8
    s_mul_i32 s7, s6, 6
    s_sub_u32 s7, s5, s7
    s_mul_i32 s97, s5, 13824
    s_add_u32 s88, s88, s97
    s_mul_i32 s89, s7, {96*1152}
    s_mul_i32 s87, s6, 144
    s_lshl_b32 s97, s6, 7
    s_add_u32 s29, s29, s97
    s_lshl_b32 s97, s7, 2
    s_add_u32 s29, s29, s97
    s_add_u32 s29, s29, {PF + 72}
    """)
    woff9(k, "v10", "s91", "s87")
    woff9(k, "v11", "s70", "s87")
    k(f"""
    s_waitcnt lgkmcnt(0)
    s_cmp_eq_u32 s90, 1
    s_cselect_b64 s[76:77], s[42:43], s[36:37]
    s_mov_b32 s78, {WOB}
    s_branch M_pk_go
    """)
    k.label("M_pk_none")
    k(f"""
    s_waitcnt lgkmcnt(0)
    s_mov_b32 s76, s36
    s_mov_b32 s77, s37
    s_mov_b32 s78, 0
    s_mov_b32 s89, 0
    s_mov_b32 s88, 0
    s_mov_b32 s29, 0
    s_mov_b32 s90, 0
    v_mov_b32 v10, 0
    v_mov_b32 v11, 0
    """)
    k.label("M_pk_go")
    k(f"""
    s_mov_b32 s79, 0x20000
    s_lshl_b32 s71, s4, 11
    s_add_u32 m0, s71, {PS1}
    s_setprio 3
    buffer_load_dwordx4 v10, s[76:79], s89 offen lds
    s_add_u32 m0, s71, {PS1 + 1024}
    s_nop 0
    buffer_load_dwordx4 v11, s[76:79], s89 offen lds
    s_setprio 2
    s_or_b32 s5, s2, s4
    s_cmp_lg_u32 s5, 7
    s_cbranch_scc1 M_nonce_skip
    s_cmp_lg_u32 s2, 0
    s_cbranch_scc1 M_nonce_skip
    s_memrealtime s[98:99]
    s_waitcnt lgkmcnt(0)
    s_or_b32 s101, s98, 1
    s_mov_b64 exec, 1
    v_mov_b32 v2, 0
    v_mov_b32 v3, s101
    global_store_dword v2, v3, s[46:47] sc1
    s_mov_b64 exec, -1
    """)
    k.label("M_nonce_skip")
    stamp(k)
    if 't' in EXP:
        k(f"""
        s_mov_b32 s12, s48
        s_mov_b32 s13, s49
        s_mov_b32 s14, {WSZ}
        s_mov_b32 s15, 0x20000
        v_lshlrev_b32 v2, 16, v0
        s_lshl_b32 s5, s4, 22
        buffer_load_dword v162, v2, s[12:15], s5 offen
        """)
    k(f"""
    s_mov_b32 s72, s32
    s_mov_b32 s73, s33
    s_mov_b32 s74, {XB}
    s_mov_b32 s75, 0x20000
    s_mov_b32 s27, 0
    s_lshl_b32 s5, s4, 3
    s_add_u32 s5, s5, 8
    """)
    xoff0(k, vX0, "s5")
    k("s_mov_b32 s5, 72")
    xoff0(k, vX0b, "s5")
    def xs(rng, lab):
        k(f"s_cmp_eq_u32 s4, 7\ns_cbranch_scc1 {lab}_7")
        for s_ in rng: x0_dma(k, s_, False)
        k(f"s_branch {lab}_j")
        k.label(f"{lab}_7")
        for s_ in rng: x0_dma(k, s_, True)
        k.label(f"{lab}_j")
    xs(range(0, 2), "M_xa")
    if 'g' in EXP: stamp(k)
    k(f"""
    s_mov_b32 s12, s48
    s_mov_b32 s13, s49
    s_mov_b32 s14, {WSZ}
    s_mov_b32 s15, 0x20000
    s_mov_b32 s16, s48
    s_mov_b32 s17, s49
    s_mov_b32 s18, {WSZ}
    s_mov_b32 s19, 0x20000
    s_mov_b32 s92, s44
    s_mov_b32 s93, s45
    s_mov_b32 s94, {XB}
    s_mov_b32 s95, 0x20000
    s_mul_i32 s96, s20, {18*13824}
    s_add_u32 s28, s96, {PQ[1]}
    s_add_u32 s86, s96, {PQ[0]}
    s_add_u32 s31, s4, 5
    s_mov_b32 s30, s4
    s_cmp_lt_u32 s4, 5
    s_cbranch_scc1 M_tiles_ok
    s_lshl_b32 s30, s4, 1
    s_add_u32 s31, s30, 1
    """)
    k.label("M_tiles_ok")
    k(f"""
    s_lshl_b32 s5, s30, 10
    v_add_u32 {vW0}, s5, {vL}
    s_lshl_b32 s5, s31, 10
    v_add_u32 {vW1}, s5, {vL}
    v_and_b32 v2, 15, v0
    v_lshrrev_b32 v3, 4, v0
    v_lshlrev_b32 v6, 4, v2
    v_lshl_add_u32 {vA}, v3, 10, v6
    v_add_u32 {vA}, {XI}, {vA}
    v_add_u32 {vAh}, {HI}, {vA}
    v_and_b32 v8, 0x70, v6
    v_lshl_add_u32 {vH}, v3, 7, v8
    v_add_u32 {vH}, {HALO}, {vH}
    v_lshrrev_b32 v8, 3, v0
    v_and_b32 v9, 7, v0
    v_lshlrev_b32 v9, 4, v9
    v_lshl_add_u32 v8, v8, 10, v9
    v_add_u32 v8, 896, v8
    v_bfrev_b32 v9, 1
    s_cmp_eq_u32 s23, 0
    s_cselect_b64 vcc, -1, 0
    s_and_b32 s6, s4, 3
    s_lshl_b32 s6, s6, 4
    v_cndmask_b32 {vX2}, v8, v9, vcc
    v_add_u32 v8, s6, v2
    v_lshrrev_b32 v9, 1, v3
    v_lshlrev_b32 v9, 10, v9
    v_lshl_add_u32 v9, v8, 4, v9
    v_and_b32 v10, 1, v3
    v_lshl_add_u32 v9, v10, 3, v9
    s_lshr_b32 s7, s4, 2
    s_mul_i32 s5, s7, 6144
    v_add_u32 {vBO}, s5, v9
    s_lshl_b32 s5, s23, 6
    v_add_u32 v8, s5, v8
    v_lshlrev_b32 v8, 1, v8
    v_add_u32 v8, s22, v8
    v_mul_u32_u24 v8, 1152, v8
    v_lshl_add_u32 v8, v3, 3, v8
    s_mul_i32 s7, s7, 96
    s_add_u32 s7, s7, s25
    v_add_u32 {vBN}, s7, v8
    v_and_b32 v8, 7, v0
    v_lshl_add_u32 v197, v3, 3, v8
    v_lshlrev_b32 v197, 4, v197
    v_and_b32 v9, 8, v0
    v_cmp_eq_u32 s[50:51], 0, v9
    s_cmp_lg_u32 s4, 6
    s_cbranch_scc1 M_nh
    v_add_u32 {vW1}, {13*1024}, v197
    """)
    k.label("M_nh")
    k(f"""
    v_bfe_u32 v9, v0, 1, 3
    v_xor_b32 v9, v9, v3
    v_lshlrev_b32 v9, 4, v9
    v_lshl_add_u32 v9, v2, 7, v9
    v_add_u32 v{nA[0]}, {XI + 1024}, v9
    v_xor_b32 v{nA[1]}, 64, v{nA[0]}
    v_add_u32 v{nA[2]}, {HI0}, v{nA[0]}
    v_add_u32 v{nA[3]}, {HI0}, v{nA[1]}
    v_bfe_u32 v9, v0, 1, 2
    v_or_b32 v9, 4, v9
    v_xor_b32 v9, v9, v3
    v_lshlrev_b32 v9, 4, v9
    v_lshl_add_u32 v9, v8, 7, v9
    v_add_u32 v{nH[0]}, {XI}, v9
    v_xor_b32 v{nH[1]}, 64, v{nH[0]}
    v_add_u32 v{nH[2]}, {HI0}, v{nH[0]}
    v_add_u32 v{nH[3]}, {HI0}, v{nH[1]}
    v_bfe_u32 v9, v0, 2, 2
    v_lshlrev_b32 v9, 1, v9
    v_lshl_add_u32 v194, v3, 3, v9
    v_and_b32 v195, 3, v0
    v_lshlrev_b32 v195, 3, v195
    v_mul_u32_u24 v196, 432, v194
    v_add_u32 v196, v196, v195
    v_bfe_u32 v9, v0, 1, 1
    v_lshlrev_b32 v9, 7, v9
    v_add_u32 v9, 128, v9
    v_add_u32 v198, v196, v9
    """)
    for i in range(4): k(f"v_mov_b32 v{ONE0+i}, 0x3f803f80")
    k(f"""
    s_mov_b32 s64, {PS1}
    s_cmp_eq_u32 s4, 7
    s_cbranch_scc1 M_w7skip
    s_waitcnt vmcnt(2)
    """)
    k.label("M_w7skip")
    k(f"""
    s_cmp_lg_u32 s4, 7
    s_cbranch_scc1 M_nonce_done
    s_mov_b32 s18, 0
    s_mov_b64 exec, 1
    v_mov_b32 v2, 0
    s_mov_b32 s5, 0x40000
    """)
    k.label("M_nonce_loop")
    k(f"""
    global_load_dword v3, v2, s[46:47] sc1
    s_waitcnt vmcnt(0)
    v_readfirstlane_b32 s101, v3
    s_cmp_lg_u32 s101, 0
    s_cbranch_scc1 M_nonce_ok
    s_sleep 2
    s_sub_u32 s5, s5, 1
    s_cmp_lg_u32 s5, 0
    s_cbranch_scc1 M_nonce_loop
    """)
    k.label("M_nonce_ok")
    k("s_mov_b64 exec, -1")
    k.label("M_nonce_done")
    if 'g' in EXP: stamp(k)
    k(f"""
    s_barrier
    s_call_b64 s[58:59], M_pack
    """)
    if 'g' in EXP: stamp(k)
    k("s_setprio 0")
    xs(range(2, 9), "M_xc")
    k(f"""
    s_mov_b32 s8, s40
    s_mov_b32 s9, s41
    s_mov_b32 s11, 0x20000
    s_sub_u32 s5, s69, 112
    s_cmp_ge_u32 s69, 112
    s_cselect_b32 s65, 0, 2
    s_cselect_b32 s10, {WQB}, 0
    s_cselect_b32 s5, s5, 0
    """)
    dec_qkv(k, "s5", 1, "s66", "s89", "s87", "s67", "s68")
    woff27(k, "v10", "s91", "s87")
    woff27(k, "v11", "s70", "s87")
    k(f"""
    s_add_u32 m0, s71, {PS2}
    s_nop 0
    buffer_load_dwordx4 v10, s[8:11], s89 offen lds
    s_add_u32 m0, s71, {PS2 + 1024}
    s_nop 0
    buffer_load_dwordx4 v11, s[8:11], s89 offen lds
    """)
    for ct in range(3):
        k(f"buffer_load_dwordx2 {vr(RES+2*ct,2)}, {vBN}, s[72:75], 0 offen offset:{32*ct}")
    k(f"""
    s_waitcnt vmcnt(12)
    s_barrier
    """)
    if 'g' in EXP: stamp(k)
    k(f"""
    s_cmp_lg_u32 s4, 7
    s_cbranch_scc1 M_nf1
    s_cmp_eq_u32 s85, 2
    s_cbranch_scc1 M_nf1
    """)
    flag_store(k, "s29", "0")
    k.label("M_nf1")
    k(f"""
    s_mov_b32 s85, s65
    s_mov_b32 s88, s66
    s_mov_b32 s90, s67
    s_mov_b32 s64, {PS2}
    s_waitcnt vmcnt(0)
    s_barrier
    s_call_b64 s[58:59], M_pack
    """)
    if 'g' in EXP: stamp(k)
    k(f"""
    s_cmp_lg_u32 s4, 7
    s_cbranch_scc1 M_np2
    v_lshlrev_b32 v2, 2, v0
    s_lshl_b32 s91, s20, 7
    s_add_u32 s91, s91, {PF + 1024}
    s_mov_b64 exec, 0x3ffff
    """)
    poll_simple(k, "M_pollPF2", "v3")
    k.label("M_np2")
    k(f"""
    s_barrier
    s_mov_b32 s29, {PCS[0]}
    s_cmp_eq_u32 s4, 4
    s_cbranch_scc1 M_P2
    s_cmp_eq_u32 s4, 7
    s_cbranch_scc1 M_P4
    s_cmp_gt_u32 s4, 4
    s_cbranch_scc1 M_P3
    s_branch M_P1
    """)
    k.label("M_pack")
    k(f"""
    s_cmp_eq_u32 s85, 2
    s_cbranch_scc1 M_pk_done
    s_cmp_eq_u32 s85, 1
    s_cbranch_scc1 M_pk_pwo
    s_lshl_b32 s5, s4, 5
    s_cmp_gt_u32 s4, 4
    s_cselect_b32 s6, 16, 0
    s_sub_u32 s5, s5, s6
    s_add_u32 s5, s5, s64
    v_add_u32 v199, s5, v196
    v_add_u32 v200, s64, v198
    s_cmp_eq_u32 s4, 4
    s_cselect_b64 vcc, -1, 0
    s_lshl_b32 s5, s4, 5
    s_add_u32 s5, s5, 256
    s_add_u32 s5, s5, s64
    v_cndmask_b32 v199, v199, v200, vcc
    s_cmp_eq_u32 s4, 0
    s_cselect_b32 s6, 16, 0
    s_sub_u32 s5, s5, s6
    v_add_u32 v200, s5, v196
    ds_read_b64_tr_b16 v[204:205], v199
    ds_read_b64_tr_b16 v[206:207], v199 offset:432
    ds_read_b64_tr_b16 v[208:209], v200
    ds_read_b64_tr_b16 v[210:211], v200 offset:432
    v_and_b32 v220, 15, v0
    v_lshlrev_b32 v201, 2, v220
    s_lshl_b32 s5, s4, 6
    s_cmp_gt_u32 s4, 4
    s_cselect_b32 s6, {2304-320}, 0
    s_add_u32 s5, s5, s6
    v_add_u32 v202, s5, v201
    v_lshrrev_b32 v203, 3, v220
    v_mul_u32_u24 v203, {2304-32}, v203
    v_add_u32 v203, v202, v203
    v_cndmask_b32 v202, v202, v203, vcc
    s_lshl_b32 s5, s4, 6
    s_cmp_eq_u32 s4, 0
    s_movk_i32 s6, {4608-64}
    s_cselect_b32 s6, {2304+192}, s6
    s_add_u32 s5, s5, s6
    v_add_u32 v203, s5, v201
    s_lshl_b32 s5, s4, 10
    s_add_u32 s5, s5, s88
    s_waitcnt lgkmcnt(0)
    buffer_store_dwordx4 v[204:207], {vL}, s[12:15], s5 offen sc1
    v_mfma_f32_16x16x32_bf16 v[212:215], {vr(ONE0,4)}, v[204:207], 0
    s_add_u32 s5, s5, 8192
    v_mfma_f32_16x16x32_bf16 v[216:219], {vr(ONE0,4)}, v[208:211], 0
    s_cmp_gt_u32 s4, 5
    s_cbranch_scc1 M_pk_q1
    s_cmp_eq_u32 s4, 5
    s_cbranch_scc1 M_pk_q13
    buffer_store_dwordx4 v[208:211], {vL}, s[12:15], s5 offen sc1
    s_nop 7
    s_mov_b64 exec, 0xffff
    buffer_store_dword v216, v203, s[12:15], s90 offen sc1
    s_branch M_pk_q1
    """)
    k.label("M_pk_q13")
    k(f"""
    s_mov_b64 exec, s[50:51]
    buffer_store_dwordx4 v[208:211], v197, s[12:15], s5 offen sc1
    s_nop 7
    s_mov_b64 exec, 0xff
    buffer_store_dword v216, v203, s[12:15], s90 offen sc1
    """)
    k.label("M_pk_q1")
    k(f"""
    s_nop 7
    s_mov_b64 exec, 0xffff
    buffer_store_dword v212, v202, s[12:15], s90 offen sc1
    s_mov_b64 exec, -1
    s_branch M_pk_done
    """)
    k.label("M_pk_pwo")
    k(f"""
    v_mul_u32_u24 v199, 144, v194
    v_add_u32 v199, v199, v195
    """)
    for i in range(2):
        k(f"""
        s_add_u32 s5, s4, {8*i}
        s_mul_i32 s6, s5, 52
        s_lshr_b32 s6, s6, 8
        s_mul_i32 s7, s6, 5
        s_sub_u32 s7, s5, s7
        s_mul_i32 s60, s6, 4608
        s_lshl_b32 s61, s7, 5
        s_add_u32 s61, s61, s60
        s_add_u32 s61, s61, s64
        v_add_u32 v200, s61, v199
        ds_read_b64_tr_b16 {vr(204+4*i,2)}, v200
        ds_read_b64_tr_b16 {vr(206+4*i,2)}, v200 offset:144
        s_lshl_b32 s61, s7, 10
        s_add_u32 s61, s61, s60
        s_add_u32 s61, s61, s88
        s_waitcnt lgkmcnt(0)
        s_cmp_eq_u32 s5, 15
        s_cbranch_scc1 M_pk_wo_s{i}
        s_cmp_eq_u32 s7, 4
        s_cbranch_scc1 M_pk_wo_h{i}
        buffer_store_dwordx4 {vr(204+4*i,4)}, {vL}, s[12:15], s61 offen sc1
        s_branch M_pk_wo_s{i}
        """)
        k.label(f"M_pk_wo_h{i}")
        k(f"""
        s_mov_b64 exec, s[50:51]
        buffer_store_dwordx4 {vr(204+4*i,4)}, v197, s[12:15], s61 offen sc1
        s_mov_b64 exec, -1
        """)
        k.label(f"M_pk_wo_s{i}")
    k.label("M_pk_done")
    k("s_setpc_b64 s[58:59]")
    for p in ['P1', 'P2', 'P3', 'P4']:
        k.label(f"M_{p}")
        gen_prog(k, p)
    k.label("M_att")
    gen_att(k)
    gen_Bphase(k)
    k.label("M_exit")
    k("s_endpgm")

def poll_core(k, name):
    k(f"""
    s_mov_b32 s5, 0x20000
    buffer_load_dword v8, v2, s[12:15], s91 offen sc1
    s_sleep 2
    buffer_load_dword v9, v2, s[12:15], s91 offen sc1
    s_sleep 2
    """)
    k.label(f"{name}_loop")
    for r in (10, 8, 9):
        chk = {10: 8, 8: 9, 9: 10}[r]
        k(f"""
        buffer_load_dword v{r}, v2, s[12:15], s91 offen sc1
        s_waitcnt vmcnt(2)
        v_cmp_eq_u32 vcc, s101, v{chk}
        s_nop 1
        s_cmp_eq_u64 vcc, exec
        s_cbranch_scc1 {name}_ok
        """)
    k(f"""
    s_sub_u32 s5, s5, 1
    s_cmp_lg_u32 s5, 0
    s_cbranch_scc1 {name}_loop
    """)
    k.label(f"{name}_ok")
    k("s_mov_b64 exec, -1")

def poll_simple(k, name, vtmp):
    k("s_mov_b32 s5, 0x40000")
    k.label(f"{name}_loop")
    k(f"""
    buffer_load_dword {vtmp}, v2, s[12:15], s91 offen sc1
    s_waitcnt vmcnt(0)
    v_cmp_eq_u32 vcc, s101, {vtmp}
    s_nop 1
    s_cmp_eq_u64 vcc, exec
    s_cbranch_scc1 {name}_ok
    s_sleep 2
    s_sub_u32 s5, s5, 1
    s_cmp_lg_u32 s5, 0
    s_cbranch_scc1 {name}_loop
    """)
    k.label(f"{name}_ok")
    k("s_mov_b64 exec, -1")

def poll(k, name, two):
    k(f"""
    s_cmp_lg_u32 s4, 7
    s_cbranch_scc1 {name}_done
    v_and_b32 v2, 7, v0
    v_lshlrev_b32 v2, 2, v2
    """)
    if two:
        k(f"""
        s_cmp_eq_u32 s23, 0
        s_cselect_b32 s5, 128, 0
        v_and_b32 v3, 8, v0
        v_lshlrev_b32 v3, 4, v3
        v_max_u32 v3, s5, v3
        v_add_u32 v2, v2, v3
        s_sub_u32 s91, s91, 128
        s_mov_b64 exec, 0xffff
        """)
    else:
        k("s_mov_b64 exec, 0xff")
    poll_core(k, name)
    k.label(f"{name}_done")
    k("s_barrier")

def flag_store(k, soff, voff_expr):
    k(f"""
    s_mov_b64 exec, 1
    v_mov_b32 v2, {voff_expr}
    v_mov_b32 v3, s101
    buffer_store_dword v3, v2, s[12:15], {soff} offen sc1
    s_mov_b64 exec, -1
    """)

def signal(k, name, extra=None):
    k(f"""
    s_waitcnt vmcnt(0)
    s_barrier
    s_cmp_lg_u32 s4, 7
    s_cbranch_scc1 {name}_ns
    s_lshl_b32 s5, s20, 2
    """)
    flag_store(k, "s91", "s5")
    if extra: extra()
    k.label(f"{name}_ns")

def wo_dma(k):
    k(f"""
    s_min_u32 s6, s87, {80*1024}
    s_add_u32 m0, s6, {WOL}
    s_add_u32 s7, s6, s89
    buffer_load_dwordx4 {vL}, s[12:15], s7 offen lds
    s_add_u32 s87, s87, 7168
    """)
def wo_setup(k):
    k(f"""
    s_and_b32 s5, s3, 1
    s_cmp_eq_u32 s5, 0
    s_mov_b32 s89, {PO[1]}
    s_cselect_b32 s89, {PO[0]}, s89
    s_mul_i32 s5, s20, {18*4608}
    s_add_u32 s89, s89, s5
    s_lshl_b32 s87, s4, 10
    s_add_u32 s87, s87, {NLATE*1024}
    """)
def x_setup(k):
    k(f"""
    s_mul_i32 s27, s3, {XSTR}
    s_add_u32 s27, s27, s24
    s_sub_u32 s85, s27, {BLK}
    s_lshl_b32 s5, s4, 10
    s_add_u32 s27, s27, s5
    """)
def wn_load(ks):
    return [f"s_add_u32 s84, s28, {ks*13824}\nbuffer_load_dwordx4 {vr(WF + 8*ks, 4)}, {vW0}, s[16:19], s84 offen",
            f"buffer_load_dwordx4 {vr(WF + 8*ks + 4, 4)}, {vW1}, s[16:19], s84 offen"]
def guarded0(k, name, kss, nwo=0):
    k(f"s_cmp_lg_u32 s3, 0\ns_cbranch_scc1 {name}\ns_cmp_eq_u32 s4, 7\ns_cbranch_scc1 {name}")
    for _ in range(nwo): wo_dma(k)
    for ks in kss:
        for t in wn_load(ks): k(t)
    k.label(name)

LAG = 8
BARS = {1: 2, 5: 4, 9: 6, 13: 8}
eT, eN, eF0, eF1, aQ, aK, aO, vT = "v224", "v225", "v226", "v227", "v228", "v229", "v230", "v231"
CB = 232

def setup_list():
    L = f"""
    v_and_b32 v2, 15, v0
    v_lshrrev_b32 {vT}, 4, v0
    v_lshlrev_b32 {eT}, 2, v2
    v_lshlrev_b32 {eN}, 4, {vT}
    v_lshlrev_b32 v6, 3, v0
    s_mul_i32 s5, s30, 2560
    v_add_u32 {eF0}, s5, v6
    s_mul_i32 s5, s31, 2560
    v_add_u32 {eF1}, s5, v6
    s_and_b32 s97, s4, 3
    s_lshr_b32 s6, s4, 2
    s_lshl_b32 s5, s97, 9
    s_mul_i32 s7, s6, 2560
    s_add_u32 s7, s7, s5
    v_add_u32 {aQ}, s7, v6
    v_add_u32 v6, 256, v6
    v_and_b32 v6, 0x1ff, v6
    s_add_u32 s5, s5, {FR + 4*2560}
    v_add_u32 v6, s5, v6
    v_add_u32 {aK}, {FR + 8*2560}, {aQ}
    s_cmp_eq_u32 s6, 1
    s_cselect_b64 vcc, -1, 0
    s_lshl_b32 s5, s97, 4
    v_add_u32 v3, s5, v2
    v_cndmask_b32 {aK}, {aK}, v6, vcc
    v_lshlrev_b32 v3, 4, v3
    v_lshrrev_b32 v6, 1, {vT}
    v_lshl_add_u32 v3, v6, 10, v3
    v_and_b32 v6, 1, {vT}
    v_lshl_add_u32 v3, v6, 3, v3
    s_lshl_b32 s7, s6, 11
    s_add_u32 s7, s7, {OIMG}
    v_add_u32 {aO}, s7, v3
    v_lshlrev_b32 v3, 2, {vT}
    v_add_u32 v6, 2, v3
    s_lshl_b32 s76, s6, 1
    s_add_u32 s77, s76, 2
    s_add_u32 s78, s76, 4
    s_add_u32 s79, s76, 6
    v_cmp_le_u32 s[60:61], s76, v3
    v_cmp_le_u32 s[62:63], s76, v6
    v_cmp_gt_u32 s[64:65], s77, v3
    v_cmp_gt_u32 s[66:67], s77, v6
    v_cmp_le_u32 s[50:51], s78, v3
    v_cmp_le_u32 s[52:53], s78, v6
    v_cmp_gt_u32 s[54:55], s79, v3
    v_cmp_gt_u32 s[56:57], s79, v6
    v_cmp_le_u32 s[80:81], v3, v2
    v_sub_u32 v6, v2, v3
    v_mov_b32 v2, 0xf149f2ca
    s_or_b32 s5, s97, s23
    s_cmp_lg_u32 s5, 0
    s_cselect_b32 s5, 8, 0
    """
    for i in range(4):
        L += f"""
        v_add_u32 v3, {16-i}, v6
        v_cmp_gt_u32 s[76:77], s5, v3
        v_subrev_u32 v3, {i}, v6
        v_cmp_gt_u32 s[78:79], 8, v3
        s_nop 0
        v_cndmask_b32 v{CB+i}, v2, 0, s[76:77]
        v_cndmask_b32 v{CB+4+i}, v2, 0, s[78:79]
        """
    return [x.strip() for x in L.strip().split("\n") if x.strip()]

def cs_lds_addr(k, p):
    k(f"""
    v_lshrrev_b32 v3, 4, v0
    v_and_b32 v2, 15, v0
    """)
    if p == 'P1':
        k(f"""
        s_lshl_b32 s5, s4, 6
        s_add_u32 s5, s5, {CSL}
        v_lshlrev_b32 v6, 4, v3
        v_add_u32 v69, s5, v6
        v_add_u32 v71, 288, v69
        """)
    elif p == 'P2':
        k(f"""
        v_lshlrev_b32 v6, 4, v3
        v_lshrrev_b32 v69, 1, v3
        v_lshlrev_b32 v69, 8, v69
        v_add3_u32 v69, v69, v6, 0
        v_add_u32 v69, {CSL + 256}, v69
        v_lshlrev_b32 v71, 2, v2
        v_add_u32 v71, {CSL + 576}, v71
        """)
    else:
        k(f"""
        s_lshl_b32 s5, s30, 6
        s_add_u32 s5, s5, {CSL}
        v_lshlrev_b32 v6, 2, v2
        v_add_u32 v69, s5, v6
        v_add_u32 v71, 64, v69
        """)

def gen_prog(k, p):
    cols = [dict(c) for c in PROGS[p]]
    a = ACC
    for c in cols:
        c['acc'] = {}
        for rt in c['rts']:
            c['acc'][rt] = a; a += 4
    nacc = a
    hasW = p != 'P4'
    ONES = WF
    vq = []
    def vwait(tag, extra=""):
        idx = -1
        for i, t in enumerate(vq):
            if t == tag: idx = i
        if idx >= 0:
            k(f"s_waitcnt vmcnt({len(vq)-1-idx}){extra}")
            del vq[:idx+1]
        elif extra: k(f"s_waitcnt{extra}")
    def mfma(c, ci, rt, wf, x, ones):
        d = vr(c['acc'][rt], 4)
        if c['kind'] == 'T': k(f"v_mfma_f32_16x16x32_bf16 {d}, {wf}, {x}, {d}")
        elif c['kind'] == 'N': k(f"v_mfma_f32_16x16x32_bf16 {d}, {x}, {wf}, {d}")
        elif c['kind'] == 'S': k(f"v_mfma_f32_16x16x32_bf16 {d}, {x}, {x}, {d}")
        else: k(f"v_mfma_f32_16x16x32_bf16 {d}, {ones}, {x}, {d}")
    D0 = 10
    def rd0(ks):
        base = A0 if ks % 2 == 0 else A1
        off = (ks // 2)*XS0
        h = 2 if off >= HI0 else 0
        o = off - (HI0 if h else 0)
        k(f"ds_read_b128 {vr(base,4)}, v{nH[h + ks % 2]} offset:{o}")
        for rt in range(1, 5):
            k(f"ds_read_b128 {vr(base+4*rt,4)}, v{nA[h + ks % 2]} offset:{o + (rt-1)*2048}")
    def issue_w0(ks):
        if not hasW: return
        for c in range(2):
            k(f"buffer_load_dwordx4 {vr(WF + 8*ks + 4*c, 4)}, {vW0 if c == 0 else vW1}, s[16:19], s86 offen")
            vq.append(('w', ks))
        k(f"s_add_u32 s86, s86, 13824")
    def issue_x(s):
        k(f"""
        s_add_u32 m0, s26, {s*8192}
        s_nop 0
        buffer_load_dwordx4 {vL}, s[12:15], s27 offen{XSC} lds
        s_add_u32 s27, s27, 8192
        """)
        vq.append(('x', s))
        if p == 'P4':
            k(f"""
            s_mov_b32 m0, {HALO + s*1024}
            s_nop 0
            buffer_load_dwordx4 {vX2}, s[12:15], s85 offen{XSC} lds
            s_add_u32 s85, s85, 8192
            """)
            vq.append(('x', s))
    def issue_wn(ks):
        if not hasW: return
        for t in wn_load(ks): k(t); vq.append(('wn', ks))
    def rdA(ks):
        base = A0 if ks % 2 == 0 else A1
        k(f"ds_read_b128 {vr(base,4)}, {vH} offset:{ks*512}")
        for rt in range(1, 5):
            off = ks*4096 + (rt-1)*256
            if off >= HI: k(f"ds_read_b128 {vr(base+4*rt,4)}, {vAh} offset:{off-HI}")
            else: k(f"ds_read_b128 {vr(base+4*rt,4)}, {vA} offset:{off}")
    def main_loop(first):
        del vq[:]
        rd = rd0 if first else rdA
        if first:
            for s in range(5):
                k(f"s_setprio {max(3-s,0)}")
                issue_w0(2*s); issue_w0(2*s+1)
            wo_setup(k)
        else:
            for s in range(4):
                k(f"s_setprio {3-s}")
                issue_x(s)
        su = setup_list()
        for r in range(ACC, nacc): k(f"v_mov_b32 v{r}, 0")
        if hasW: cs_lds_addr(k, p)
        else:
            for i in range(4): k(f"v_mov_b32 v{ONES+i}, 0x3f803f80")
            k(f"""
            s_setprio 1
            v_mul_u32_u24 v2, 3641, v0
            v_lshrrev_b32 v2, 16, v2
            v_mul_u32_u24 v3, {2304-288}, v2
            v_lshl_add_u32 v69, v0, 4, v3
            s_lshl_b32 s5, s25, 1
            s_add_u32 s29, s29, s5
            """)
        if not first:
            vwait(('x', 0))
            k("s_barrier")
        stamp(k)
        rd(0)
        for ks in range(18):
            base = A0 if ks % 2 == 0 else A1
            if ks + 1 < 18:
                if not first and ks in BARS:
                    vwait(('x', BARS[ks]))
                    k("s_barrier")
                if first and ks == 3:
                    if not hasW: k("s_waitcnt vmcnt(0)"); del vq[:]
                    k("s_barrier")
                    if not hasW:
                        k(f"s_cmp_eq_u32 s65, 2\ns_cbranch_scc1 M_P4_nf2")
                        flag_store(k, "s68", "0")
                        k.label("M_P4_nf2")
                if first and ks == 11:
                    if not hasW:
                        k(f"""
                        v_lshlrev_b32 v2, 2, v0
                        s_lshl_b32 s91, s20, 7
                        s_add_u32 s91, s91, {PF}
                        s_mov_b64 exec, 0x3fffffff
                        """)
                        poll_simple(k, "M_pollPF", "v3"); del vq[:]
                    k("s_barrier")
                rd(ks + 1)
                k("s_waitcnt lgkmcnt(5)")
            else:
                k("s_waitcnt lgkmcnt(0)")
            if first: vwait(('w', ks))
            for ci, c in enumerate(cols):
                wf = vr(WF + 8*ks + 4*ci, 4)
                for rt in c['rts']:
                    mfma(c, ci, rt, wf, vr(base+4*rt, 4), vr(ONES,4))
                    if ks >= 16:
                        for _ in range(5):
                            if su: k(su.pop(0))
                if ci == 0:
                    if not first and ks % 2 == 0 and ks // 2 + 4 < 9: issue_x(ks // 2 + 4)
                    if first and ks + D0 < 18: issue_w0(ks + D0)
            if not first and LAG <= ks < 16: issue_wn(ks - LAG)
            if hasW:
                n = 0
                if not first and ks in (1, 3, 5, 7, 9): n = 1
                if first and 11 <= ks < 16: n = 3 if ks == 11 else 2
                for _ in range(n):
                    wo_dma(k); vq.append(('wo', 0))
            if not hasW:
                if 1 <= ks <= 9:
                    for i in range(2):
                        r = 2*(ks-1) + i
                        k(f"buffer_load_dwordx4 {vr(120+4*r,4)}, v69, s[12:15], s29 offen\ns_add_u32 s29, s29, 8192")
                        vq.append(('pcs', r))
                if ks == 12:
                    vwait(('pcs', 17))
                    for r in range(9):
                        for h in range(2): k(f"v_pk_add_f32 {vr(120+4*r+2*h,2)}, {vr(120+4*r+2*h,2)}, {vr(120+4*(r+9)+2*h,2)}")
                if ks == 13:
                    for r in range(1, 9):
                        for h in range(2): k(f"v_pk_add_f32 {vr(120+2*h,2)}, {vr(120+2*h,2)}, {vr(120+4*r+2*h,2)}")
                    k(f"""
                    s_mov_b32 exec_hi, 0x3fffff
                    ds_write_b128 {vL}, v[120:123] offset:{CSL}
                    s_mov_b64 exec, -1
                    """)
        while su: k(su.pop(0))
        if not first:
            issue_wn(8); issue_wn(9)
    main_loop(True)
    k(f"s_branch M_{p}_epi")
    k.label(f"M_{p}_loop")
    main_loop(False)
    k.label(f"M_{p}_epi")
    k("s_nop 7")
    stamp(k)
    if p == 'P4':
        S = cols[0]; R = cols[1]
        k(f"""
        v_and_b32 v2, 15, v0
        v_lshrrev_b32 v6, 2, v2
        v_cmp_eq_u32 s[68:69], {vT}, v6
        v_and_b32 v6, 3, v0
        v_cmp_eq_u32 s[70:71], 1, v6
        v_cmp_eq_u32 s[72:73], 2, v6
        v_cmp_eq_u32 s[74:75], 3, v6
        s_mov_b32 s58, 0x3ae38e39
        s_mov_b32 s59, 0x3727c5ac
        """)
        ops = [
            lambda rt, s, r: f"v_cndmask_b32 v{8+rt}, v{s}, v{s+1}, s[70:71]",
            lambda rt, s, r: f"v_cndmask_b32 v{8+rt}, v{8+rt}, v{s+2}, s[72:73]",
            lambda rt, s, r: f"v_cndmask_b32 v{8+rt}, v{8+rt}, v{s+3}, s[74:75]",
            lambda rt, s, r: f"v_mul_f32 v{16+rt}, s58, v{r}",
            lambda rt, s, r: f"v_mul_f32 v{8+rt}, s58, v{8+rt}",
            lambda rt, s, r: f"v_fma_f32 v{8+rt}, -v{16+rt}, v{16+rt}, v{8+rt}",
            lambda rt, s, r: f"v_max_f32 v{8+rt}, 0, v{8+rt}",
            lambda rt, s, r: f"v_add_f32 v{8+rt}, s59, v{8+rt}",
            lambda rt, s, r: f"v_rsq_f32 v{8+rt}, v{8+rt}",
            lambda rt, s, r: f"v_mul_f32 v{16+rt}, v{16+rt}, v{8+rt}",
        ]
        for op in ops:
            for rt in range(5): k(op(rt, S['acc'][rt], R['acc'][rt]))
        k("s_mov_b64 exec, s[68:69]")
        for rt in range(5):
            k(f"ds_write2_b32 {eT}, v{8+rt}, v{16+rt} offset0:{16*rt} offset1:{80+16*rt}")
        k("s_mov_b64 exec, -1")
        k("s_setprio 0")
        k("s_waitcnt lgkmcnt(0)")
        k("s_barrier")
        stamp(k)
        k("s_branch M_att")
        return
    k("s_barrier")
    stamp(k)
    for ci, c in enumerate(cols):
        ad = "v69" if ci == 0 else "v71"
        if c['kind'] == 'T': k(f"ds_read_b128 {vr(CSR+4*ci,4)}, {ad}")
        else: k(f"ds_read_b32 v{CSR+4*ci}, {ad}")
    loaded = None
    for ci, c in enumerate(cols):
        cs = CSR + 4*ci
        if loaded != c['kind']:
            if c['kind'] == 'T':
                for rt in range(5): k(f"ds_read2_b32 {vr(8+2*rt,2)}, {eT} offset0:{16*rt} offset1:{80+16*rt}")
            else:
                for rt in range(5):
                    k(f"ds_read_b128 {vr(8+8*rt,4)}, {eN} offset:{rt*64}")
                    k(f"ds_read_b128 {vr(8+8*rt+4,4)}, {eN} offset:{320+rt*64}")
            loaded = c['kind']
            if ci == 0 and p == 'P1':
                k(f"""
                s_lshl_b32 s6, s4, 10
                s_add_u32 m0, s6, {WOL}
                s_add_u32 s7, s6, s89
                buffer_load_dwordx4 {vL}, s[12:15], s7 offen lds
                """)
                k.label("M_P1_nolate")
            k("s_waitcnt lgkmcnt(0)")
        for rt in c['rts']:
            a = c['acc'][rt]
            for h in range(2):
                if c['kind'] == 'T':
                    k(f"v_pk_mul_f32 {vr(a+2*h,2)}, {vr(a+2*h,2)}, {vr(8+2*rt,2)} op_sel_hi:[1,0]")
                else:
                    k(f"v_pk_mul_f32 {vr(a+2*h,2)}, {vr(a+2*h,2)}, {vr(8+8*rt+2*h,2)}")
        for rt in c['rts']:
            a = c['acc'][rt]
            for h in range(2):
                if c['kind'] == 'T':
                    k(f"v_pk_fma_f32 {vr(a+2*h,2)}, {vr(cs+2*h,2)}, {vr(8+2*rt,2)}, {vr(a+2*h,2)} op_sel:[0,1,0] op_sel_hi:[1,1,1] neg_lo:[0,1,0] neg_hi:[0,1,0]")
                else:
                    k(f"v_pk_fma_f32 {vr(a+2*h,2)}, {vr(8+8*rt+4+2*h,2)}, {vr(cs,2)}, {vr(a+2*h,2)} op_sel_hi:[1,0,1] neg_lo:[1,0,0] neg_hi:[1,0,0]")
        for rt in c['rts']:
            a = c['acc'][rt]
            k(f"v_cvt_pk_bf16_f32 v{a}, v{a}, v{a+1}")
            k(f"v_cvt_pk_bf16_f32 v{a+1}, v{a+2}, v{a+3}")
            k(f"ds_write_b64 {eF0 if ci == 0 else eF1}, {vr(a,2)} offset:{FR + rt*512}")
    k("s_branch M_att")

def att_unit(u):
    Q, Kr, V, S, T = ((16, 20, 28, 36, 44), (72, 76, 84, 92, 100))[u]
    M = (60, 50)[u]
    mk = lambda i: f"s[{M+2*i}:{M+2*i+1}]"
    L = []
    L += [f"v_cndmask_b32 v{Q+i}, 0, v{Q+i}, {mk(i)}" for i in range(4)]
    L += ["WAITK"]
    L += [f"v_mfma_f32_16x16x32_bf16 {vr(S,4)}, {vr(Kr,4)}, {vr(Q,4)}, {vr(CB,4)}",
          f"v_mfma_f32_16x16x32_bf16 {vr(S+4,4)}, {vr(Kr+4,4)}, {vr(Q,4)}, {vr(CB+4,4)}", "BG", "s_nop 3"]
    L += [f"v_max_f32 v{S+i}, v{S+i}, v{S+4+i}" for i in range(4)]
    L += [f"v_max3_f32 v{T}, v{S}, v{S+1}, v{S+2}", f"v_max_f32 v{T}, v{T}, v{S+3}",
          f"v_mov_b32 v{T+1}, v{T}", "s_nop 0", f"v_permlane32_swap_b32 v{T}, v{T+1}", f"v_max_f32 v{T}, v{T}, v{T+1}",
          f"v_mov_b32 v{T+1}, v{T}", "s_nop 0", f"v_permlane16_swap_b32 v{T}, v{T+1}", f"v_max_f32 v{T}, v{T}, v{T+1}",
          f"v_mul_f32 v{T}, s58, v{T}"]
    L += [f"v_pk_fma_f32 {vr(S+2*i,2)}, {vr(S+2*i,2)}, s[58:59], {vr(T,2)} op_sel_hi:[1,1,0] neg_lo:[0,0,1] neg_hi:[0,0,1]" for i in range(2)]
    L += [f"v_exp_f32 v{S+i}, v{S+i}" for i in range(4)]
    L += ["BG"]
    L += [f"v_pk_add_f32 {vr(Kr,2)}, {vr(S,2)}, {vr(S+2,2)}", f"v_add_f32 v{T}, v{Kr}, v{Kr+1}",
          f"v_mov_b32 v{T+1}, v{T}", "s_nop 0", f"v_permlane32_swap_b32 v{T}, v{T+1}", f"v_add_f32 v{T}, v{T}, v{T+1}",
          f"v_mov_b32 v{T+1}, v{T}", "s_nop 0", f"v_permlane16_swap_b32 v{T}, v{T+1}", f"v_add_f32 v{T}, v{T}, v{T+1}",
          f"v_rcp_f32 v{T}, v{T}", "BG"]
    L += [f"v_pk_mul_f32 {vr(S+2*i,2)}, {vr(S+2*i,2)}, {vr(T,2)} op_sel_hi:[1,0]" for i in range(2)]
    L += [f"v_cvt_pk_bf16_f32 v{Kr+i}, v{S+2*i}, v{S+2*i+1}" for i in range(2)]
    L += [f"v_cndmask_b32 v{Q}, v{Kr}, 0, s[80:81]", f"v_cndmask_b32 v{Q+1}, v{Kr+1}, 0, s[80:81]",
          f"v_cndmask_b32 v{Q+2}, 0, v{Kr}, s[80:81]", f"v_cndmask_b32 v{Q+3}, 0, v{Kr+1}, s[80:81]"]
    L += ["WAITV"]
    L += [f"v_mfma_f32_16x16x32_bf16 {vr(S,4)}, {vr(V,4)}, {vr(Q,4)}, 0",
          f"v_mfma_f32_16x16x32_bf16 {vr(S+4,4)}, {vr(V+4,4)}, {vr(Q,4)}, 0", "BG", "s_nop 3"]
    L += [f"v_cvt_pk_bf16_f32 v{Kr+i}, v{S+2*i}, v{S+2*i+1}" for i in range(4)]
    W = []
    offs = (0, 4, 2048, 2052)
    for i in range(4):
        W += [f"s_mov_b64 exec, {mk(i)}", f"ds_write_b32 {aO}, v{Kr+i} offset:{offs[i] + 4096*u}"]
    return L, W

def gen_att(k):
    for ks in range(10, 14): k.bg += wn_load(ks)
    k(f"""
    s_mov_b32 s58, 0x3eae1a93
    s_mov_b32 s59, 0x3eae1a93
    s_waitcnt lgkmcnt(0)
    """)
    stamp(k)
    k("s_barrier")
    stamp(k)
    H = 2*2560
    k(f"""
    ds_read_b64 v[16:17], {aQ} offset:{FR + 512}
    ds_read_b64 v[18:19], {aQ} offset:{FR + 2560 + 512}
    ds_read_b64 v[72:73], {aQ} offset:{FR + H + 512}
    ds_read_b64 v[74:75], {aQ} offset:{FR + H + 2560 + 512}
    ds_read_b64 v[20:21], {aQ} offset:{FR + 5*2560}
    ds_read_b64 v[22:23], {aQ} offset:{FR + 6*2560}
    ds_read_b64 v[24:25], {aQ} offset:{FR + 5*2560 + 512}
    ds_read_b64 v[26:27], {aQ} offset:{FR + 6*2560 + 512}
    ds_read_b64 v[76:77], {aQ} offset:{FR + H + 5*2560}
    ds_read_b64 v[78:79], {aK}
    ds_read_b64 v[80:81], {aQ} offset:{FR + H + 5*2560 + 512}
    ds_read_b64 v[82:83], {aK} offset:512
    ds_read_b64 v[28:29], {aQ} offset:{FR + 9*2560}
    ds_read_b64 v[30:31], {aQ} offset:{FR + 9*2560 + 512}
    ds_read_b64 v[32:33], {aQ} offset:{FR + 10*2560}
    ds_read_b64 v[34:35], {aQ} offset:{FR + 10*2560 + 512}
    ds_read_b64 v[84:85], {aQ} offset:{FR + H + 9*2560}
    ds_read_b64 v[86:87], {aQ} offset:{FR + H + 9*2560 + 512}
    ds_read_b64 v[88:89], {aQ} offset:{FR + H + 10*2560}
    ds_read_b64 v[90:91], {aQ} offset:{FR + H + 10*2560 + 512}
    """)
    k.bgp(2)
    k(f"""
    s_lshl_b32 s5, s4, 10
    v_add_u32 v8, s5, {vL}
    s_lshl_b32 s5, s4, 7
    s_add_u32 s5, s5, 8192
    v_add_u32 v9, s5, {vL}
    s_mul_i32 s88, s3, {OBUF[1]-OBUF[0]}
    s_add_u32 s88, s88, {OBUF[0]}
    s_add_u32 s88, s88, s24
    s_mul_i32 s83, s20, 9216
    s_add_u32 s83, s83, s88
    s_lshl_b32 s90, s3, 13
    s_lshl_b32 s5, s21, 7
    s_add_u32 s90, s90, s5
    s_add_u32 s90, s90, {FLG}
    s_mov_b32 s91, s90
    s_waitcnt lgkmcnt(15)
    """)
    L0, W0 = att_unit(0); L1, W1 = att_unit(1)
    for a, b in zip(L0, L1):
        if a == "WAITK":
            if 'f' in EXP: stamp(k)
            k("s_waitcnt lgkmcnt(8)\ns_nop 0"); continue
        if a == "WAITV":
            if 'f' in EXP: stamp(k)
            k("s_waitcnt lgkmcnt(0)\ns_nop 0"); continue
        if a == "BG": k.bgp(2 if len(k.bg) > 2 else 1); continue
        k(a); k(b)
    for t in W0 + W1: k(t)
    k("s_mov_b64 exec, -1")
    k.bgp(12)
    if 'f' in EXP: stamp(k)
    k(f"""
    s_waitcnt lgkmcnt(0)
    s_barrier""")
    if 'f' in EXP: stamp(k)
    k(f"""
    ds_read_b128 v[24:27], v8 offset:{OIMG}
    s_mov_b64 exec, 0xff
    ds_read_b128 v[28:31], v9 offset:{OIMG}
    s_mov_b64 exec, -1
    s_waitcnt lgkmcnt(1)
    buffer_store_dwordx4 v[24:27], v8, s[12:15], s83 offen sc1
    s_mov_b64 exec, 0xff
    s_waitcnt lgkmcnt(0)
    buffer_store_dwordx4 v[28:31], v9, s[12:15], s83 offen sc1
    s_mov_b64 exec, -1
    """)
    for ks in (14, 15):
        for t in wn_load(ks): k(t)
    stamp(k)
    k(f"""
    s_and_b32 s5, s4, 1
    s_lshl_b32 s6, s5, 12
    s_and_b32 s7, s4, 2
    s_lshl_b32 s7, s7, 8
    s_add_u32 s6, s6, s7
    v_add_u32 v108, s6, {vA}
    v_add_u32 v109, {4*8192}, v108
    s_mul_i32 s5, s5, 4608
    s_lshr_b32 s6, s4, 2
    s_mul_i32 s6, s6, 3072
    s_add_u32 s6, s6, s5
    s_add_u32 s6, s6, {WOL}
    v_add_u32 v6, s6, {vL}
    v_add_u32 v110, {4*9216}, v6
    v_lshrrev_b32 v71, 4, v0
    v_and_b32 v69, 7, v0
    v_lshl_add_u32 v69, v71, 3, v69
    v_lshlrev_b32 v69, 4, v69
    s_add_u32 s5, s5, {WOL + 4096}
    v_add_u32 v69, s5, v69
    v_add_u32 v111, {4*9216}, v69
    s_lshl_b32 s5, s4, 10
    s_add_u32 s88, s88, s5
    s_mul_i32 s5, s4, 3072
    s_add_u32 s5, s5, {XI}
    v_add_u32 v56, s5, {vL}
    s_xor_b32 s6, s4, 1
    s_mul_i32 s6, s6, 3072
    s_add_u32 s6, s6, {XI}
    v_add_u32 v71, s6, {vL}
    """)
    for r in range(72, 96): k(f"v_mov_b32 v{r}, 0")
    signal(k, "M_sigA")
    stamp(k)
    guarded0(k, "M_g1", (0, 1, 2))
    poll(k, "M_pollA", False)
    stamp(k)

def gen_Bphase(k):
    def odma(st):
        k(f"""
        s_add_u32 m0, s26, {st*8192}
        s_nop 0
        buffer_load_dwordx4 {vL}, s[12:15], s88 offen{XSC} lds
        s_add_u32 s88, s88, 8192
        """)
    PFD = 5
    for st in range(PFD):
        k(f"s_setprio {max(3-st,0)}")
        odma(st)
    k(f"""
    s_cmp_ge_u32 s4, 4
    s_cbranch_scc1 M_Bh1
    """)
    OF = [8, 28]; WFb = [16, 36]
    GR = {0: 0, 1: 2, 3: 5, 6: 8}
    for half in range(2):
        k.label(f"M_Bh{half}")
        n = 3 if half == 0 else 2
        def reads(st):
            p = st % 2
            hi = st >= 4; s_ = st - 4 if hi else st
            for r in range(2):
                k(f"ds_read_b128 {vr(OF[p]+4*r,4)}, {'v109' if hi else 'v108'} offset:{8192*s_ + 256*r}")
            for ct in range(n):
                if half == 1 and ct == 1:
                    k(f"ds_read_b128 {vr(WFb[p]+4*ct,4)}, {'v111' if hi else 'v69'} offset:{9216*s_}")
                else:
                    k(f"ds_read_b128 {vr(WFb[p]+4*ct,4)}, {'v110' if hi else 'v6'} offset:{9216*s_ + 1024*ct}")
        def mm(p):
            for ct in range(n):
                for r in range(2):
                    d = vr(72+12*r+4*ct, 4)
                    k(f"v_mfma_f32_16x16x32_bf16 {d}, {vr(WFb[p]+4*ct,4)}, {vr(OF[p]+4*r,4)}, {d}")
        nreads = 2 + n
        issued = PFD
        for st in range(9):
            if st in GR:
                k(f"s_waitcnt vmcnt({issued-1-GR[st]})")
                k("s_barrier")
                if st == 0 or 'f' in EXP: stamp(k)
            reads(st)
            for _ in range(2):
                if issued < 9: odma(issued); issued += 1
            if st > 0:
                k(f"s_waitcnt lgkmcnt({nreads})")
                mm((st-1) % 2)
            if st == 6:
                for ks in (16, 17):
                    for t in wn_load(ks): k(t)
            if 3 <= st <= 6:
                guarded0(k, f"M_g2{half}_{st}", (st,))
        k("s_waitcnt lgkmcnt(0)")
        mm(0)
        if 'f' in EXP: stamp(k)
        k(f"""
        s_and_b32 s7, s4, 1
        s_cmp_eq_u32 s7, 0
        s_nop 6
        s_cbranch_scc1 M_Bx{half}_k0
        """)
        for kh in (1, 0):
            if kh == 0: k.label(f"M_Bx{half}_k0")
            keep = 72 + 12*kh; send = 72 + 12*(1-kh)
            for ct in range(n):
                k(f"ds_write_b128 v56, {vr(send+4*ct,4)} offset:{1024*ct}")
            k("s_waitcnt lgkmcnt(0)\ns_barrier")
            for ct in range(n):
                k(f"ds_read_b128 {vr(8+4*ct,4)}, v71 offset:{1024*ct}")
            for ct in range(n):
                k(f"s_waitcnt lgkmcnt({n-1-ct})")
                for h in range(2):
                    k(f"v_pk_add_f32 {vr(96+4*ct+2*h,2)}, {vr(keep+4*ct+2*h,2)}, {vr(8+4*ct+2*h,2)}")
            if kh == 1: k(f"s_branch M_Bx{half}_j")
        k.label(f"M_Bx{half}_j")
        stamp(k)
        T = lambda ct, i: 8 + 10*ct + i
        steps = [
            lambda ct, d, x: f"v_cvt_pk_bf16_f32 v{T(ct,8)}, v{d}, v{d+1}",
            lambda ct, d, x: f"v_cvt_pk_bf16_f32 v{T(ct,9)}, v{d+2}, v{d+3}",
            lambda ct, d, x: f"v_lshlrev_b32 v{T(ct,4)}, 16, v{x}",
            lambda ct, d, x: f"v_and_b32 v{T(ct,5)}, 0xffff0000, v{x}",
            lambda ct, d, x: f"v_lshlrev_b32 v{T(ct,6)}, 16, v{x+1}",
            lambda ct, d, x: f"v_and_b32 v{T(ct,7)}, 0xffff0000, v{x+1}",
            lambda ct, d, x: f"v_lshlrev_b32 v{T(ct,0)}, 16, v{T(ct,8)}",
            lambda ct, d, x: f"v_and_b32 v{T(ct,1)}, 0xffff0000, v{T(ct,8)}",
            lambda ct, d, x: f"v_lshlrev_b32 v{T(ct,2)}, 16, v{T(ct,9)}",
            lambda ct, d, x: f"v_and_b32 v{T(ct,3)}, 0xffff0000, v{T(ct,9)}",
            lambda ct, d, x: f"v_pk_add_f32 {vr(T(ct,0),2)}, {vr(T(ct,0),2)}, {vr(T(ct,4),2)}",
            lambda ct, d, x: f"v_pk_add_f32 {vr(T(ct,2),2)}, {vr(T(ct,2),2)}, {vr(T(ct,6),2)}",
            lambda ct, d, x: f"v_cvt_pk_bf16_f32 v{x}, v{T(ct,0)}, v{T(ct,1)}",
            lambda ct, d, x: f"v_cvt_pk_bf16_f32 v{x+1}, v{T(ct,2)}, v{T(ct,3)}",
        ]
        k(f"""
        s_mul_i32 s5, s3, {XSTR}
        s_add_u32 s5, s5, s24
        s_mul_i32 s6, s20, 9216
        s_add_u32 s5, s5, s6
        s_add_u32 s5, s5, {XSTR}
        """)
        for stp in steps:
            for ct in range(n): k(stp(ct, 96 + 4*ct, RES + 2*ct))
        k(f"""
        s_cmp_eq_u32 s3, 3
        s_cbranch_scc1 M_Bf{half}
        """)
        for ct in range(n):
            x = RES + 2*ct
            if half == 1 and ct == 1: k("s_mov_b64 exec, 0xffffffff")
            k(f"buffer_store_dwordx2 {vr(x,2)}, {vBO}, s[12:15], s5 offen sc1\ns_add_u32 s5, s5, 2048")
        k("s_mov_b64 exec, -1\ns_branch M_Bdone")
        k.label(f"M_Bf{half}")
        for ct in range(n):
            x = RES + 2*ct
            if half == 1 and ct == 1: k("s_mov_b64 exec, 0xffffffff")
            k(f"buffer_store_dwordx2 {vr(x,2)}, {vBN}, s[92:95], 0 offen offset:{32*ct}")
        k("s_mov_b64 exec, -1\ns_branch M_fin")
    k.label("M_Bdone")
    stamp(k)
    k("s_add_u32 s91, s90, 4096")
    signal(k, "M_sigB")
    stamp(k)
    guarded0(k, "M_g3", (7, 8, 9))
    k(f"""
    s_add_u32 s3, s3, 1
    s_and_b32 s5, s3, 1
    s_cmp_eq_u32 s5, 0
    s_mov_b32 s29, {PCS[1]}
    s_cselect_b32 s29, {PCS[0]}, s29
    s_mov_b32 s28, {PQ[0]}
    s_cselect_b32 s28, {PQ[1]}, s28
    s_add_u32 s28, s28, s96
    s_cmp_eq_u32 s3, 3
    s_cselect_b32 s18, 0, s18
    """)
    x_setup(k)
    wo_setup(k)
    k("s_cmp_eq_u32 s4, 7\ns_cbranch_scc1 M_nowo")
    for i in range(6): wo_dma(k)
    k.label("M_nowo")
    poll(k, "M_pollB", True)
    stamp(k)
    if 'r' in EXP: k("s_add_u32 s84, s3, 1")
    rts(k, "s84")
    k(f"""
    s_cmp_eq_u32 s4, 4
    s_cbranch_scc1 M_P2_loop
    s_cmp_eq_u32 s4, 7
    s_cbranch_scc1 M_P4_loop
    s_cmp_gt_u32 s4, 4
    s_cbranch_scc1 M_P3_loop
    s_branch M_P1_loop
    """)
    k.label("M_fin")
    if 'r' in EXP: k("s_waitcnt vmcnt(0)")
    rts(k, 5)
    if DBG:
        k(f"""
        s_waitcnt vmcnt(0)
        """)
        stamp(k)
        k(f"""
        s_lshl_b32 s5, s2, 3
        s_add_u32 s5, s5, s4
        s_lshl_b32 s5, s5, 8
        s_add_u32 s5, s5, {DBGO}
        v_lshlrev_b32 v2, 2, v0
        buffer_store_dword v68, v2, s[12:15], s5 offen
        """)


def main():
    out = sys.argv[1]
    global DBG
    DBG = len(sys.argv) > 2 and sys.argv[2] == '1'
    hdr = [f"; @launch grid=(256,1,1) block=(512,1,1) lds={LDSZ}"]
    k = K()
    k.raw('.amdgcn_target "amdgcn-amd-amdhsa--gfx950"\n.text')
    k.raw(f".globl {NAME}\n.p2align 8\n.type {NAME},@function\n{NAME}:")
    gen_M(k)
    k.raw('.section .rodata,"a"')
    k.raw(f""".p2align 6
.amdhsa_kernel {NAME}
  .amdhsa_next_free_vgpr 256
  .amdhsa_next_free_sgpr 102
  .amdhsa_accum_offset 256
  .amdhsa_group_segment_fixed_size 0
  .amdhsa_kernarg_size 72
  .amdhsa_user_sgpr_count 2
  .amdhsa_user_sgpr_kernarg_segment_ptr 1
  .amdhsa_system_sgpr_workgroup_id_x 1
.end_amdhsa_kernel
""")
    open(out, "w").write("\n".join(hdr) + "\n" + k.text())
main()
```

```python
import sys

XB = 2048 * 576 * 2
WQB = 576 * 1728 * 2
WOB = 576 * 576 * 2
XSTR = 0x280000
XBUF = [0x000000, 0x280000, 0x500000, 0x780000]
OBUF = [0xA00000, 0xC80000, 0xF00000, 0x1180000]
PQ = [0x1400000, 0x1600000]
PO = [0x1800000, 0x1A00000]
CS = [0x1B00000, 0x1B10000]
FLG = 0x1B20000
DBGO = 0x1900000
WSZ = 0x2000000
BLK = 73728

class K:
    def __init__(self): self.l = []; self.bg = []
    def bgp(self, n=1):
        for _ in range(n):
            if self.bg: self(self.bg.pop(0))
    def __call__(self, s):
        for x in s.strip().split("\n"):
            x = x.strip()
            if x: self.l.append("    " + x)
    def label(self, n): self.l.append(n + ":")
    def raw(self, s): self.l.append(s)
    def text(self): return "\n".join(self.l) + "\n"

DBG = False
import os
EXP = os.environ.get("EXP", "")
def stamp(k):
    if DBG:
        k(("s_memrealtime" if 'R' in EXP else "s_memtime") + """ s[98:99]
        s_waitcnt lgkmcnt(0)
        s_mov_b32 m0, s100
        v_writelane_b32 v68, s98, m0
        s_add_u32 s100, s100, 1
        s_min_u32 s100, s100, 63""")
def rts(k, idx, main):
    if 'r' not in EXP: return
    lab = f"rts_{len(k.l)}"
    k(f"""s_or_b32 s5, s2, s4
    s_cmp_lg_u32 s5, 0
    s_cbranch_scc1 {lab}
    s_memrealtime s[98:99]
    s_waitcnt lgkmcnt(0)
    s_add_u32 s6, s46, {0 if main else 512}
    s_addc_u32 s7, s47, 0
    s_mov_b64 exec, 1
    v_mov_b32 v2, {idx}
    v_lshlrev_b32 v2, 2, v2
    v_mov_b32 v3, s98
    global_store_dword v2, v3, s[6:7]
    s_mov_b64 exec, -1""")
    k.label(lab)
def vr(a, n): return f"v[{a}:{a+n-1}]"

def head(k, pfx, nwg):
    k(f"""
    s_cmp_ge_u32 s2, {nwg}
    s_cbranch_scc1 {pfx}_exit
    s_load_dwordx16 s[32:47], s[0:1], 0
    s_load_dwordx2 s[48:49], s[0:1], 64
    v_lshrrev_b32 v1, 6, v0
    v_and_b32 v0, 63, v0
    v_readfirstlane_b32 s4, v1
    """)

def emit_k_from_rho(k, vk, vrho, vt):
    k(f"""
    v_and_b32 {vk}, 0x78, {vrho}
    v_bfe_u32 {vt}, {vrho}, 1, 2
    v_or_b32 {vk}, {vk}, {vt}
    v_and_b32 {vt}, 1, {vrho}
    v_lshl_or_b32 {vk}, {vt}, 2, {vk}
    """)

def tile_off(t):
    if t < 4: return 32*t
    if t == 4: return None
    if t < 9: return 144 + 32*(t-5)
    return 288 + 32*(t-9)

NQ, NO, NC = 288, 96, 54
NX = 72
NW = 16 if 'w' in EXP else 0
NP0 = NQ + NO + NC + 1 + NX
NP = NP0 + NW
def gen_P(k):
    k.label("P_body")
    head(k, "P", NP)
    k(f"""
    s_waitcnt lgkmcnt(0)""")
    rts(k, 0, False)
    k(f"""
    s_mov_b32 s16, s48
    s_mov_b32 s17, s49
    s_mov_b32 s18, {WSZ}
    s_mov_b32 s19, 0x20000
    s_mov_b32 s11, 0x20000
    v_lshrrev_b32 v3, 4, v0
    v_bfe_u32 v4, v0, 2, 2
    v_lshlrev_b32 v4, 1, v4
    v_lshl_add_u32 v12, v3, 3, v4
    v_and_b32 v13, 3, v0
    v_lshlrev_b32 v13, 3, v13
    v_lshlrev_b32 v14, 4, v0
    v_and_b32 v4, 7, v0
    v_lshl_add_u32 v15, v3, 3, v4
    v_lshlrev_b32 v15, 4, v15
    v_and_b32 v4, 8, v0
    v_cmp_eq_u32 s[50:51], 0, v4
    v_bfrev_b32 v16, 1
    s_cmp_ge_u32 s2, {NP0}
    s_cbranch_scc1 P_warm
    s_cmp_gt_u32 s2, {NQ+NO+NC}
    s_cbranch_scc1 P_x
    s_cmp_eq_u32 s2, {NQ+NO+NC}
    s_cbranch_scc1 P_flg
    s_cmp_ge_u32 s2, {NQ+NO}
    s_cbranch_scc1 P_cs
    s_cmp_ge_u32 s2, {NQ}
    s_cbranch_scc1 P_o
    """)
    k(f"""
    s_cmp_ge_u32 s2, 144
    s_cselect_b32 s5, 144, 0
    s_cselect_b64 s[8:9], s[40:41], s[34:35]
    s_mov_b32 s22, {PQ[0]}
    s_cselect_b32 s22, {PQ[1]}, s22
    s_mov_b32 s10, {WQB}
    s_sub_u32 s5, s2, s5
    s_mul_i32 s6, s5, 3641
    s_lshr_b32 s6, s6, 16
    s_mul_i32 s7, s6, 18
    s_sub_u32 s7, s5, s7
    s_mul_i32 s23, s5, 13824
    s_add_u32 s22, s22, s23
    s_mul_i32 s24, s7, {32*3456}
    s_mul_i32 s25, s6, 144
    s_add_u32 s24, s24, s25
    """)
    for n in range(4):
        k(f"""
        s_lshl_b32 s26, s4, 6
        s_add_u32 s26, s26, {256*n}
        v_add_u32 v2, s26, v0
        v_cmp_gt_u32 vcc, 864, v2
        v_mul_u32_u24 v3, 2428, v2
        v_lshrrev_b32 v3, 16, v3
        v_mul_u32_u24 v4, 27, v3
        v_sub_u32 v2, v2, v4
        v_mul_u32_u24 v4, 57, v2
        v_lshrrev_b32 v4, 9, v4
        v_mul_u32_u24 v5, 9, v4
        v_sub_u32 v2, v2, v5
        """)
        emit_k_from_rho(k, "v5", "v3", "v6")
        k(f"""
        v_mul_u32_u24 v5, 3456, v5
        v_mul_u32_u24 v4, 1152, v4
        v_add_u32 v5, v5, v4
        v_lshl_add_u32 v5, v2, 4, v5
        v_cndmask_b32 v5, v16, v5, vcc
        s_lshl_b32 s26, s26, 4
        s_mov_b32 m0, s26
        s_nop 0
        buffer_load_dwordx4 v5, s[8:11], s24 offen lds
        """)
    k(f"""
    v_mul_u32_u24 v12, 432, v12
    v_add_u32 v12, v12, v13
    v_bfe_u32 v5, v0, 1, 1
    v_lshlrev_b32 v5, 7, v5
    v_add_u32 v5, 128, v5
    v_add_u32 v13, v12, v5
    s_waitcnt vmcnt(0)
    s_barrier
    """)
    for w in range(1, 4): k(f"s_cmp_eq_u32 s4, {w}\ns_cbranch_scc1 P_q{w}")
    for w in range(4):
        k.label(f"P_q{w}")
        ts = [t for t in range(w, 14, 4)]
        for i, t in enumerate(ts):
            for b in range(2):
                if t == 4: k(f"ds_read_b64_tr_b16 {vr(20+4*i+2*b,2)}, v13 offset:{b*432}")
                else: k(f"ds_read_b64_tr_b16 {vr(20+4*i+2*b,2)}, v12 offset:{b*432 + tile_off(t)}")
        for i, t in enumerate(ts):
            k(f"s_waitcnt lgkmcnt({2*(len(ts)-1-i)})")
            k(f"s_add_u32 s26, s22, {t*1024}")
            if t == 13:
                k("s_mov_b64 exec, s[50:51]")
                k(f"buffer_store_dwordx4 {vr(20+4*i,4)}, v15, s[16:19], s26 offen")
            else:
                k(f"buffer_store_dwordx4 {vr(20+4*i,4)}, v14, s[16:19], s26 offen")
        k("s_endpgm")
    k.label("P_o")
    k(f"""
    s_sub_u32 s5, s2, {NQ}
    s_cmp_ge_u32 s5, 48
    s_cselect_b32 s6, 48, 0
    s_cselect_b64 s[8:9], s[42:43], s[36:37]
    s_mov_b32 s22, {PO[0]}
    s_cselect_b32 s22, {PO[1]}, s22
    s_mov_b32 s10, {WOB}
    s_sub_u32 s5, s5, s6
    s_mul_i32 s6, s5, 43
    s_lshr_b32 s6, s6, 8
    s_mul_i32 s7, s6, 6
    s_sub_u32 s7, s5, s7
    s_mul_i32 s23, s5, 13824
    s_add_u32 s22, s22, s23
    s_mul_i32 s24, s7, {96*1152}
    s_mul_i32 s25, s6, 144
    s_add_u32 s24, s24, s25
    """)
    for n in range(4):
        k(f"""
        s_lshl_b32 s26, s4, 6
        s_add_u32 s26, s26, {256*n}
        v_add_u32 v2, s26, v0
        v_cmp_gt_u32 vcc, 864, v2
        v_mul_u32_u24 v3, 7282, v2
        v_lshrrev_b32 v3, 16, v3
        v_mul_u32_u24 v4, 9, v3
        v_sub_u32 v2, v2, v4
        """)
        emit_k_from_rho(k, "v5", "v3", "v6")
        k(f"""
        v_mul_u32_u24 v5, 1152, v5
        v_lshl_add_u32 v5, v2, 4, v5
        v_cndmask_b32 v5, v16, v5, vcc
        s_lshl_b32 s26, s26, 4
        s_mov_b32 m0, s26
        s_nop 0
        buffer_load_dwordx4 v5, s[8:11], s24 offen lds
        """)
    k(f"""
    v_mul_u32_u24 v12, 144, v12
    v_add_u32 v12, v12, v13
    s_waitcnt vmcnt(0)
    s_barrier
    """)
    for w in range(1, 4): k(f"s_cmp_eq_u32 s4, {w}\ns_cbranch_scc1 P_o{w}")
    for w in range(4):
        k.label(f"P_o{w}")
        ts = [t for t in range(w, 15, 4)]
        for i, t in enumerate(ts):
            ks, ct = t // 5, t % 5
            for b in range(2):
                k(f"ds_read_b64_tr_b16 {vr(20+4*i+2*b,2)}, v12 offset:{ks*4608 + b*144 + 32*ct}")
        for i, t in enumerate(ts):
            ks, ct = t // 5, t % 5
            k(f"s_waitcnt lgkmcnt({2*(len(ts)-1-i)})")
            k(f"s_add_u32 s26, s22, {ks*4608 + ct*1024}")
            if ct == 4:
                k("s_mov_b64 exec, s[50:51]")
                k(f"buffer_store_dwordx4 {vr(20+4*i,4)}, v15, s[16:19], s26 offen")
                k("s_mov_b64 exec, -1")
            else:
                k(f"buffer_store_dwordx4 {vr(20+4*i,4)}, v14, s[16:19], s26 offen")
        k("s_endpgm")
    k.label("P_cs")
    k(f"""
    s_sub_u32 s5, s2, {NQ+NO}
    s_cmp_ge_u32 s5, 27
    s_cselect_b32 s6, 27, 0
    s_cselect_b64 s[8:9], s[40:41], s[34:35]
    s_mov_b32 s22, {CS[0]}
    s_cselect_b32 s22, {CS[1]}, s22
    s_mov_b32 s10, {WQB}
    s_sub_u32 s5, s5, s6
    s_lshl_b32 s24, s5, 7
    s_lshl_b32 s23, s5, 8
    s_add_u32 s22, s22, s23
    s_lshl_b32 s6, s4, 3
    v_lshrrev_b32 v2, 3, v0
    v_add_u32 v2, s6, v2
    v_and_b32 v3, 7, v0
    v_mul_u32_u24 v4, 3456, v2
    v_lshl_add_u32 v4, v3, 4, v4
    """)
    for r in range(18):
        k(f"buffer_load_dwordx4 {vr(24+4*r,4)}, v4, s[8:11], s24 offen")
        k(f"s_add_u32 s24, s24, {32*3456}")
    for i in range(8): k(f"v_mov_b32 v{8+i}, 0")
    for r in range(18):
        k(f"s_waitcnt vmcnt({17-r})")
        for d in range(4):
            k(f"""
            v_lshlrev_b32 v5, 16, v{24+4*r+d}
            v_and_b32 v6, 0xffff0000, v{24+4*r+d}
            v_add_f32 v{8+2*d}, v{8+2*d}, v5
            v_add_f32 v{9+2*d}, v{9+2*d}, v6
            """)
    k(f"""
    v_lshlrev_b32 v5, 8, v2
    v_lshl_add_u32 v5, v3, 5, v5
    ds_write_b128 v5, v[8:11]
    ds_write_b128 v5, v[12:15] offset:16
    s_waitcnt lgkmcnt(0)
    s_barrier
    s_cmp_lg_u32 s4, 0
    s_cbranch_scc1 P_exit
    v_lshlrev_b32 v5, 2, v0
    """)
    for r in range(32): k(f"ds_read_b32 v{24+r}, v5 offset:{256*r}")
    k("s_waitcnt lgkmcnt(0)")
    for st in (16, 8, 4, 2, 1):
        for i in range(st): k(f"v_add_f32 v{24+i}, v{24+i}, v{24+i+st}")
    k("buffer_store_dword v24, v5, s[16:19], s22 offen")
    k("s_endpgm")
    k.label("P_flg")
    k(f"""
    v_mov_b32 v8, 0
    v_mov_b32 v9, 0
    v_mov_b32 v10, 0
    v_mov_b32 v11, 0
    s_lshl_b32 s5, s4, 13
    s_add_u32 s5, s5, {FLG}
    """)
    for i in range(8):
        k(f"buffer_store_dwordx4 v[8:11], v14, s[16:19], s5 offen\ns_add_u32 s5, s5, 1024")
    k("s_endpgm")
    k.label("P_warm")
    k(f"""
    s_getpc_b64 s[20:21]
    s_add_u32 s20, s20, m_kernel - . + 4
    s_addc_u32 s21, s21, 0
    s_mul_i32 s5, s4, 12288
    v_add_u32 v2, s5, v14
    """)
    for i in range(12):
        k(f"v_min_u32 v3, M_exit - m_kernel - 16, v2\nglobal_load_dwordx4 {vr(20+4*i,4)}, v3, s[20:21]\nv_add_u32 v2, 1024, v2")
    k("s_waitcnt vmcnt(0)\ns_endpgm")
    k.label("P_x")
    k(f"""
    s_sub_u32 s5, s2, {NQ+NO+NC+1}
    s_lshl_b32 s5, s5, 2
    s_add_u32 s5, s5, s4
    s_mul_i32 s6, s5, 7282
    s_lshr_b32 s6, s6, 16
    s_mul_i32 s7, s6, 9
    s_sub_u32 s7, s5, s7
    s_mov_b32 s8, s32
    s_mov_b32 s9, s33
    s_mov_b32 s10, {XB}
    s_lshr_b32 s22, s6, 4
    s_and_b32 s23, s6, 15
    s_mul_i32 s24, s23, {128*1152}
    s_mul_i32 s25, s22, 1152
    s_add_u32 s24, s24, s25
    s_lshl_b32 s25, s7, 7
    s_add_u32 s24, s24, s25
    s_mul_i32 s26, s6, {BLK}
    s_lshl_b32 s25, s7, 13
    s_add_u32 s26, s26, s25
    s_add_u32 s26, s26, {XBUF[0]}
    v_lshrrev_b32 v2, 3, v0
    v_and_b32 v3, 7, v0
    v_mul_u32_u24 v4, 2304, v2
    v_lshl_add_u32 v4, v3, 4, v4
    v_lshlrev_b32 v5, 10, v3
    v_lshl_add_u32 v5, v2, 4, v5
    """)
    for i in range(8):
        k(f"buffer_load_dwordx4 {vr(20+4*i,4)}, v4, s[8:11], s24 offen\ns_add_u32 s24, s24, {8*2304}")
    for i in range(8):
        k(f"s_waitcnt vmcnt({7-i + i})" if False else f"s_waitcnt vmcnt(7)")
        k(f"buffer_store_dwordx4 {vr(20+4*i,4)}, v5, s[16:19], s26 offen offset:{128*i}")
    k(f"""
    v_mov_b32 v6, 0x3f803f80
    s_lshl_b32 s27, s6, 13
    s_lshl_b32 s25, s7, 9
    s_add_u32 s27, s27, s25
    s_add_u32 s27, s27, {0x1C00000}
    v_lshlrev_b32 v7, 3, v2
    v_cmp_eq_u32 s[52:53], 0, v3
    """)
    for i in range(8):
        a = 56 + 2*i
        k(f"v_dot2_f32_bf16 v{a}, v{20+4*i}, v6, 0\nv_dot2_f32_bf16 v{a+1}, v{20+4*i}, v{20+4*i}, 0")
        for d in range(1, 4):
            k(f"v_dot2_f32_bf16 v{a}, v{20+4*i+d}, v6, v{a}\nv_dot2_f32_bf16 v{a+1}, v{20+4*i+d}, v{20+4*i+d}, v{a+1}")
    k("s_nop 3")
    for dp in ("quad_perm:[1,0,3,2]", "quad_perm:[2,3,0,1]", "row_half_mirror"):
        for r in range(56, 72): k(f"v_add_f32_dpp v{r}, v{r}, v{r} {dp} row_mask:0xf bank_mask:0xf")
    k("s_mov_b64 exec, s[52:53]")
    for i in range(8):
        k(f"buffer_store_dwordx2 {vr(56+2*i,2)}, v7, s[16:19], s27 offen offset:{64*i}")
    k(f"""
    s_mov_b64 exec, -1
    s_cmp_ge_u32 s7, 7
    s_cbranch_scc1 P_exit
    v_mov_b32 v8, 0
    v_mov_b32 v9, 0
    v_lshlrev_b32 v7, 3, v0
    s_add_u32 s27, s27, {9*512}
    buffer_store_dwordx2 v[8:9], v7, s[16:19], s27 offen
    """)
    k.label("P_exit")
    k("s_endpgm")

CSL = [640, 1536]
XI = 3072
HALO = XI + BLK
WOL = 80896
FR = WOL + 46*1024
LDSZ = 163840
PST = 0x1C00000
A0, A1, ACC, WF = 8, 28, 72, 112
CSR = 48
vA, vAh, vH = "v1", "v4", "v5"
vX2, vW0, vW1, vBN, vBO, vL = "v57", "v58", "v59", "v66", "v67", "v70"
RES = 60
HI = 9*4096
XSC = " sc1"

def gen_M(k):
    k.label("M_body")
    head(k, "M", 256)
    k(f"""
    s_and_b32 s5, s2, 7
    s_lshr_b32 s6, s2, 3
    s_and_b32 s7, s5, 1
    s_lshl_b32 s7, s7, 2
    s_and_b32 s20, s6, 3
    s_add_u32 s20, s20, s7
    s_lshr_b32 s7, s5, 1
    s_lshl_b32 s7, s7, 3
    s_lshr_b32 s21, s6, 2
    s_add_u32 s21, s21, s7
    s_lshr_b32 s22, s21, 4
    s_and_b32 s23, s21, 15
    s_mul_i32 s24, s21, {BLK}
    s_mul_i32 s25, s20, 144
    s_mov_b32 s3, 0
    s_mov_b32 s100, 0
    s_mov_b32 s101, 1
    v_mov_b32 v68, 0
    v_lshlrev_b32 {vL}, 4, v0
    s_lshl_b32 s26, s4, 10
    s_add_u32 s26, s26, {XI}
    s_add_u32 s31, s4, 9
    s_mov_b32 s30, s4
    s_cmp_lt_u32 s4, 4
    s_cbranch_scc1 M_tiles_ok
    s_add_u32 s30, s4, 1
    s_cmp_lt_u32 s4, 6
    s_cselect_b32 s31, 13, 4
    """)
    k.label("M_tiles_ok")
    k(f"""
    s_lshl_b32 s5, s30, 10
    v_add_u32 {vW0}, s5, {vL}
    s_lshl_b32 s5, s31, 10
    v_add_u32 {vW1}, s5, {vL}
    v_and_b32 v2, 15, v0
    v_lshrrev_b32 v3, 4, v0
    v_and_b32 v8, 7, v0
    v_lshl_add_u32 v10, v3, 3, v8
    v_lshlrev_b32 v10, 4, v10
    s_cmp_lg_u32 s31, 13
    s_cbranch_scc1 M_nh
    v_add_u32 {vW1}, {13*1024}, v10
    """)
    k.label("M_nh")
    k(f"""
    v_lshlrev_b32 v6, 4, v2
    v_lshl_add_u32 {vA}, v3, 10, v6
    v_add_u32 {vA}, {XI}, {vA}
    v_add_u32 {vAh}, {HI}, {vA}
    v_and_b32 v8, 0x70, v6
    v_lshl_add_u32 {vH}, v3, 7, v8
    v_add_u32 {vH}, {HALO}, {vH}
    v_lshrrev_b32 v8, 3, v0
    v_and_b32 v9, 7, v0
    v_lshlrev_b32 v9, 4, v9
    v_lshl_add_u32 v8, v8, 10, v9
    v_add_u32 v8, 896, v8
    v_bfrev_b32 v9, 1
    s_cmp_eq_u32 s23, 0
    s_cselect_b64 vcc, -1, 0
    s_and_b32 s6, s4, 3
    s_lshl_b32 s6, s6, 4
    v_cndmask_b32 {vX2}, v8, v9, vcc
    v_add_u32 v8, s6, v2
    v_lshrrev_b32 v9, 1, v3
    v_lshlrev_b32 v9, 10, v9
    v_lshl_add_u32 v9, v8, 4, v9
    v_and_b32 v10, 1, v3
    v_lshl_add_u32 v9, v10, 3, v9
    s_lshr_b32 s7, s4, 2
    s_mul_i32 s5, s7, 6144
    v_add_u32 {vBO}, s5, v9
    s_lshl_b32 s5, s23, 6
    v_add_u32 v8, s5, v8
    v_lshlrev_b32 v8, 1, v8
    v_add_u32 v8, s22, v8
    v_mul_u32_u24 v8, 1152, v8
    v_lshl_add_u32 v8, v3, 3, v8
    s_mul_i32 s7, s7, 96
    s_add_u32 s7, s7, s25
    v_add_u32 {vBN}, s7, v8
    s_waitcnt lgkmcnt(0)
    s_mov_b32 s12, s48
    s_mov_b32 s13, s49
    s_mov_b32 s14, {WSZ}
    s_mov_b32 s15, 0x20000
    s_mov_b32 s16, s48
    s_mov_b32 s17, s49
    s_mov_b32 s18, {WSZ}
    s_mov_b32 s19, 0x20000
    s_mov_b32 s92, s44
    s_mov_b32 s93, s45
    s_mov_b32 s94, {XB}
    s_mov_b32 s95, 0x20000
    s_mul_i32 s96, s20, {18*13824}
    s_add_u32 s28, s96, {PQ[1]}
    s_add_u32 s86, s96, {PQ[0]}
    """)
    x_setup(k)
    k("s_max_i32 s85, s85, 0")
    wo_setup(k)
    stamp(k)
    dispatch(k, "")
    for p in PROGS:
        gen_prog(k, p)
    gen_att(k)
    gen_mid(k)
    gen_Bphase(k)
    k.label("M_exit")
    k("s_endpgm")

def poll_core(k, name):
    k(f"""
    s_mov_b32 s5, 0x20000
    buffer_load_dword v8, v2, s[12:15], s91 offen sc1
    s_sleep 2
    buffer_load_dword v9, v2, s[12:15], s91 offen sc1
    s_sleep 2
    """)
    k.label(f"{name}_loop")
    for r in (10, 8, 9):
        chk = {10: 8, 8: 9, 9: 10}[r]
        k(f"""
        buffer_load_dword v{r}, v2, s[12:15], s91 offen sc1
        s_waitcnt vmcnt(2)
        v_cmp_eq_u32 vcc, s101, v{chk}
        s_nop 1
        s_cmp_eq_u64 vcc, exec
        s_cbranch_scc1 {name}_ok
        """)
    k(f"""
    s_sub_u32 s5, s5, 1
    s_cmp_lg_u32 s5, 0
    s_cbranch_scc1 {name}_loop
    """)
    k.label(f"{name}_ok")
    k("s_mov_b64 exec, -1")

def poll_simple(k, name, vtmp):
    k("s_mov_b32 s5, 0x40000")
    k.label(f"{name}_loop")
    k(f"""
    buffer_load_dword {vtmp}, v2, s[12:15], s91 offen sc1
    s_waitcnt vmcnt(0)
    v_cmp_eq_u32 vcc, s101, {vtmp}
    s_nop 1
    s_cmp_eq_u64 vcc, exec
    s_cbranch_scc1 {name}_ok
    s_sleep 2
    s_sub_u32 s5, s5, 1
    s_cmp_lg_u32 s5, 0
    s_cbranch_scc1 {name}_loop
    """)
    k.label(f"{name}_ok")
    k("s_mov_b64 exec, -1")

def poll(k, name, two):
    k(f"""
    s_cmp_lg_u32 s4, 7
    s_cbranch_scc1 {name}_done
    v_and_b32 v2, 7, v0
    v_lshlrev_b32 v2, 2, v2
    """)
    if two:
        k(f"""
        s_cmp_eq_u32 s23, 0
        s_cselect_b32 s5, 128, 0
        v_and_b32 v3, 8, v0
        v_lshlrev_b32 v3, 4, v3
        v_max_u32 v3, s5, v3
        v_add_u32 v2, v2, v3
        s_sub_u32 s91, s91, 128
        s_mov_b64 exec, 0xffff
        """)
    else:
        k("s_mov_b64 exec, 0xff")
    poll_core(k, name)
    k.label(f"{name}_done")
    k("s_barrier")

def flag_store(k, soff, voff_expr):
    k(f"""
    s_mov_b64 exec, 1
    v_mov_b32 v2, {voff_expr}
    v_mov_b32 v3, s101
    buffer_store_dword v3, v2, s[12:15], {soff} offen sc1
    s_mov_b64 exec, -1
    """)

def signal(k, name, extra=None):
    k(f"""
    s_waitcnt vmcnt(0)
    s_barrier
    s_cmp_lg_u32 s4, 7
    s_cbranch_scc1 {name}_ns
    s_lshl_b32 s5, s20, 2
    """)
    flag_store(k, "s91", "s5")
    if extra: extra()
    k.label(f"{name}_ns")

def wo_dma(k, late=False):
    if late:
        k(f"""
        s_add_u32 s6, s87, {41*1024}
        s_cmp_lt_u32 s87, {5*1024}
        s_cselect_b32 s6, s87, s6
        s_min_u32 s6, s6, {80*1024}
        """)
    else:
        k(f"s_min_u32 s6, s87, {45*1024}")
    k(f"""
    s_add_u32 m0, s6, {WOL}
    s_add_u32 s7, s6, s89
    buffer_load_dwordx4 {vL}, s[12:15], s7 offen lds
    s_add_u32 s87, s87, 7168
    """)
def wo_setup(k):
    k(f"""
    s_and_b32 s5, s3, 1
    s_cmp_eq_u32 s5, 0
    s_mov_b32 s89, {PO[1]}
    s_cselect_b32 s89, {PO[0]}, s89
    s_mul_i32 s5, s20, {18*4608}
    s_add_u32 s89, s89, s5
    s_lshl_b32 s87, s4, 10
    s_add_u32 s87, s87, {5*1024}
    """)
def x_setup(k):
    k(f"""
    s_mul_i32 s27, s3, {XSTR}
    s_add_u32 s27, s27, s24
    s_sub_u32 s85, s27, {BLK}
    s_lshl_b32 s5, s4, 10
    s_add_u32 s27, s27, s5
    """)
def wn1(ks, c):
    return f"s_add_u32 s84, s28, {ks*13824}\nbuffer_load_dwordx4 {vr(WF + 8*ks + 4*c, 4)}, {vW0 if c == 0 else vW1}, s[16:19], s84 offen"
def wn_load(ks): return [wn1(ks, 0), wn1(ks, 1)]
def guarded0(k, name, kss, nwo=0):
    k(f"s_cmp_lg_u32 s3, 0\ns_cbranch_scc1 {name}")
    if nwo:
        k(f"s_cmp_eq_u32 s4, 7\ns_cbranch_scc1 {name}_w")
        for _ in range(nwo): wo_dma(k)
        k.label(f"{name}_w")
    for ks in kss:
        for t in wn_load(ks): k(t)
    k.label(name)

def dispatch(k, sfx):
    k(f"""
    s_cmp_lt_u32 s4, 4
    s_cbranch_scc1 M_PV{sfx}
    s_cmp_eq_u32 s4, 4
    s_cbranch_scc1 M_S4{sfx}
    s_cmp_eq_u32 s4, 5
    s_cbranch_scc1 M_S5{sfx}
    s_cmp_eq_u32 s4, 6
    s_cbranch_scc1 M_S6{sfx}
    s_branch M_S7{sfx}
    """)

BARS = {1: 2, 5: 4, 9: 6, 13: 8}
D0 = 10
X1K = int(os.environ.get('X1K', '6'))
PROGS = {
    'PV': [('T', [1,2,3,4]), ('N', [0,1,2,3,4])],
    'S4': [('T', [0,1,2,3,4]), ('N', [0,1,2])],
    'S5': [('T', [0,1,2,3,4]), ('N', [3,4])],
    'S6': [('T', [0,1,2,3,4]), ('T', [0,1,2])],
    'S7': [('T', [0,1,2,3,4]), ('T', [3,4])],
}
eT, eN, eF0, eF1 = "v224", "v225", "v226", "v227"
eC0, eC1, aQ, aK = "v232", "v233", "v234", "v235"
CBp, CBs = 228, 236

def colsum_reduce(k, m, regs):
    k(f"""
    v_mul_u32_u24 v2, 3641, v0
    v_lshrrev_b32 v2, 16, v2
    v_mul_u32_u24 v3, {2304-288}, v2
    v_lshl_add_u32 v6, v0, 4, v3
    s_lshl_b32 s5, s25, 1
    s_add_u32 s5, s5, {PCS[m]}
    """)
    for r in range(18):
        k(f"buffer_load_dwordx4 {vr(regs[r],4)}, v6, s[12:15], s5 offen\ns_add_u32 s5, s5, 8192")
    k("s_waitcnt vmcnt(0)")
    for r in range(9):
        for h in range(2): k(f"v_pk_add_f32 {vr(regs[r]+2*h,2)}, {vr(regs[r]+2*h,2)}, {vr(regs[r+9]+2*h,2)}")
    for st in ((0,4),(1,5),(2,6),(3,7),(0,2),(1,3),(0,1),(0,8)):
        for h in range(2): k(f"v_pk_add_f32 {vr(regs[st[0]]+2*h,2)}, {vr(regs[st[0]]+2*h,2)}, {vr(regs[st[1]]+2*h,2)}")
    k(f"""
    s_mov_b32 exec_hi, 0x3fffff
    ds_write_b128 {vL}, {vr(regs[0],4)} offset:{CSL[m]}
    s_mov_b64 exec, -1
    """)
R18 = [8+4*i for i in range(10)] + [72+4*i for i in range(8)]

def gen_start0(k):
    for ks in range(D0):
        if ks % 2 == 0: k(f"s_setprio {max(3-ks//2,0)}")
        for c in range(2):
            k(f"buffer_load_dwordx4 {vr(WF + 8*ks + 4*c, 4)}, {vW0 if c == 0 else vW1}, s[16:19], s86 offen")
        k(f"s_add_u32 s86, s86, 13824")
    k(f"""
    s_waitcnt vmcnt({2*D0})
    s_barrier
    s_cmp_lg_u32 s4, 5
    s_cbranch_scc1 M_nocsA
    """)
    colsum_reduce(k, 0, R18)
    k.label("M_nocsA")
    k(f"""
    s_cmp_gt_u32 s4, 4
    s_cbranch_scc1 M_st0_done
    s_sub_u32 s5, s4, 1
    s_lshl_b32 s5, s5, 11
    s_cmp_eq_u32 s4, 0
    s_cselect_b64 vcc, -1, 0
    """)
    for i in range(4):
        k(f"v_add_u32 v{104+i}, s5, v{nA[i]}\nv_cndmask_b32 v{104+i}, v{104+i}, v{nH[i]}, vcc")
    for i in range(4): k(f"v_mov_b32 v{108+i}, 0x3f803f80")
    for i in range(8): k(f"v_mov_b32 v{96+i}, 0")
    for half in range(2):
        for i in range(9):
            ks = 9*half + i
            off = (ks // 2)*XS0
            h = 2 if off >= HI0 else 0
            k(f"ds_read_b128 {vr(8+4*i,4)}, v{104 + h + ks % 2} offset:{off - (HI0 if h else 0)}")
        for i in range(9):
            k(f"s_waitcnt lgkmcnt({8-i})")
            x = vr(8+4*i, 4)
            k(f"v_mfma_f32_16x16x32_bf16 v[96:99], {x}, {x}, v[96:99]")
            k(f"v_mfma_f32_16x16x32_bf16 v[100:103], v[108:111], {x}, v[100:103]")
    k(f"""
    v_and_b32 v2, 15, v0
    v_lshrrev_b32 v3, 4, v0
    v_lshrrev_b32 v6, 2, v2
    v_cmp_eq_u32 s[52:53], v3, v6
    v_and_b32 v6, 3, v0
    v_cmp_eq_u32 s[54:55], 1, v6
    v_cmp_eq_u32 s[56:57], 2, v6
    v_cmp_eq_u32 s[60:61], 3, v6
    s_lshl_b32 s5, s4, 6
    v_lshl_add_u32 v6, v2, 2, s5
    s_mov_b32 s5, 0x3ae38e39
    s_mov_b32 s6, 0x3727c5ac
    v_cndmask_b32 v8, v96, v97, s[54:55]
    v_cndmask_b32 v8, v8, v98, s[56:57]
    v_cndmask_b32 v8, v8, v99, s[60:61]
    v_mul_f32 v9, s5, v100
    v_mul_f32 v8, s5, v8
    v_fma_f32 v8, -v9, v9, v8
    v_max_f32 v8, 0, v8
    v_add_f32 v8, s6, v8
    v_rsq_f32 v8, v8
    s_nop 0
    v_mul_f32 v9, v9, v8
    s_mov_b64 exec, s[52:53]
    ds_write2_b32 v6, v8, v9 offset0:0 offset1:80
    s_mov_b64 exec, -1
    """)
    k.label("M_st0_done")

def stats_from_partials(k):
    fin = lambda a: f"""
    v_mul_f32 v{a}, s5, v{a}
    v_mul_f32 v{a+1}, s5, v{a+1}
    v_fma_f32 v{a+1}, -v{a}, v{a}, v{a+1}
    v_max_f32 v{a+1}, 0, v{a+1}
    v_add_f32 v{a+1}, s6, v{a+1}
    v_rsq_f32 v{a+1}, v{a+1}
    s_nop 0
    v_mul_f32 v{a}, v{a}, v{a+1}
    """
    k(f"""
    s_cmp_gt_u32 s4, 1
    s_cbranch_scc1 M_sp_done
    s_mov_b32 s5, 0x3ae38e39
    s_mov_b32 s6, 0x3727c5ac
    s_waitcnt vmcnt(4)
    s_cmp_eq_u32 s4, 1
    s_cbranch_scc1 M_sp_halo
    """)
    for st in ((0,4),(1,5),(2,6),(3,7),(0,2),(1,3),(0,1)):
        for h in range(2): k(f"v_pk_add_f32 {vr(72+4*st[0]+2*h,2)}, {vr(72+4*st[0]+2*h,2)}, {vr(72+4*st[1]+2*h,2)}")
    for i in range(4): k(f"v_mov_b32 v{76+i}, v{72+i}")
    k("s_nop 1")
    for i in range(4): k(f"v_permlane32_swap_b32 v{72+i}, v{76+i}")
    for h in range(2): k(f"v_pk_add_f32 {vr(72+2*h,2)}, {vr(72+2*h,2)}, {vr(76+2*h,2)}")
    k(fin(72)); k(fin(74))
    k(f"""
    v_lshlrev_b32 v2, 3, v0
    s_mov_b64 exec, 0xffffffff
    ds_write2_b32 v2, v73, v75 offset0:16 offset1:17
    ds_write2_b32 v2, v72, v74 offset0:96 offset1:97
    s_mov_b64 exec, -1
    s_branch M_sp_done
    """)
    k.label("M_sp_halo")
    k("s_nop 1")
    for sh in (4, 8):
        for i in range(4): k(f"v_add_f32_dpp v{72+i}, v{72+i}, v{72+i} row_ror:{sh} row_mask:0xf bank_mask:0xf")
        k("s_nop 1")
    for op in ("v_permlane16_swap_b32", "v_permlane32_swap_b32"):
        for i in range(4): k(f"v_mov_b32 v{76+i}, v{72+i}")
        k("s_nop 1")
        for i in range(4): k(f"{op} v{72+i}, v{76+i}")
        for h in range(2): k(f"v_pk_add_f32 {vr(72+2*h,2)}, {vr(72+2*h,2)}, {vr(76+2*h,2)}")
    k(fin(72)); k(fin(74))
    k(f"""
    v_lshlrev_b32 v2, 3, v0
    s_mov_b64 exec, 0xff
    ds_write2_b32 v2, v73, v75 offset0:0 offset1:1
    ds_write2_b32 v2, v72, v74 offset0:80 offset1:81
    s_mov_b64 exec, -1
    """)
    k.label("M_sp_done")

def setup_list(p):
    kA, kB = PROGS[p][0][0], PROGS[p][1][0]
    L = f"""
    v_and_b32 v2, 15, v0
    v_lshrrev_b32 v3, 4, v0
    v_lshlrev_b32 {eT}, 2, v2
    v_lshlrev_b32 {eN}, 4, v3
    v_lshlrev_b32 v6, 3, v0
    s_mul_i32 s5, s30, 2560
    s_add_u32 s5, s5, {FR}
    v_add_u32 {eF0}, s5, v6
    s_mul_i32 s5, s31, 2560
    s_add_u32 s5, s5, {FR}
    v_add_u32 {eF1}, s5, v6
    s_and_b32 s7, s3, 1
    s_mul_i32 s7, s7, {CSL[1]-CSL[0]}
    s_add_u32 s7, s7, {CSL[0]}
    """
    if p == 'PV':
        L += f"""
        s_lshl_b32 s5, s4, 6
        s_add_u32 s5, s5, s7
        v_add_u32 {eC0}, s5, {eN}
        s_add_u32 s5, s5, 576
        v_add_u32 {eC1}, s5, {eT}
        """
        return [x.strip() for x in L.strip().split("\n") if x.strip()]
    i = int(p[1]) - 4
    L += f"s_add_u32 s5, s7, {288 + 64*i}\nv_add_u32 {eC0}, s5, {eN}\n"
    if kB == 'N':
        L += f"s_add_u32 s5, s7, {576 + 256}\nv_add_u32 {eC1}, s5, {eT}\n"
    else:
        L += f"""
        v_lshrrev_b32 {eC1}, 1, v3
        v_lshlrev_b32 {eC1}, 8, {eC1}
        s_add_u32 s5, s7, 256
        v_add3_u32 {eC1}, {eC1}, {eN}, s5
        """
    L += f"""
    v_add_u32 {aQ}, {FR + 512*i}, v6
    v_add_u32 v6, 256, v6
    v_and_b32 v6, 0x1ff, v6
    v_add_u32 {aK}, {FR + 4*2560 + 512*i}, v6
    v_lshlrev_b32 v3, 2, v3
    v_cmp_le_u32 s[80:81], v3, v2
    v_sub_u32 v6, v2, v3
    v_mov_b32 v2, 0xf149f2ca
    """
    if i == 0: L += "s_cmp_lg_u32 s23, 0\ns_cselect_b32 s5, 8, 0\n"
    else: L += "s_mov_b32 s5, 8\n"
    for j in range(4):
        L += f"""
        v_add_u32 v3, {16-j}, v6
        v_cmp_gt_u32 s[76:77], s5, v3
        v_subrev_u32 v3, {j}, v6
        v_cmp_gt_u32 s[78:79], 8, v3
        s_nop 0
        v_cndmask_b32 v{CBp+j}, v2, 0, s[76:77]
        v_cndmask_b32 v{CBs+j}, v2, 0, s[78:79]
        """
    return [x.strip() for x in L.strip().split("\n") if x.strip()]

def e3_list(kind, accs, rts, statreg, cs, faddr, pk=False):
    L = []
    if not pk:
        for rt in rts:
            a = accs[rt]; sr = statreg(rt)
            for i in range(4):
                L.append(f"v_mul_f32 v{a+i}, v{a+i}, v{sr if kind == 'T' else sr+i}")
        for rt in rts:
            a = accs[rt]; sr = statreg(rt)
            for i in range(4):
                if kind == 'T': L.append(f"v_fma_f32 v{a+i}, -v{sr+1}, v{cs+i}, v{a+i}")
                else: L.append(f"v_fma_f32 v{a+i}, -v{sr+4+i}, v{cs}, v{a+i}")
        for rt in rts:
            a = accs[rt]
            L += [f"v_cvt_pk_bf16_f32 v{a}, v{a}, v{a+1}", f"v_cvt_pk_bf16_f32 v{a+1}, v{a+2}, v{a+3}",
                  f"ds_write_b64 {faddr}, {vr(a,2)} offset:{rt*512}"]
        return L
    for rt in rts:
        a = accs[rt]; sr = statreg(rt)
        for h in range(2):
            if kind == 'T': L.append(f"v_pk_mul_f32 {vr(a+2*h,2)}, {vr(a+2*h,2)}, {vr(sr,2)} op_sel_hi:[1,0]")
            else: L.append(f"v_pk_mul_f32 {vr(a+2*h,2)}, {vr(a+2*h,2)}, {vr(sr+2*h,2)}")
    for rt in rts:
        a = accs[rt]; sr = statreg(rt)
        for h in range(2):
            if kind == 'T': L.append(f"v_pk_fma_f32 {vr(a+2*h,2)}, {vr(cs+2*h,2)}, {vr(sr,2)}, {vr(a+2*h,2)} op_sel:[0,1,0] op_sel_hi:[1,1,1] neg_lo:[0,1,0] neg_hi:[0,1,0]")
            else: L.append(f"v_pk_fma_f32 {vr(a+2*h,2)}, {vr(sr+4+2*h,2)}, {vr(cs,2)}, {vr(a+2*h,2)} op_sel_hi:[1,0,1] neg_lo:[1,0,0] neg_hi:[1,0,0]")
    for rt in rts:
        a = accs[rt]
        L += [f"v_cvt_pk_bf16_f32 v{a}, v{a}, v{a+1}", f"v_cvt_pk_bf16_f32 v{a+1}, v{a+2}, v{a+3}",
              f"ds_write_b64 {faddr}, {vr(a,2)} offset:{rt*512}"]
    return L

def gen_prog(k, p):
    (kA, rA), (kB, rB) = PROGS[p]
    isV = p == 'PV'; w7 = p == 'S7'
    a = ACC; accA = {}; accB = {}
    for rt in rA: accA[rt] = a; a += 4
    for rt in rB: accB[rt] = a; a += 4
    nacc = a
    vq = []
    def vwait(tag):
        idx = -1
        for i, t in enumerate(vq):
            if t == tag: idx = i
        if idx >= 0:
            k(f"s_waitcnt vmcnt({len(vq)-1-idx})")
            del vq[:idx+1]
    def mf(kind, d, wf, x):
        d = vr(d, 4)
        if kind == 'T': k(f"v_mfma_f32_16x16x32_bf16 {d}, {wf}, {x}, {d}")
        else: k(f"v_mfma_f32_16x16x32_bf16 {d}, {x}, {wf}, {d}")
    def rd(first, ks, rts, regs=None):
        base = A0 if ks % 2 == 0 else A1
        for rt in rts:
            R = vr(regs[rt] if regs else base+4*rt, 4)
            if rt == 0: k(f"ds_read_b128 {R}, {vH} offset:{ks*512}")
            else:
                off = ks*4096 + (rt-1)*256
                if off >= HI: k(f"ds_read_b128 {R}, {vAh} offset:{off-HI}")
                else: k(f"ds_read_b128 {R}, {vA} offset:{off}")
    def issue_x(s):
        k(f"""
        s_add_u32 m0, s26, {s*8192}
        s_nop 0
        buffer_load_dwordx4 {vL}, s[12:15], s27 offen{XSC} lds
        s_add_u32 s27, s27, 8192
        """)
        vq.append(('x', s))
        if w7:
            k(f"""
            s_mov_b32 m0, {HALO + s*1024}
            s_nop 0
            buffer_load_dwordx4 {vX2}, s[12:15], s85 offen{XSC} lds
            s_add_u32 s85, s85, 8192
            """)
            vq.append(('x', s))
    r1 = rA if isV else [0,1,2,3,4]
    n1 = len(r1)
    LAGA = 6 if isV else 4
    SB = 88 if isV else 100
    def stat_loads():
        k(f"""
        s_lshl_b32 s5, s3, 18
        s_lshl_b32 s6, s21, 13
        s_add_u32 s5, s5, s6
        s_add_u32 s5, s5, {PST}
        """)
        if isV:
            k(f"""
            v_lshrrev_b32 v2, 3, v0
            v_and_b32 v3, 7, v0
            v_lshlrev_b32 v3, 4, v3
            v_lshl_add_u32 v2, v2, 9, v3
            s_lshl_b32 s6, s4, 7
            s_add_u32 s5, s5, s6
            buffer_load_dwordx4 {vr(SB,4)}, v2, s[12:15], s5 offen sc1
            s_add_u32 s5, s5, 4096
            buffer_load_dwordx4 {vr(SB+4,4)}, v2, s[12:15], s5 offen sc1
            """)
            vq.extend([('sp', 0)]*2)
        else:
            k(f"""
            v_lshrrev_b32 v2, 2, v0
            v_and_b32 v3, 3, v0
            v_lshlrev_b32 v3, 4, v3
            v_lshl_add_u32 v2, v2, 9, v3
            v_bfrev_b32 v3, 1
            s_cmp_eq_u32 s23, 0
            s_cselect_b64 vcc, -1, 0
            s_sub_u32 s5, s5, {8192 - 448}
            s_nop 0
            v_cndmask_b32 v2, v2, v3, vcc
            buffer_load_dwordx4 {vr(SB,4)}, v2, s[12:15], s5 offen sc1
            """)
            vq.append(('sp', 0))
    def stat_list():
        L = []
        if isV:
            L += [f"v_add_f32 v{SB+i}, v{SB+i}, v{SB+4+i}" for i in range(4)]
            rors = (8,)
        else: rors = (4, 8)
        for sh in rors:
            L += ["s_nop 1"] + [f"v_add_f32_dpp v{SB+i}, v{SB+i}, v{SB+i} row_ror:{sh} row_mask:0xf bank_mask:0xf" for i in range(4)]
        for op in ("v_permlane16_swap_b32", "v_permlane32_swap_b32"):
            L += [f"v_mov_b32 v{SB+4+i}, v{SB+i}" for i in range(4)] + ["s_nop 1"]
            L += [f"{op} v{SB+i}, v{SB+4+i}" for i in range(4)]
            L += [f"v_add_f32 v{SB+i}, v{SB+i}, v{SB+4+i}" for i in range(4)]
        L += ["s_mov_b32 s64, 0x3ae38e39", "s_mov_b32 s65, 0x3727c5ac"]
        for a_ in (SB, SB+2):
            L += [f"v_mul_f32 v{a_}, s64, v{a_}", f"v_mul_f32 v{a_+1}, s64, v{a_+1}", f"v_fma_f32 v{a_+1}, -v{a_}, v{a_}, v{a_+1}",
                  f"v_max_f32 v{a_+1}, 0, v{a_+1}", f"v_add_f32 v{a_+1}, s65, v{a_+1}", f"v_rsq_f32 v{a_+1}, v{a_+1}"]
        L += ["s_nop 0", f"v_mul_f32 v{SB}, v{SB}, v{SB+1}", f"v_mul_f32 v{SB+2}, v{SB+2}, v{SB+3}"]
        if isV: L += [f"s_lshl_b32 s64, s4, 6\nv_lshl_add_u32 v{SB+4}, v0, 3, s64"]
        else: L += [f"v_lshlrev_b32 v{SB+4}, 3, v0"]
        o = 16 if isV else 0
        L += [f"s_mov_b64 exec, 0xff\nds_write2_b32 v{SB+4}, v{SB+1}, v{SB+3} offset0:{o} offset1:{o+1}\nds_write2_b32 v{SB+4}, v{SB}, v{SB+2} offset0:{80+o} offset1:{81+o}\ns_mov_b64 exec, -1"]
        if isV: L += [f"v_mov_b32 v{SB+i}, 0" for i in range(8)]
        return L
    dostat = isV or p == 'S5'
    def w0(ks):
        for c in range(2):
            k(f"buffer_load_dwordx4 {vr(WF + 8*ks + 4*c, 4)}, {vW0 if c == 0 else vW1}, s[16:19], s86 offen"); vq.append(('w', ks))
        k(f"s_add_u32 s86, s86, 13824")
    def body(first):
        del vq[:]
        for r in range(ACC, nacc): k(f"v_mov_b32 v{r}, 0")
        for s in range(5 if first else 4):
            k(f"s_setprio {max(3-s,0)}")
            if s < 4: issue_x(s)
            if first: w0(2*s); w0(2*s+1)
            if s == 1 and dostat: stat_loads()
        if first and p in ('S4', 'S6'):
            m = 0 if p == 'S4' else 1
            k(f"""
            v_mul_u32_u24 v2, 3641, v0
            v_lshrrev_b32 v2, 16, v2
            v_mul_u32_u24 v3, {2304-288}, v2
            v_lshl_add_u32 v6, v0, 4, v3
            s_lshl_b32 s5, s25, 1
            s_add_u32 s5, s5, {CS[m]}
            buffer_load_dwordx4 v[104:107], v6, s[12:15], s5 offen
            """)
            vq.append(('cs', 0))
        su = setup_list(p)
        sl = stat_list() if dostat else []
        if not isV: k("s_setprio 2")
        vwait(('x', 0))
        k("s_barrier")
        stamp(k)
        rd(first, 0, r1)
        for ks in range(18):
            base = A0 if ks % 2 == 0 else A1
            if ks in BARS:
                vwait(('x', BARS[ks]))
                k("s_barrier")
            if ks + 1 < 18:
                rd(first, ks + 1, r1)
                k(f"s_waitcnt lgkmcnt({n1})")
            elif isV:
                rd(first, 0, rB)
                k(f"s_waitcnt lgkmcnt(5)")
            else:
                k("s_waitcnt lgkmcnt(0)")
            if first: vwait(('w', ks))
            if ks == 2: vwait(('sp', 0))
            ml = [(kA, accA[rt], vr(WF + 8*ks, 4), rt) for rt in rA]
            if not isV: ml += [(kB, accB[rt], vr(WF + 8*ks + 4, 4), rt) for rt in rB]
            for i, (kind, d, wf, rt) in enumerate(ml):
                mf(kind, d, wf, vr(base+4*rt, 4))
                if ks >= 16:
                    for _ in range(5 if not isV else 3):
                        if su: k(su.pop(0))
                if 2 <= ks < 9:
                    for _ in range(3):
                        if sl: k(sl.pop(0))
                if i == 1:
                    if ks % 2 == 0 and ks // 2 + 4 < 9: issue_x(ks // 2 + 4)
                    if first and ks + D0 < 18: w0(ks + D0)
            assert not (ks == 8 and sl)
            if not first and LAGA <= ks < 16:
                for c in ((0,) if isV else (0, 1)):
                    k(wn1(ks - LAGA, c)); vq.append(('wn', 0))
            if first and ks == 10:
                if p in ('S4', 'S6'):
                    vwait(('cs', 0))
                    k(f"s_mov_b32 exec_hi, 0x3fffff\nds_write_b128 {vL}, v[104:107] offset:{CSL[0 if p == 'S4' else 1]}\ns_mov_b64 exec, -1")
                k(f"s_mul_i32 s5, s20, 9216\ns_add_u32 s5, s5, s24")
                for ct in range(3):
                    k(f"buffer_load_dwordx2 {vr(RES+2*ct,2)}, {vBO}, s[12:15], s5 offen\ns_add_u32 s5, s5, 2048"); vq.append(('res', 0))
            if first and not w7 and 10 <= ks < 16:
                wo_dma(k); vq.append(('wo', 0))
        while su: k(su.pop(0))
        k("s_setprio 1" if isV else "s_setprio 0")
        stamp(k)
        if first: k(f"s_branch M_{p}_epi")
    def pass2():
        first = False
        SQ = {1: 108, 2: 110, 3: 228, 4: 230} if False else None
        sq = {1: "A", 2: "A", 3: "A", 4: "A"}
        sreg = {1: 208, 2: 210, 3: 216, 4: 218}
        k(f"ds_read_b128 v[200:203], {eC0}")
        for rt in rA: k(f"ds_read2_b32 {vr(sreg[rt],2)}, {eT} offset0:{16*rt} offset1:{80+16*rt}")
        e3 = e3_list('T', accA, rA, lambda rt: sreg[rt], 200, eF0)
        SETS = [[A0+4*i for i in range(5)], [A1+4*i for i in range(5)], [72, 76, 80, 84, 108]]
        setof = {0: 0, 1: 1, 2: 0, 3: 1}
        for ks in range(4, 18): setof[ks] = {4: 2, 5: 0}.get(ks, None)
        order = [2, 0, 1]
        for ks in range(4, 18): setof[ks] = order[(ks - 4) % 3]
        issued = 0
        for ks in range(18):
            want = min(17, ks + (1 if ks < 3 else 2))
            while issued < want:
                issued += 1
                rd(first, issued, rB, SETS[setof[issued]])
            k(f"s_waitcnt lgkmcnt({5*(issued-ks)})")
            if ks == X1K:
                k("s_barrier")
            for i, rt in enumerate(rB):
                mf('N', accB[rt], vr(WF + 8*ks + 4, 4), vr(SETS[setof[ks]][rt], 4))
                if ks in (0, 1, 2) and (ks > 0 or i >= 2):
                    for _ in range(4):
                        if e3: k(e3.pop(0))
            assert not (ks == 2 and e3)
            if not first and ks >= 3:
                k(wn1(ks - 3, 1))
                if ks in (4, 6): k(wn1(10, 0) if ks == 4 else wn1(16, 0))
                if ks in (8, 10, 12, 14): k(wn1({8: 17, 10: 11, 12: 12, 14: 13}[ks], 0))
    k.label(f"M_{p}")
    body(True)
    k.label(f"M_{p}_loop")
    body(False)
    k.label(f"M_{p}_epi")
    if isV:
        pass2()
        stamp(k)
        k(f"ds_read_b32 v{CSR}, {eC1}")
        for rt in rB:
            k(f"ds_read_b128 {vr(8+8*rt,4)}, {eN} offset:{rt*64}")
            k(f"ds_read_b128 {vr(8+8*rt+4,4)}, {eN} offset:{320+rt*64}")
        k("s_waitcnt lgkmcnt(0)")
        for t in e3_list('N', accB, rB, lambda rt: 8+8*rt, CSR, eF1, True): k(t)
        k("s_waitcnt lgkmcnt(0)")
        stamp(k)
        k("s_setprio 0")
        k("s_barrier")
        stamp(k)
        for t in (wn1(15,1), wn1(16,1), wn1(17,1), wn1(14,0), wn1(15,0)): k(t)
        stamp(k)
        k("s_branch M_mid")
        return
    k(f"ds_read_b128 {vr(CSR,4)}, {eC0}")
    if kB == 'T': k(f"ds_read_b128 {vr(CSR+4,4)}, {eC1}")
    else: k(f"ds_read_b32 v{CSR+4}, {eC1}")
    for rt in range(5): k(f"ds_read2_b32 {vr(8+2*rt,2)}, {eT} offset0:{16*rt} offset1:{80+16*rt}")
    nb = {rt: 18 + 8*i for i, rt in enumerate(rB)}
    if kB == 'N':
        for rt in rB:
            k(f"ds_read_b128 {vr(nb[rt],4)}, {eN} offset:{rt*64}")
            k(f"ds_read_b128 {vr(nb[rt]+4,4)}, {eN} offset:{320+rt*64}")
    k("s_waitcnt lgkmcnt(0)")
    for t in e3_list('T', accA, rA, lambda rt: 8+2*rt, CSR, eF0): k(t)
    if kB == 'T':
        for t in e3_list('T', accB, rB, lambda rt: 8+2*rt, CSR+4, eF1): k(t)
    else:
        for t in e3_list('N', accB, rB, lambda rt: nb[rt], CSR+4, eF1): k(t)
    k("s_branch M_att")

def gen_att(k):
    k.label("M_att")
    RQ, KP, KS, QH = 8, 18, 28, 72
    S = [88, 96, 104, 40]; T = [48, 50, 52, 54]
    M1, M2 = "s[60:61]", "s[62:63]"
    k(f"""
    s_mov_b32 s58, 0x3eae1a93
    s_mov_b32 s59, 0x3eae1a93
    s_mov_b32 s60, 0xffff0000
    s_mov_b32 s61, -1
    s_mov_b32 s62, 0
    s_mov_b32 s63, -1
    s_waitcnt lgkmcnt(0)
    """)
    stamp(k)
    k("s_barrier")
    stamp(k)
    for t in range(5): k(f"ds_read_b64 {vr(RQ+2*t,2)}, {aQ} offset:{t*2560 + 512}")
    for j in range(4):
        k(f"ds_read_b64 {vr(KP+2*j,2)}, {aQ} offset:{(5+j)*2560}")
        k(f"ds_read_b64 {vr(KS+2*j,2)}, {aQ} offset:{(5+j)*2560 + 512}")
    k(f"ds_read_b64 {vr(KP+8,2)}, {aK}")
    k(f"ds_read_b64 {vr(KS+8,2)}, {aK} offset:512")
    def bgw(name, kss):
        for ks in kss:
            for t in wn_load(ks): k(t)
    k("s_waitcnt lgkmcnt(10)")
    def keep_ge(dst, src, x):
        if x <= 0: return f"v_mov_b32 v{dst}, v{src}"
        return f"v_cndmask_b32 v{dst}, 0, v{src}, {M1 if x == 1 else M2}"
    def keep_le(dst, src, x):
        if x < 0: return f"v_mov_b32 v{dst}, 0"
        return f"v_cndmask_b32 v{dst}, v{src}, 0, {M1 if x == 0 else M2}"
    for h in range(4):
        for p_ in range(2):
            k(keep_ge(QH+4*h+p_, RQ+2*h+p_, (h - p_ + 1)//2))
        for p_ in range(2):
            k(keep_le(QH+4*h+2+p_, RQ+2*(h+1)+p_, (h - p_)//2 if h - p_ >= 0 else -1))
    k("s_waitcnt lgkmcnt(0)\ns_nop 0")
    for h in range(4):
        k(f"v_mfma_f32_16x16x32_bf16 {vr(S[h],4)}, {vr(KP+2*h,4)}, {vr(QH+4*h,4)}, {vr(CBp,4)}")
        k(f"v_mfma_f32_16x16x32_bf16 {vr(S[h]+4,4)}, {vr(KS+2*h,4)}, {vr(QH+4*h,4)}, {vr(CBs,4)}")
    bgw("M_b2", (12,))
    k("s_nop 3")
    def allh(f):
        for h in range(4): k(f(h))
    for i in range(4): allh(lambda h: f"v_max_f32 v{S[h]+i}, v{S[h]+i}, v{S[h]+4+i}")
    allh(lambda h: f"v_max3_f32 v{T[h]}, v{S[h]}, v{S[h]+1}, v{S[h]+2}")
    allh(lambda h: f"v_max_f32 v{T[h]}, v{T[h]}, v{S[h]+3}")
    for op in ("v_permlane32_swap_b32", "v_permlane16_swap_b32"):
        allh(lambda h: f"v_mov_b32 v{T[h]+1}, v{T[h]}")
        allh(lambda h: f"{op} v{T[h]}, v{T[h]+1}")
        allh(lambda h: f"v_max_f32 v{T[h]}, v{T[h]}, v{T[h]+1}")
    allh(lambda h: f"v_mul_f32 v{T[h]}, s58, v{T[h]}")
    for i in range(4): allh(lambda h: f"v_fma_f32 v{S[h]+i}, v{S[h]+i}, s58, -v{T[h]}")
    for i in range(4): allh(lambda h: f"v_exp_f32 v{S[h]+i}, v{S[h]+i}")
    allh(lambda h: f"v_add_f32 v{S[h]+4}, v{S[h]}, v{S[h]+1}")
    allh(lambda h: f"v_add_f32 v{S[h]+5}, v{S[h]+2}, v{S[h]+3}")
    allh(lambda h: f"v_add_f32 v{T[h]}, v{S[h]+4}, v{S[h]+5}")
    for op in ("v_permlane32_swap_b32", "v_permlane16_swap_b32"):
        allh(lambda h: f"v_mov_b32 v{T[h]+1}, v{T[h]}")
        allh(lambda h: f"{op} v{T[h]}, v{T[h]+1}")
        allh(lambda h: f"v_add_f32 v{T[h]}, v{T[h]}, v{T[h]+1}")
    allh(lambda h: f"v_rcp_f32 v{T[h]}, v{T[h]}")
    for i in range(4): allh(lambda h: f"v_mul_f32 v{S[h]+i}, v{S[h]+i}, v{T[h]}")
    for i in range(2): allh(lambda h: f"v_cvt_pk_bf16_f32 v{S[h]+4+i}, v{S[h]+2*i}, v{S[h]+2*i+1}")
    for i in range(2): allh(lambda h: f"v_cndmask_b32 v{QH+4*h+i}, v{S[h]+4+i}, 0, s[80:81]")
    for i in range(2): allh(lambda h: f"v_cndmask_b32 v{QH+4*h+2+i}, 0, v{S[h]+4+i}, s[80:81]")
    bgw("M_b4", (13,))
    k(f"""
    s_mul_i32 s83, s3, {OBUF[1]-OBUF[0]}
    s_add_u32 s83, s83, {OBUF[0] - 6144}
    s_add_u32 s83, s83, s24
    s_mul_i32 s5, s20, 9216
    s_add_u32 s83, s83, s5
    """)
    stamp(k)
    k("s_barrier")
    stamp(k)
    VF = 8
    for t in range(5):
        k(f"ds_read_b64 {vr(VF+4*t,2)}, {aQ} offset:{(9+t)*2560}")
        k(f"ds_read_b64 {vr(VF+4*t+2,2)}, {aQ} offset:{(9+t)*2560 + 512}")
    for h in range(4):
        k(f"s_waitcnt lgkmcnt({6-2*h})")
        k(f"v_mfma_f32_16x16x32_bf16 {vr(S[h],4)}, {vr(VF+4*h,4)}, {vr(QH+4*h,4)}, 0")
        k(f"v_mfma_f32_16x16x32_bf16 {vr(S[h]+4,4)}, {vr(VF+4*(h+1),4)}, {vr(QH+4*h,4)}, 0")
    k("s_nop 3")
    for h in range(4):
        k(f"v_cvt_pk_bf16_f32 v{S[h]}, v{S[h]}, v{S[h]+1}")
        k(f"v_cvt_pk_bf16_f32 v{S[h]+1}, v{S[h]+2}, v{S[h]+3}")
        k(f"v_cvt_pk_bf16_f32 v{S[h]+4}, v{S[h]+4}, v{S[h]+5}")
        k(f"v_cvt_pk_bf16_f32 v{S[h]+5}, v{S[h]+6}, v{S[h]+7}")
        if h >= 1:
            for p_ in range(2):
                x = (h - p_ + 1)//2
                if x > 0: k(f"v_cndmask_b32 v{S[h]+p_}, v{S[h-1]+4+p_}, v{S[h]+p_}, {M1 if x == 1 else M2}")
        k(f"buffer_store_dwordx2 {vr(S[h],2)}, {vBO}, s[12:15], s83 offen sc1\ns_add_u32 s83, s83, 2048")
    k(f"""
    s_mov_b64 exec, 0xffffffff
    buffer_store_dwordx2 {vr(S[3]+4,2)}, {vBO}, s[12:15], s83 offen sc1
    s_mov_b64 exec, -1
    """)
    k("s_setprio 0")
    bgw("M_b5", (14, 15))
    stamp(k)

def gen_mid(k):
    k.label("M_mid")
    k(f"""
    s_mul_i32 s88, s3, {OBUF[1]-OBUF[0]}
    s_add_u32 s88, s88, {OBUF[0]}
    s_add_u32 s88, s88, s24
    s_lshl_b32 s90, s3, 13
    s_lshl_b32 s5, s21, 7
    s_add_u32 s90, s90, s5
    s_add_u32 s90, s90, {FLG}
    s_and_b32 s5, s4, 1
    s_lshl_b32 s6, s5, 12
    s_and_b32 s7, s4, 2
    s_lshl_b32 s7, s7, 8
    s_add_u32 s6, s6, s7
    v_add_u32 v108, s6, {vA}
    v_add_u32 v109, {4*8192}, v108
    s_mul_i32 s5, s5, 4608
    s_lshr_b32 s6, s4, 2
    s_mul_i32 s6, s6, 3072
    s_add_u32 s6, s6, s5
    s_add_u32 s6, s6, {WOL}
    v_add_u32 v7, s6, {vL}
    v_add_u32 v110, {4*9216}, v7
    v_lshrrev_b32 v71, 4, v0
    v_and_b32 v69, 7, v0
    v_lshl_add_u32 v69, v71, 3, v69
    v_lshlrev_b32 v69, 4, v69
    s_add_u32 s5, s5, {WOL + 4096}
    v_add_u32 v69, s5, v69
    v_add_u32 v111, {4*9216}, v69
    s_lshl_b32 s5, s4, 10
    s_add_u32 s88, s88, s5
    s_mul_i32 s5, s4, 3072
    s_add_u32 s5, s5, {XI}
    v_add_u32 v56, s5, {vL}
    s_xor_b32 s6, s4, 1
    s_mul_i32 s6, s6, 3072
    s_add_u32 s6, s6, {XI}
    v_add_u32 v71, s6, {vL}
    """)
    k("s_mov_b32 s91, s90")
    signal(k, "M_sigA")
    stamp(k)
    k(f"s_cmp_eq_u32 s4, 7\ns_cbranch_scc1 M_nolate\ns_mov_b32 s82, s87\ns_lshl_b32 s87, s4, 10")
    wo_dma(k, True)
    for _ in range(5): wo_dma(k, True)
    k.label("M_nolate")
    for r in range(72, 96): k(f"v_mov_b32 v{r}, 0")
    poll(k, "M_pollA", False)
    stamp(k)

def gen_Bphase(k):
    def odma(st):
        k(f"""
        s_add_u32 m0, s26, {st*8192}
        s_nop 0
        buffer_load_dwordx4 {vL}, s[12:15], s88 offen{XSC} lds
        s_add_u32 s88, s88, 8192
        """)
    PFD = 5
    for st in range(PFD):
        k(f"s_setprio {max(3-st,0)}")
        odma(st)
    k(f"""
    s_cmp_ge_u32 s4, 4
    s_cbranch_scc1 M_Bh1
    """)
    OF = [8, 28]; WFb = [16, 36]
    GR = {0: 0, 1: 2, 3: 5, 6: 8}
    for half in range(2):
        k.label(f"M_Bh{half}")
        n = 3 if half == 0 else 2
        def reads(st):
            p = st % 2
            hi = st >= 4; s_ = st - 4 if hi else st
            for r in range(2):
                k(f"ds_read_b128 {vr(OF[p]+4*r,4)}, {'v109' if hi else 'v108'} offset:{8192*s_ + 256*r}")
            for ct in range(n):
                if half == 1 and ct == 1:
                    k(f"ds_read_b128 {vr(WFb[p]+4*ct,4)}, {'v111' if hi else 'v69'} offset:{9216*s_}")
                else:
                    k(f"ds_read_b128 {vr(WFb[p]+4*ct,4)}, {'v110' if hi else 'v7'} offset:{9216*s_ + 1024*ct}")
        def mm(p):
            for ct in range(n):
                for r in range(2):
                    d = vr(72+12*r+4*ct, 4)
                    k(f"v_mfma_f32_16x16x32_bf16 {d}, {vr(WFb[p]+4*ct,4)}, {vr(OF[p]+4*r,4)}, {d}")
        nreads = 2 + n
        issued = PFD
        for st in range(9):
            if st in GR:
                k(f"s_waitcnt vmcnt({issued-1-GR[st]})")
                k("s_barrier")
                if st == 0 or 'f' in EXP: stamp(k)
            reads(st)
            for _ in range(2):
                if issued < 9: odma(issued); issued += 1
            if st > 0:
                k(f"s_waitcnt lgkmcnt({nreads})")
                mm((st-1) % 2)
            if st >= 3:
                k(f"s_cmp_lg_u32 s3, 0\ns_cbranch_scc1 M_g2{half}_{st}")
                if half == 0:
                    for ks in (2*(st-3), 2*(st-3)+1):
                        if ks < 10: k(wn1(ks, 0))
                else:
                    for t in wn_load(st-3): k(t)
                k.label(f"M_g2{half}_{st}")
            if half == 1 and st in (6, 7):
                for t in wn_load(10 + st): k(t)
        k("s_waitcnt lgkmcnt(0)")
        mm(0)
        if 'f' in EXP: stamp(k)
        k(f"""
        s_and_b32 s7, s4, 1
        s_cmp_eq_u32 s7, 0
        s_nop 6
        s_cbranch_scc1 M_Bx{half}_k0
        """)
        for kh in (1, 0):
            if kh == 0: k.label(f"M_Bx{half}_k0")
            keep = 72 + 12*kh; send = 72 + 12*(1-kh)
            for ct in range(n):
                k(f"ds_write_b128 v56, {vr(send+4*ct,4)} offset:{1024*ct}")
            k("s_waitcnt lgkmcnt(0)\ns_barrier")
            for ct in range(n):
                k(f"ds_read_b128 {vr(8+4*ct,4)}, v71 offset:{1024*ct}")
            for ct in range(n):
                k(f"s_waitcnt lgkmcnt({n-1-ct})")
                for h in range(2):
                    k(f"v_pk_add_f32 {vr(96+4*ct+2*h,2)}, {vr(keep+4*ct+2*h,2)}, {vr(8+4*ct+2*h,2)}")
            if kh == 1: k(f"s_branch M_Bx{half}_j")
        k.label(f"M_Bx{half}_j")
        stamp(k)
        T = lambda ct, i: 8 + 10*ct + i
        steps = [
            lambda ct, d, x: f"v_cvt_pk_bf16_f32 v{T(ct,8)}, v{d}, v{d+1}",
            lambda ct, d, x: f"v_cvt_pk_bf16_f32 v{T(ct,9)}, v{d+2}, v{d+3}",
            lambda ct, d, x: f"v_lshlrev_b32 v{T(ct,4)}, 16, v{x}",
            lambda ct, d, x: f"v_and_b32 v{T(ct,5)}, 0xffff0000, v{x}",
            lambda ct, d, x: f"v_lshlrev_b32 v{T(ct,6)}, 16, v{x+1}",
            lambda ct, d, x: f"v_and_b32 v{T(ct,7)}, 0xffff0000, v{x+1}",
            lambda ct, d, x: f"v_lshlrev_b32 v{T(ct,0)}, 16, v{T(ct,8)}",
            lambda ct, d, x: f"v_and_b32 v{T(ct,1)}, 0xffff0000, v{T(ct,8)}",
            lambda ct, d, x: f"v_lshlrev_b32 v{T(ct,2)}, 16, v{T(ct,9)}",
            lambda ct, d, x: f"v_and_b32 v{T(ct,3)}, 0xffff0000, v{T(ct,9)}",
            lambda ct, d, x: f"v_pk_add_f32 {vr(T(ct,0),2)}, {vr(T(ct,0),2)}, {vr(T(ct,4),2)}",
            lambda ct, d, x: f"v_pk_add_f32 {vr(T(ct,2),2)}, {vr(T(ct,2),2)}, {vr(T(ct,6),2)}",
            lambda ct, d, x: f"v_cvt_pk_bf16_f32 v{x}, v{T(ct,0)}, v{T(ct,1)}",
            lambda ct, d, x: f"v_cvt_pk_bf16_f32 v{x+1}, v{T(ct,2)}, v{T(ct,3)}",
        ]
        k(f"""
        s_mul_i32 s5, s3, {XSTR}
        s_add_u32 s5, s5, s24
        s_mul_i32 s6, s20, 9216
        s_add_u32 s5, s5, s6
        s_add_u32 s5, s5, {XSTR}
        """)
        for stp in steps:
            for ct in range(n): k(stp(ct, 96 + 4*ct, RES + 2*ct))
        k(f"""
        s_cmp_eq_u32 s3, 3
        s_cbranch_scc1 M_Bf{half}
        """)
        for ct in range(n):
            x = RES + 2*ct
            if half == 1 and ct == 1: k("s_mov_b64 exec, 0xffffffff")
            k(f"buffer_store_dwordx2 {vr(x,2)}, {vBO}, s[12:15], s5 offen sc1\ns_add_u32 s5, s5, 2048")
        k("s_mov_b64 exec, -1")
        if half == 1:
            k(f"""
            s_mov_b32 s6, 0
            s_mov_b32 s7, -1
            v_cndmask_b32 v40, v{RES+2}, 0, s[6:7]
            v_cndmask_b32 v41, v{RES+3}, 0, s[6:7]
            """)
        srcs = [(RES+2*ct if not (half == 1 and ct == 1) else 40) for ct in range(n)]
        for ct in range(n):
            x = srcs[ct]
            k(f"""
            v_lshlrev_b32 v{8+4*ct}, 16, v{x}
            v_and_b32 v{9+4*ct}, 0xffff0000, v{x}
            v_lshlrev_b32 v{10+4*ct}, 16, v{x+1}
            v_and_b32 v{11+4*ct}, 0xffff0000, v{x+1}
            """)
        k(f"v_pk_add_f32 v[24:25], v[8:9], v[10:11]\nv_pk_mul_f32 v[26:27], v[8:9], v[8:9]\nv_pk_fma_f32 v[26:27], v[10:11], v[10:11], v[26:27]")
        for i in range(2, 2*n):
            k(f"v_pk_add_f32 v[24:25], v[24:25], {vr(8+2*i,2)}\nv_pk_fma_f32 v[26:27], {vr(8+2*i,2)}, {vr(8+2*i,2)}, v[26:27]")
        k(f"""
        v_add_f32 v28, v24, v25
        v_add_f32 v29, v26, v27
        v_mov_b32 v30, v28
        v_mov_b32 v31, v29
        s_lshl_b32 s5, s3, 18
        s_lshl_b32 s6, s21, 13
        v_permlane32_swap_b32 v28, v30
        v_permlane32_swap_b32 v29, v31
        v_pk_add_f32 v[28:29], v[28:29], v[30:31]
        v_mov_b32 v30, v28
        v_mov_b32 v31, v29
        s_add_u32 s5, s5, s6
        s_lshl_b32 s6, s20, 10
        v_permlane16_swap_b32 v28, v30
        v_permlane16_swap_b32 v29, v31
        v_pk_add_f32 v[28:29], v[28:29], v[30:31]
        s_add_u32 s5, s5, s6
        s_and_b32 s6, s4, 3
        s_lshl_b32 s6, s6, 7
        s_add_u32 s5, s5, s6
        s_add_u32 s5, s5, {PST + (1 << 18) + 512*half}
        v_lshlrev_b32 v30, 3, v0
        s_mov_b64 exec, 0xffff
        buffer_store_dwordx2 v[28:29], v30, s[12:15], s5 offen sc1
        s_mov_b64 exec, -1
        s_branch M_Bdone
        """)
        k.label(f"M_Bf{half}")
        for ct in range(n):
            x = RES + 2*ct
            if half == 1 and ct == 1: k("s_mov_b64 exec, 0xffffffff")
            k(f"buffer_store_dwordx2 {vr(x,2)}, {vBN}, s[92:95], 0 offen offset:{32*ct}")
        k("s_mov_b64 exec, -1\ns_branch M_fin")
    k.label("M_Bdone")
    stamp(k)
    k("s_add_u32 s91, s90, 4096")
    signal(k, "M_sigB")
    stamp(k)
    k("s_cmp_lt_u32 s4, 4\ns_cbranch_scc1 M_g3")
    guarded0(k, "M_g3", range(6, 12))
    k(f"""
    s_add_u32 s3, s3, 1
    s_and_b32 s5, s3, 1
    s_cmp_eq_u32 s5, 0
    s_mov_b32 s28, {PQ[0]}
    s_cselect_b32 s28, {PQ[1]}, s28
    s_add_u32 s28, s28, s96
    s_cmp_eq_u32 s3, 3
    s_cselect_b32 s18, 0, s18
    """)
    x_setup(k)
    wo_setup(k)
    k("s_cmp_eq_u32 s4, 7\ns_cbranch_scc1 M_nowo")
    for i in range(6): wo_dma(k)
    k.label("M_nowo")
    poll(k, "M_pollB", True)
    stamp(k)
    if 'r' in EXP: k("s_add_u32 s84, s3, 1")
    rts(k, "s84", True)
    dispatch(k, "_loop")
    k.label("M_fin")
    if 'r' in EXP: k("s_waitcnt vmcnt(0)")
    rts(k, 5, True)
    if DBG:
        k(f"""
        s_waitcnt vmcnt(0)
        """)
        stamp(k)
        k(f"""
        s_lshl_b32 s5, s2, 3
        s_add_u32 s5, s5, s4
        s_lshl_b32 s5, s5, 8
        s_add_u32 s5, s5, {DBGO}
        v_lshlrev_b32 v2, 2, v0
        buffer_store_dword v68, v2, s[12:15], s5 offen
        """)


def kd(name, vgpr, sgpr=102):
    acc = (vgpr + 3)//4*4
    return f""".p2align 6
.amdhsa_kernel {name}
  .amdhsa_next_free_vgpr {vgpr}
  .amdhsa_next_free_sgpr {sgpr}
  .amdhsa_accum_offset {acc}
  .amdhsa_group_segment_fixed_size 0
  .amdhsa_kernarg_size 72
  .amdhsa_user_sgpr_count 2
  .amdhsa_user_sgpr_kernarg_segment_ptr 1
  .amdhsa_system_sgpr_workgroup_id_x 1
.end_amdhsa_kernel
"""

def main():
    out = sys.argv[1]
    global DBG
    DBG = len(sys.argv) > 2 and sys.argv[2] == '1'
    hdr = [f"; @launch kernel=p_kernel grid=({NP},1,1) block=(256,1,1) lds=16384",
           f"; @launch kernel=m_kernel grid=(256,1,1) block=(512,1,1) lds={LDSZ}"]
    k = K()
    k.raw('.amdgcn_target "amdgcn-amd-amdhsa--gfx950"\n.text')
    k.raw(f".globl p_kernel\n.p2align 8\n.type p_kernel,@function\np_kernel:")
    gen_P(k)
    k.raw(f".globl m_kernel\n.p2align 8\n.type m_kernel,@function\nm_kernel:")
    gen_M(k)
    k.raw('.section .rodata,"a"')
    k.raw(kd("p_kernel", 96))
    k.raw(kd("m_kernel", 256))
    open(out, "w").write("\n".join(hdr) + "\n" + k.text())
main()
```

```python
import sys

XB = 2048 * 576 * 2
WQB = 576 * 1728 * 2
WOB = 576 * 576 * 2
XSTR = 0x280000
XBUF = [0x000000, 0x280000, 0x500000, 0x780000]
OBUF = [0xA00000, 0xC80000, 0xF00000, 0x1180000]
PQ = [0x1400000, 0x1600000]
PO = [0x1800000, 0x1A00000]
CS = [0x1B00000, 0x1B10000]
FLG = 0x1B20000
DBGO = 0x1900000
WSZ = 0x2000000
BLK = 73728

class K:
    def __init__(self): self.l = []; self.bg = []
    def bgp(self, n=1):
        for _ in range(n):
            if self.bg: self(self.bg.pop(0))
    def __call__(self, s):
        for x in s.strip().split("\n"):
            x = x.strip()
            if x: self.l.append("    " + x)
    def label(self, n): self.l.append(n + ":")
    def raw(self, s): self.l.append(s)
    def text(self): return "\n".join(self.l) + "\n"

DBG = False
import os
EXP = os.environ.get("EXP", "")
def stamp(k):
    if DBG:
        k(("s_memrealtime" if 'R' in EXP else "s_memtime") + """ s[98:99]
        s_waitcnt lgkmcnt(0)
        s_mov_b32 m0, s100
        v_writelane_b32 v68, s98, m0
        s_add_u32 s100, s100, 1
        s_min_u32 s100, s100, 63""")
def rts(k, idx, main):
    if 'r' not in EXP: return
    lab = f"rts_{len(k.l)}"
    k(f"""s_or_b32 s5, s2, s4
    s_cmp_lg_u32 s5, 0
    s_cbranch_scc1 {lab}
    s_memrealtime s[98:99]
    s_waitcnt lgkmcnt(0)
    s_add_u32 s6, s46, {0 if main else 512}
    s_addc_u32 s7, s47, 0
    s_mov_b64 exec, 1
    v_mov_b32 v2, {idx}
    v_lshlrev_b32 v2, 2, v2
    v_mov_b32 v3, s98
    global_store_dword v2, v3, s[6:7]
    s_mov_b64 exec, -1""")
    k.label(lab)
def vr(a, n): return f"v[{a}:{a+n-1}]"

def head(k, pfx, nwg):
    k(f"""
    s_cmp_ge_u32 s2, {nwg}
    s_cbranch_scc1 {pfx}_exit
    s_load_dwordx16 s[32:47], s[0:1], 0
    s_load_dwordx2 s[48:49], s[0:1], 64
    v_lshrrev_b32 v1, 6, v0
    v_and_b32 v0, 63, v0
    v_readfirstlane_b32 s4, v1
    """)

def emit_k_from_rho(k, vk, vrho, vt):
    k(f"""
    v_and_b32 {vk}, 0x78, {vrho}
    v_bfe_u32 {vt}, {vrho}, 1, 2
    v_or_b32 {vk}, {vk}, {vt}
    v_and_b32 {vt}, 1, {vrho}
    v_lshl_or_b32 {vk}, {vt}, 2, {vk}
    """)

def tile_off(t):
    if t < 4: return 32*t
    if t == 4: return None
    if t < 9: return 144 + 32*(t-5)
    return 288 + 32*(t-9)

NQ, NO, NC = 288, 96, 54
NX = 72
NW = 16 if 'w' in EXP else 0
NP0 = NQ + NO + NC + 1 + NX
NP = NP0 + NW
def gen_P(k):
    k.label("P_body")
    head(k, "P", NP)
    k(f"""
    s_waitcnt lgkmcnt(0)""")
    rts(k, 0, False)
    k(f"""
    s_mov_b32 s16, s48
    s_mov_b32 s17, s49
    s_mov_b32 s18, {WSZ}
    s_mov_b32 s19, 0x20000
    s_mov_b32 s11, 0x20000
    v_lshrrev_b32 v3, 4, v0
    v_bfe_u32 v4, v0, 2, 2
    v_lshlrev_b32 v4, 1, v4
    v_lshl_add_u32 v12, v3, 3, v4
    v_and_b32 v13, 3, v0
    v_lshlrev_b32 v13, 3, v13
    v_lshlrev_b32 v14, 4, v0
    v_and_b32 v4, 7, v0
    v_lshl_add_u32 v15, v3, 3, v4
    v_lshlrev_b32 v15, 4, v15
    v_and_b32 v4, 8, v0
    v_cmp_eq_u32 s[50:51], 0, v4
    v_bfrev_b32 v16, 1
    s_cmp_ge_u32 s2, {NP0}
    s_cbranch_scc1 P_warm
    s_cmp_gt_u32 s2, {NQ+NO+NC}
    s_cbranch_scc1 P_x
    s_cmp_eq_u32 s2, {NQ+NO+NC}
    s_cbranch_scc1 P_flg
    s_cmp_ge_u32 s2, {NQ+NO}
    s_cbranch_scc1 P_cs
    s_cmp_ge_u32 s2, {NQ}
    s_cbranch_scc1 P_o
    """)
    k(f"""
    s_cmp_ge_u32 s2, 144
    s_cselect_b32 s5, 144, 0
    s_cselect_b64 s[8:9], s[40:41], s[34:35]
    s_mov_b32 s22, {PQ[0]}
    s_cselect_b32 s22, {PQ[1]}, s22
    s_mov_b32 s10, {WQB}
    s_sub_u32 s5, s2, s5
    s_mul_i32 s6, s5, 3641
    s_lshr_b32 s6, s6, 16
    s_mul_i32 s7, s6, 18
    s_sub_u32 s7, s5, s7
    s_mul_i32 s23, s5, 13824
    s_add_u32 s22, s22, s23
    s_mul_i32 s24, s7, {32*3456}
    s_mul_i32 s25, s6, 144
    s_add_u32 s24, s24, s25
    """)
    for n in range(4):
        k(f"""
        s_lshl_b32 s26, s4, 6
        s_add_u32 s26, s26, {256*n}
        v_add_u32 v2, s26, v0
        v_cmp_gt_u32 vcc, 864, v2
        v_mul_u32_u24 v3, 2428, v2
        v_lshrrev_b32 v3, 16, v3
        v_mul_u32_u24 v4, 27, v3
        v_sub_u32 v2, v2, v4
        v_mul_u32_u24 v4, 57, v2
        v_lshrrev_b32 v4, 9, v4
        v_mul_u32_u24 v5, 9, v4
        v_sub_u32 v2, v2, v5
        """)
        emit_k_from_rho(k, "v5", "v3", "v6")
        k(f"""
        v_mul_u32_u24 v5, 3456, v5
        v_mul_u32_u24 v4, 1152, v4
        v_add_u32 v5, v5, v4
        v_lshl_add_u32 v5, v2, 4, v5
        v_cndmask_b32 v5, v16, v5, vcc
        s_lshl_b32 s26, s26, 4
        s_mov_b32 m0, s26
        s_nop 0
        buffer_load_dwordx4 v5, s[8:11], s24 offen lds
        """)
    k(f"""
    v_mul_u32_u24 v12, 432, v12
    v_add_u32 v12, v12, v13
    v_bfe_u32 v5, v0, 1, 1
    v_lshlrev_b32 v5, 7, v5
    v_add_u32 v5, 128, v5
    v_add_u32 v13, v12, v5
    s_waitcnt vmcnt(0)
    s_barrier
    """)
    for w in range(1, 4): k(f"s_cmp_eq_u32 s4, {w}\ns_cbranch_scc1 P_q{w}")
    for w in range(4):
        k.label(f"P_q{w}")
        ts = [t for t in range(w, 14, 4)]
        for i, t in enumerate(ts):
            for b in range(2):
                if t == 4: k(f"ds_read_b64_tr_b16 {vr(20+4*i+2*b,2)}, v13 offset:{b*432}")
                else: k(f"ds_read_b64_tr_b16 {vr(20+4*i+2*b,2)}, v12 offset:{b*432 + tile_off(t)}")
        for i, t in enumerate(ts):
            k(f"s_waitcnt lgkmcnt({2*(len(ts)-1-i)})")
            k(f"s_add_u32 s26, s22, {t*1024}")
            if t == 13:
                k("s_mov_b64 exec, s[50:51]")
                k(f"buffer_store_dwordx4 {vr(20+4*i,4)}, v15, s[16:19], s26 offen")
            else:
                k(f"buffer_store_dwordx4 {vr(20+4*i,4)}, v14, s[16:19], s26 offen")
        k("s_endpgm")
    k.label("P_o")
    k(f"""
    s_sub_u32 s5, s2, {NQ}
    s_cmp_ge_u32 s5, 48
    s_cselect_b32 s6, 48, 0
    s_cselect_b64 s[8:9], s[42:43], s[36:37]
    s_mov_b32 s22, {PO[0]}
    s_cselect_b32 s22, {PO[1]}, s22
    s_mov_b32 s10, {WOB}
    s_sub_u32 s5, s5, s6
    s_mul_i32 s6, s5, 43
    s_lshr_b32 s6, s6, 8
    s_mul_i32 s7, s6, 6
    s_sub_u32 s7, s5, s7
    s_mul_i32 s23, s5, 13824
    s_add_u32 s22, s22, s23
    s_mul_i32 s24, s7, {96*1152}
    s_mul_i32 s25, s6, 144
    s_add_u32 s24, s24, s25
    """)
    for n in range(4):
        k(f"""
        s_lshl_b32 s26, s4, 6
        s_add_u32 s26, s26, {256*n}
        v_add_u32 v2, s26, v0
        v_cmp_gt_u32 vcc, 864, v2
        v_mul_u32_u24 v3, 7282, v2
        v_lshrrev_b32 v3, 16, v3
        v_mul_u32_u24 v4, 9, v3
        v_sub_u32 v2, v2, v4
        """)
        emit_k_from_rho(k, "v5", "v3", "v6")
        k(f"""
        v_mul_u32_u24 v5, 1152, v5
        v_lshl_add_u32 v5, v2, 4, v5
        v_cndmask_b32 v5, v16, v5, vcc
        s_lshl_b32 s26, s26, 4
        s_mov_b32 m0, s26
        s_nop 0
        buffer_load_dwordx4 v5, s[8:11], s24 offen lds
        """)
    k(f"""
    v_mul_u32_u24 v12, 144, v12
    v_add_u32 v12, v12, v13
    s_waitcnt vmcnt(0)
    s_barrier
    """)
    for w in range(1, 4): k(f"s_cmp_eq_u32 s4, {w}\ns_cbranch_scc1 P_o{w}")
    for w in range(4):
        k.label(f"P_o{w}")
        ts = [t for t in range(w, 15, 4)]
        for i, t in enumerate(ts):
            ks, ct = t // 5, t % 5
            for b in range(2):
                k(f"ds_read_b64_tr_b16 {vr(20+4*i+2*b,2)}, v12 offset:{ks*4608 + b*144 + 32*ct}")
        for i, t in enumerate(ts):
            ks, ct = t // 5, t % 5
            k(f"s_waitcnt lgkmcnt({2*(len(ts)-1-i)})")
            k(f"s_add_u32 s26, s22, {ks*4608 + ct*1024}")
            if ct == 4:
                k("s_mov_b64 exec, s[50:51]")
                k(f"buffer_store_dwordx4 {vr(20+4*i,4)}, v15, s[16:19], s26 offen")
                k("s_mov_b64 exec, -1")
            else:
                k(f"buffer_store_dwordx4 {vr(20+4*i,4)}, v14, s[16:19], s26 offen")
        k("s_endpgm")
    k.label("P_cs")
    k(f"""
    s_sub_u32 s5, s2, {NQ+NO}
    s_cmp_ge_u32 s5, 27
    s_cselect_b32 s6, 27, 0
    s_cselect_b64 s[8:9], s[40:41], s[34:35]
    s_mov_b32 s22, {CS[0]}
    s_cselect_b32 s22, {CS[1]}, s22
    s_mov_b32 s10, {WQB}
    s_sub_u32 s5, s5, s6
    s_lshl_b32 s24, s5, 7
    s_lshl_b32 s23, s5, 8
    s_add_u32 s22, s22, s23
    s_lshl_b32 s6, s4, 3
    v_lshrrev_b32 v2, 3, v0
    v_add_u32 v2, s6, v2
    v_and_b32 v3, 7, v0
    v_mul_u32_u24 v4, 3456, v2
    v_lshl_add_u32 v4, v3, 4, v4
    """)
    for r in range(18):
        k(f"buffer_load_dwordx4 {vr(24+4*r,4)}, v4, s[8:11], s24 offen")
        k(f"s_add_u32 s24, s24, {32*3456}")
    for i in range(8): k(f"v_mov_b32 v{8+i}, 0")
    for r in range(18):
        k(f"s_waitcnt vmcnt({17-r})")
        for d in range(4):
            k(f"""
            v_lshlrev_b32 v5, 16, v{24+4*r+d}
            v_and_b32 v6, 0xffff0000, v{24+4*r+d}
            v_add_f32 v{8+2*d}, v{8+2*d}, v5
            v_add_f32 v{9+2*d}, v{9+2*d}, v6
            """)
    k(f"""
    v_lshlrev_b32 v5, 8, v2
    v_lshl_add_u32 v5, v3, 5, v5
    ds_write_b128 v5, v[8:11]
    ds_write_b128 v5, v[12:15] offset:16
    s_waitcnt lgkmcnt(0)
    s_barrier
    s_cmp_lg_u32 s4, 0
    s_cbranch_scc1 P_exit
    v_lshlrev_b32 v5, 2, v0
    """)
    for r in range(32): k(f"ds_read_b32 v{24+r}, v5 offset:{256*r}")
    k("s_waitcnt lgkmcnt(0)")
    for st in (16, 8, 4, 2, 1):
        for i in range(st): k(f"v_add_f32 v{24+i}, v{24+i}, v{24+i+st}")
    k("buffer_store_dword v24, v5, s[16:19], s22 offen")
    k("s_endpgm")
    k.label("P_flg")
    k(f"""
    v_mov_b32 v8, 0
    v_mov_b32 v9, 0
    v_mov_b32 v10, 0
    v_mov_b32 v11, 0
    s_lshl_b32 s5, s4, 13
    s_add_u32 s5, s5, {FLG}
    """)
    for i in range(8):
        k(f"buffer_store_dwordx4 v[8:11], v14, s[16:19], s5 offen\ns_add_u32 s5, s5, 1024")
    k("s_endpgm")
    k.label("P_warm")
    k(f"""
    s_getpc_b64 s[20:21]
    s_add_u32 s20, s20, m_kernel - . + 4
    s_addc_u32 s21, s21, 0
    s_mul_i32 s5, s4, 12288
    v_add_u32 v2, s5, v14
    """)
    for i in range(12):
        k(f"v_min_u32 v3, M_exit - m_kernel - 16, v2\nglobal_load_dwordx4 {vr(20+4*i,4)}, v3, s[20:21]\nv_add_u32 v2, 1024, v2")
    k("s_waitcnt vmcnt(0)\ns_endpgm")
    k.label("P_x")
    k(f"""
    s_sub_u32 s5, s2, {NQ+NO+NC+1}
    s_lshl_b32 s5, s5, 2
    s_add_u32 s5, s5, s4
    s_mul_i32 s6, s5, 7282
    s_lshr_b32 s6, s6, 16
    s_mul_i32 s7, s6, 9
    s_sub_u32 s7, s5, s7
    s_mov_b32 s8, s32
    s_mov_b32 s9, s33
    s_mov_b32 s10, {XB}
    s_lshr_b32 s22, s6, 4
    s_and_b32 s23, s6, 15
    s_mul_i32 s24, s23, {128*1152}
    s_mul_i32 s25, s22, 1152
    s_add_u32 s24, s24, s25
    s_lshl_b32 s25, s7, 7
    s_add_u32 s24, s24, s25
    s_mul_i32 s26, s6, {BLK}
    s_lshl_b32 s25, s7, 13
    s_add_u32 s26, s26, s25
    s_add_u32 s26, s26, {XBUF[0]}
    v_lshrrev_b32 v2, 3, v0
    v_and_b32 v3, 7, v0
    v_mul_u32_u24 v4, 2304, v2
    v_lshl_add_u32 v4, v3, 4, v4
    v_lshlrev_b32 v5, 10, v3
    v_lshl_add_u32 v5, v2, 4, v5
    """)
    for i in range(8):
        k(f"buffer_load_dwordx4 {vr(20+4*i,4)}, v4, s[8:11], s24 offen\ns_add_u32 s24, s24, {8*2304}")
    for i in range(8):
        k(f"s_waitcnt vmcnt({7-i + i})" if False else f"s_waitcnt vmcnt(7)")
        k(f"buffer_store_dwordx4 {vr(20+4*i,4)}, v5, s[16:19], s26 offen offset:{128*i}")
    k(f"""
    v_mov_b32 v6, 0x3f803f80
    s_lshl_b32 s27, s6, 13
    s_lshl_b32 s25, s7, 9
    s_add_u32 s27, s27, s25
    s_add_u32 s27, s27, {0x1C00000}
    v_lshlrev_b32 v7, 3, v2
    v_cmp_eq_u32 s[52:53], 0, v3
    """)
    for i in range(8):
        a = 56 + 2*i
        k(f"v_dot2_f32_bf16 v{a}, v{20+4*i}, v6, 0\nv_dot2_f32_bf16 v{a+1}, v{20+4*i}, v{20+4*i}, 0")
        for d in range(1, 4):
            k(f"v_dot2_f32_bf16 v{a}, v{20+4*i+d}, v6, v{a}\nv_dot2_f32_bf16 v{a+1}, v{20+4*i+d}, v{20+4*i+d}, v{a+1}")
    k("s_nop 3")
    for dp in ("quad_perm:[1,0,3,2]", "quad_perm:[2,3,0,1]", "row_half_mirror"):
        for r in range(56, 72): k(f"v_add_f32_dpp v{r}, v{r}, v{r} {dp} row_mask:0xf bank_mask:0xf")
    k("s_mov_b64 exec, s[52:53]")
    for i in range(8):
        k(f"buffer_store_dwordx2 {vr(56+2*i,2)}, v7, s[16:19], s27 offen offset:{64*i}")
    k(f"""
    s_mov_b64 exec, -1
    s_cmp_ge_u32 s7, 7
    s_cbranch_scc1 P_exit
    v_mov_b32 v8, 0
    v_mov_b32 v9, 0
    v_lshlrev_b32 v7, 3, v0
    s_add_u32 s27, s27, {9*512}
    buffer_store_dwordx2 v[8:9], v7, s[16:19], s27 offen
    """)
    k.label("P_exit")
    k("s_endpgm")

CSL = [640, 1536]
XI = 3072
HALO = XI + BLK
WOL = 80896
FR = WOL + 46*1024
LDSZ = 163840
PST = 0x1C00000
A0, A1, ACC, WF = 8, 28, 72, 112
CSR = 48
vA, vAh, vH = "v1", "v4", "v5"
vX2, vW0, vW1, vBN, vBO, vL = "v57", "v58", "v59", "v66", "v67", "v70"
RES = 60
HI = 9*4096
XSC = " sc1"

def gen_M(k):
    k.label("M_body")
    head(k, "M", 256)
    k(f"""
    s_and_b32 s5, s2, 7
    s_lshr_b32 s6, s2, 3
    s_and_b32 s7, s5, 1
    s_lshl_b32 s7, s7, 2
    s_and_b32 s20, s6, 3
    s_add_u32 s20, s20, s7
    s_lshr_b32 s7, s5, 1
    s_lshl_b32 s7, s7, 3
    s_lshr_b32 s21, s6, 2
    s_add_u32 s21, s21, s7
    s_lshr_b32 s22, s21, 4
    s_and_b32 s23, s21, 15
    s_mul_i32 s24, s21, {BLK}
    s_mul_i32 s25, s20, 144
    s_mov_b32 s3, 0
    s_mov_b32 s100, 0
    s_mov_b32 s101, 1
    v_mov_b32 v68, 0
    v_lshlrev_b32 {vL}, 4, v0
    s_lshl_b32 s26, s4, 10
    s_add_u32 s26, s26, {XI}
    s_add_u32 s31, s4, 9
    s_mov_b32 s30, s4
    s_cmp_lt_u32 s4, 4
    s_cbranch_scc1 M_tiles_ok
    s_add_u32 s30, s4, 1
    s_cmp_lt_u32 s4, 6
    s_cselect_b32 s31, 13, 4
    """)
    k.label("M_tiles_ok")
    k(f"""
    s_lshl_b32 s5, s30, 10
    v_add_u32 {vW0}, s5, {vL}
    s_lshl_b32 s5, s31, 10
    v_add_u32 {vW1}, s5, {vL}
    v_and_b32 v2, 15, v0
    v_lshrrev_b32 v3, 4, v0
    v_and_b32 v8, 7, v0
    v_lshl_add_u32 v10, v3, 3, v8
    v_lshlrev_b32 v10, 4, v10
    s_cmp_lg_u32 s31, 13
    s_cbranch_scc1 M_nh
    v_add_u32 {vW1}, {13*1024}, v10
    """)
    k.label("M_nh")
    k(f"""
    v_lshlrev_b32 v6, 4, v2
    v_lshl_add_u32 {vA}, v3, 10, v6
    v_add_u32 {vA}, {XI}, {vA}
    v_add_u32 {vAh}, {HI}, {vA}
    v_and_b32 v8, 0x70, v6
    v_lshl_add_u32 {vH}, v3, 7, v8
    v_add_u32 {vH}, {HALO}, {vH}
    v_lshrrev_b32 v8, 3, v0
    v_and_b32 v9, 7, v0
    v_lshlrev_b32 v9, 4, v9
    v_lshl_add_u32 v8, v8, 10, v9
    v_add_u32 v8, 896, v8
    v_bfrev_b32 v9, 1
    s_cmp_eq_u32 s23, 0
    s_cselect_b64 vcc, -1, 0
    s_and_b32 s6, s4, 3
    s_lshl_b32 s6, s6, 4
    v_cndmask_b32 {vX2}, v8, v9, vcc
    v_add_u32 v8, s6, v2
    v_lshrrev_b32 v9, 1, v3
    v_lshlrev_b32 v9, 10, v9
    v_lshl_add_u32 v9, v8, 4, v9
    v_and_b32 v10, 1, v3
    v_lshl_add_u32 v9, v10, 3, v9
    s_lshr_b32 s7, s4, 2
    s_mul_i32 s5, s7, 6144
    v_add_u32 {vBO}, s5, v9
    s_lshl_b32 s5, s23, 6
    v_add_u32 v8, s5, v8
    v_lshlrev_b32 v8, 1, v8
    v_add_u32 v8, s22, v8
    v_mul_u32_u24 v8, 1152, v8
    v_lshl_add_u32 v8, v3, 3, v8
    s_mul_i32 s7, s7, 96
    s_add_u32 s7, s7, s25
    v_add_u32 {vBN}, s7, v8
    s_waitcnt lgkmcnt(0)
    s_mov_b32 s12, s48
    s_mov_b32 s13, s49
    s_mov_b32 s14, {WSZ}
    s_mov_b32 s15, 0x20000
    s_mov_b32 s16, s48
    s_mov_b32 s17, s49
    s_mov_b32 s18, {WSZ}
    s_mov_b32 s19, 0x20000
    s_mov_b32 s92, s44
    s_mov_b32 s93, s45
    s_mov_b32 s94, {XB}
    s_mov_b32 s95, 0x20000
    s_mul_i32 s96, s20, {18*13824}
    s_add_u32 s28, s96, {PQ[1]}
    s_add_u32 s86, s96, {PQ[0]}
    """)
    x_setup(k)
    k("s_max_i32 s85, s85, 0")
    wo_setup(k)
    stamp(k)
    dispatch(k, "")
    for p in PROGS:
        gen_prog(k, p)
    gen_att(k)
    gen_mid(k)
    gen_Bphase(k)
    k.label("M_exit")
    k("s_endpgm")

def poll_core(k, name):
    k(f"""
    s_mov_b32 s5, 0x20000
    buffer_load_dword v8, v2, s[12:15], s91 offen sc1
    s_sleep 2
    buffer_load_dword v9, v2, s[12:15], s91 offen sc1
    s_sleep 2
    """)
    k.label(f"{name}_loop")
    for r in (10, 8, 9):
        chk = {10: 8, 8: 9, 9: 10}[r]
        k(f"""
        buffer_load_dword v{r}, v2, s[12:15], s91 offen sc1
        s_waitcnt vmcnt(2)
        v_cmp_eq_u32 vcc, s101, v{chk}
        s_nop 1
        s_cmp_eq_u64 vcc, exec
        s_cbranch_scc1 {name}_ok
        """)
    k(f"""
    s_sub_u32 s5, s5, 1
    s_cmp_lg_u32 s5, 0
    s_cbranch_scc1 {name}_loop
    """)
    k.label(f"{name}_ok")
    k("s_mov_b64 exec, -1")

def poll_simple(k, name, vtmp):
    k("s_mov_b32 s5, 0x40000")
    k.label(f"{name}_loop")
    k(f"""
    buffer_load_dword {vtmp}, v2, s[12:15], s91 offen sc1
    s_waitcnt vmcnt(0)
    v_cmp_eq_u32 vcc, s101, {vtmp}
    s_nop 1
    s_cmp_eq_u64 vcc, exec
    s_cbranch_scc1 {name}_ok
    s_sleep 2
    s_sub_u32 s5, s5, 1
    s_cmp_lg_u32 s5, 0
    s_cbranch_scc1 {name}_loop
    """)
    k.label(f"{name}_ok")
    k("s_mov_b64 exec, -1")

def poll(k, name, two):
    k(f"""
    s_cmp_lg_u32 s4, 7
    s_cbranch_scc1 {name}_done
    v_and_b32 v2, 7, v0
    v_lshlrev_b32 v2, 2, v2
    """)
    if two:
        k(f"""
        s_cmp_eq_u32 s23, 0
        s_cselect_b32 s5, 128, 0
        v_and_b32 v3, 8, v0
        v_lshlrev_b32 v3, 4, v3
        v_max_u32 v3, s5, v3
        v_add_u32 v2, v2, v3
        s_sub_u32 s91, s91, 128
        s_mov_b64 exec, 0xffff
        """)
    else:
        k("s_mov_b64 exec, 0xff")
    poll_core(k, name)
    k.label(f"{name}_done")
    k("s_barrier")

def flag_store(k, soff, voff_expr):
    k(f"""
    s_mov_b64 exec, 1
    v_mov_b32 v2, {voff_expr}
    v_mov_b32 v3, s101
    buffer_store_dword v3, v2, s[12:15], {soff} offen sc1
    s_mov_b64 exec, -1
    """)

def signal(k, name, extra=None):
    k(f"""
    s_waitcnt vmcnt(0)
    s_barrier
    s_cmp_lg_u32 s4, 7
    s_cbranch_scc1 {name}_ns
    s_lshl_b32 s5, s20, 2
    """)
    flag_store(k, "s91", "s5")
    if extra: extra()
    k.label(f"{name}_ns")

def wo_dma(k, late=False):
    if late:
        k(f"""
        s_add_u32 s6, s87, {41*1024}
        s_cmp_lt_u32 s87, {5*1024}
        s_cselect_b32 s6, s87, s6
        s_min_u32 s6, s6, {80*1024}
        """)
    else:
        k(f"s_min_u32 s6, s87, {45*1024}")
    k(f"""
    s_add_u32 m0, s6, {WOL}
    s_add_u32 s7, s6, s89
    buffer_load_dwordx4 {vL}, s[12:15], s7 offen lds
    s_add_u32 s87, s87, 7168
    """)
def wo_setup(k):
    k(f"""
    s_and_b32 s5, s3, 1
    s_cmp_eq_u32 s5, 0
    s_mov_b32 s89, {PO[1]}
    s_cselect_b32 s89, {PO[0]}, s89
    s_mul_i32 s5, s20, {18*4608}
    s_add_u32 s89, s89, s5
    s_lshl_b32 s87, s4, 10
    s_add_u32 s87, s87, {5*1024}
    """)
def x_setup(k):
    k(f"""
    s_mul_i32 s27, s3, {XSTR}
    s_add_u32 s27, s27, s24
    s_sub_u32 s85, s27, {BLK}
    s_lshl_b32 s5, s4, 10
    s_add_u32 s27, s27, s5
    """)
def wn1(ks, c):
    return f"s_add_u32 s84, s28, {ks*13824}\nbuffer_load_dwordx4 {vr(WF + 8*ks + 4*c, 4)}, {vW0 if c == 0 else vW1}, s[16:19], s84 offen"
def wn_load(ks): return [wn1(ks, 0), wn1(ks, 1)]
def guarded0(k, name, kss, nwo=0):
    k(f"s_cmp_lg_u32 s3, 0\ns_cbranch_scc1 {name}")
    if nwo:
        k(f"s_cmp_eq_u32 s4, 7\ns_cbranch_scc1 {name}_w")
        for _ in range(nwo): wo_dma(k)
        k.label(f"{name}_w")
    for ks in kss:
        for t in wn_load(ks): k(t)
    k.label(name)

def dispatch(k, sfx):
    k(f"""
    s_cmp_lt_u32 s4, 4
    s_cbranch_scc1 M_PV{sfx}
    s_cmp_eq_u32 s4, 4
    s_cbranch_scc1 M_S4{sfx}
    s_cmp_eq_u32 s4, 5
    s_cbranch_scc1 M_S5{sfx}
    s_cmp_eq_u32 s4, 6
    s_cbranch_scc1 M_S6{sfx}
    s_branch M_S7{sfx}
    """)

BARS = {1: 2, 5: 4, 9: 6, 13: 8}
D0 = 10
X1K = int(os.environ.get('X1K', '6'))
PROGS = {
    'PV': [('T', [1,2,3,4]), ('N', [0,1,2,3,4])],
    'S4': [('T', [0,1,2,3,4]), ('N', [0,1,2])],
    'S5': [('T', [0,1,2,3,4]), ('N', [3,4])],
    'S6': [('T', [0,1,2,3,4]), ('T', [0,1,2])],
    'S7': [('T', [0,1,2,3,4]), ('T', [3,4])],
}
eT, eN, eF0, eF1 = "v224", "v225", "v226", "v227"
eC0, eC1, aQ, aK = "v232", "v233", "v234", "v235"
CBp, CBs = 228, 236

def colsum_reduce(k, m, regs):
    k(f"""
    v_mul_u32_u24 v2, 3641, v0
    v_lshrrev_b32 v2, 16, v2
    v_mul_u32_u24 v3, {2304-288}, v2
    v_lshl_add_u32 v6, v0, 4, v3
    s_lshl_b32 s5, s25, 1
    s_add_u32 s5, s5, {PCS[m]}
    """)
    for r in range(18):
        k(f"buffer_load_dwordx4 {vr(regs[r],4)}, v6, s[12:15], s5 offen\ns_add_u32 s5, s5, 8192")
    k("s_waitcnt vmcnt(0)")
    for r in range(9):
        for h in range(2): k(f"v_pk_add_f32 {vr(regs[r]+2*h,2)}, {vr(regs[r]+2*h,2)}, {vr(regs[r+9]+2*h,2)}")
    for st in ((0,4),(1,5),(2,6),(3,7),(0,2),(1,3),(0,1),(0,8)):
        for h in range(2): k(f"v_pk_add_f32 {vr(regs[st[0]]+2*h,2)}, {vr(regs[st[0]]+2*h,2)}, {vr(regs[st[1]]+2*h,2)}")
    k(f"""
    s_mov_b32 exec_hi, 0x3fffff
    ds_write_b128 {vL}, {vr(regs[0],4)} offset:{CSL[m]}
    s_mov_b64 exec, -1
    """)
R18 = [8+4*i for i in range(10)] + [72+4*i for i in range(8)]

def gen_start0(k):
    for ks in range(D0):
        if ks % 2 == 0: k(f"s_setprio {max(3-ks//2,0)}")
        for c in range(2):
            k(f"buffer_load_dwordx4 {vr(WF + 8*ks + 4*c, 4)}, {vW0 if c == 0 else vW1}, s[16:19], s86 offen")
        k(f"s_add_u32 s86, s86, 13824")
    k(f"""
    s_waitcnt vmcnt({2*D0})
    s_barrier
    s_cmp_lg_u32 s4, 5
    s_cbranch_scc1 M_nocsA
    """)
    colsum_reduce(k, 0, R18)
    k.label("M_nocsA")
    k(f"""
    s_cmp_gt_u32 s4, 4
    s_cbranch_scc1 M_st0_done
    s_sub_u32 s5, s4, 1
    s_lshl_b32 s5, s5, 11
    s_cmp_eq_u32 s4, 0
    s_cselect_b64 vcc, -1, 0
    """)
    for i in range(4):
        k(f"v_add_u32 v{104+i}, s5, v{nA[i]}\nv_cndmask_b32 v{104+i}, v{104+i}, v{nH[i]}, vcc")
    for i in range(4): k(f"v_mov_b32 v{108+i}, 0x3f803f80")
    for i in range(8): k(f"v_mov_b32 v{96+i}, 0")
    for half in range(2):
        for i in range(9):
            ks = 9*half + i
            off = (ks // 2)*XS0
            h = 2 if off >= HI0 else 0
            k(f"ds_read_b128 {vr(8+4*i,4)}, v{104 + h + ks % 2} offset:{off - (HI0 if h else 0)}")
        for i in range(9):
            k(f"s_waitcnt lgkmcnt({8-i})")
            x = vr(8+4*i, 4)
            k(f"v_mfma_f32_16x16x32_bf16 v[96:99], {x}, {x}, v[96:99]")
            k(f"v_mfma_f32_16x16x32_bf16 v[100:103], v[108:111], {x}, v[100:103]")
    k(f"""
    v_and_b32 v2, 15, v0
    v_lshrrev_b32 v3, 4, v0
    v_lshrrev_b32 v6, 2, v2
    v_cmp_eq_u32 s[52:53], v3, v6
    v_and_b32 v6, 3, v0
    v_cmp_eq_u32 s[54:55], 1, v6
    v_cmp_eq_u32 s[56:57], 2, v6
    v_cmp_eq_u32 s[60:61], 3, v6
    s_lshl_b32 s5, s4, 6
    v_lshl_add_u32 v6, v2, 2, s5
    s_mov_b32 s5, 0x3ae38e39
    s_mov_b32 s6, 0x3727c5ac
    v_cndmask_b32 v8, v96, v97, s[54:55]
    v_cndmask_b32 v8, v8, v98, s[56:57]
    v_cndmask_b32 v8, v8, v99, s[60:61]
    v_mul_f32 v9, s5, v100
    v_mul_f32 v8, s5, v8
    v_fma_f32 v8, -v9, v9, v8
    v_max_f32 v8, 0, v8
    v_add_f32 v8, s6, v8
    v_rsq_f32 v8, v8
    s_nop 0
    v_mul_f32 v9, v9, v8
    s_mov_b64 exec, s[52:53]
    ds_write2_b32 v6, v8, v9 offset0:0 offset1:80
    s_mov_b64 exec, -1
    """)
    k.label("M_st0_done")

def stats_from_partials(k):
    fin = lambda a: f"""
    v_mul_f32 v{a}, s5, v{a}
    v_mul_f32 v{a+1}, s5, v{a+1}
    v_fma_f32 v{a+1}, -v{a}, v{a}, v{a+1}
    v_max_f32 v{a+1}, 0, v{a+1}
    v_add_f32 v{a+1}, s6, v{a+1}
    v_rsq_f32 v{a+1}, v{a+1}
    s_nop 0
    v_mul_f32 v{a}, v{a}, v{a+1}
    """
    k(f"""
    s_cmp_gt_u32 s4, 1
    s_cbranch_scc1 M_sp_done
    s_mov_b32 s5, 0x3ae38e39
    s_mov_b32 s6, 0x3727c5ac
    s_waitcnt vmcnt(4)
    s_cmp_eq_u32 s4, 1
    s_cbranch_scc1 M_sp_halo
    """)
    for st in ((0,4),(1,5),(2,6),(3,7),(0,2),(1,3),(0,1)):
        for h in range(2): k(f"v_pk_add_f32 {vr(72+4*st[0]+2*h,2)}, {vr(72+4*st[0]+2*h,2)}, {vr(72+4*st[1]+2*h,2)}")
    for i in range(4): k(f"v_mov_b32 v{76+i}, v{72+i}")
    k("s_nop 1")
    for i in range(4): k(f"v_permlane32_swap_b32 v{72+i}, v{76+i}")
    for h in range(2): k(f"v_pk_add_f32 {vr(72+2*h,2)}, {vr(72+2*h,2)}, {vr(76+2*h,2)}")
    k(fin(72)); k(fin(74))
    k(f"""
    v_lshlrev_b32 v2, 3, v0
    s_mov_b64 exec, 0xffffffff
    ds_write2_b32 v2, v73, v75 offset0:16 offset1:17
    ds_write2_b32 v2, v72, v74 offset0:96 offset1:97
    s_mov_b64 exec, -1
    s_branch M_sp_done
    """)
    k.label("M_sp_halo")
    k("s_nop 1")
    for sh in (4, 8):
        for i in range(4): k(f"v_add_f32_dpp v{72+i}, v{72+i}, v{72+i} row_ror:{sh} row_mask:0xf bank_mask:0xf")
        k("s_nop 1")
    for op in ("v_permlane16_swap_b32", "v_permlane32_swap_b32"):
        for i in range(4): k(f"v_mov_b32 v{76+i}, v{72+i}")
        k("s_nop 1")
        for i in range(4): k(f"{op} v{72+i}, v{76+i}")
        for h in range(2): k(f"v_pk_add_f32 {vr(72+2*h,2)}, {vr(72+2*h,2)}, {vr(76+2*h,2)}")
    k(fin(72)); k(fin(74))
    k(f"""
    v_lshlrev_b32 v2, 3, v0
    s_mov_b64 exec, 0xff
    ds_write2_b32 v2, v73, v75 offset0:0 offset1:1
    ds_write2_b32 v2, v72, v74 offset0:80 offset1:81
    s_mov_b64 exec, -1
    """)
    k.label("M_sp_done")

def setup_list(p):
    kA, kB = PROGS[p][0][0], PROGS[p][1][0]
    L = f"""
    v_and_b32 v2, 15, v0
    v_lshrrev_b32 v3, 4, v0
    v_lshlrev_b32 {eT}, 2, v2
    v_lshlrev_b32 {eN}, 4, v3
    v_lshlrev_b32 v6, 3, v0
    s_mul_i32 s5, s30, 2560
    s_add_u32 s5, s5, {FR}
    v_add_u32 {eF0}, s5, v6
    s_mul_i32 s5, s31, 2560
    s_add_u32 s5, s5, {FR}
    v_add_u32 {eF1}, s5, v6
    s_and_b32 s7, s3, 1
    s_mul_i32 s7, s7, {CSL[1]-CSL[0]}
    s_add_u32 s7, s7, {CSL[0]}
    """
    if p == 'PV':
        L += f"""
        s_lshl_b32 s5, s4, 6
        s_add_u32 s5, s5, s7
        v_add_u32 {eC0}, s5, {eN}
        s_add_u32 s5, s5, 576
        v_add_u32 {eC1}, s5, {eT}
        """
        return [x.strip() for x in L.strip().split("\n") if x.strip()]
    i = int(p[1]) - 4
    L += f"s_add_u32 s5, s7, {288 + 64*i}\nv_add_u32 {eC0}, s5, {eN}\n"
    if kB == 'N':
        L += f"s_add_u32 s5, s7, {576 + 256}\nv_add_u32 {eC1}, s5, {eT}\n"
    else:
        L += f"""
        v_lshrrev_b32 {eC1}, 1, v3
        v_lshlrev_b32 {eC1}, 8, {eC1}
        s_add_u32 s5, s7, 256
        v_add3_u32 {eC1}, {eC1}, {eN}, s5
        """
    L += f"""
    v_add_u32 {aQ}, {FR + 512*i}, v6
    v_add_u32 v6, 256, v6
    v_and_b32 v6, 0x1ff, v6
    v_add_u32 {aK}, {FR + 4*2560 + 512*i}, v6
    v_lshlrev_b32 v3, 2, v3
    v_cmp_le_u32 s[80:81], v3, v2
    v_sub_u32 v6, v2, v3
    v_mov_b32 v2, 0xf149f2ca
    """
    if i == 0: L += "s_cmp_lg_u32 s23, 0\ns_cselect_b32 s5, 8, 0\n"
    else: L += "s_mov_b32 s5, 8\n"
    for j in range(4):
        L += f"""
        v_add_u32 v3, {16-j}, v6
        v_cmp_gt_u32 s[76:77], s5, v3
        v_subrev_u32 v3, {j}, v6
        v_cmp_gt_u32 s[78:79], 8, v3
        s_nop 0
        v_cndmask_b32 v{CBp+j}, v2, 0, s[76:77]
        v_cndmask_b32 v{CBs+j}, v2, 0, s[78:79]
        """
    return [x.strip() for x in L.strip().split("\n") if x.strip()]

def e3_list(kind, accs, rts, statreg, cs, faddr, pk=False):
    L = []
    if not pk:
        for rt in rts:
            a = accs[rt]; sr = statreg(rt)
            for i in range(4):
                L.append(f"v_mul_f32 v{a+i}, v{a+i}, v{sr if kind == 'T' else sr+i}")
        for rt in rts:
            a = accs[rt]; sr = statreg(rt)
            for i in range(4):
                if kind == 'T': L.append(f"v_fma_f32 v{a+i}, -v{sr+1}, v{cs+i}, v{a+i}")
                else: L.append(f"v_fma_f32 v{a+i}, -v{sr+4+i}, v{cs}, v{a+i}")
        for rt in rts:
            a = accs[rt]
            L += [f"v_cvt_pk_bf16_f32 v{a}, v{a}, v{a+1}", f"v_cvt_pk_bf16_f32 v{a+1}, v{a+2}, v{a+3}",
                  f"ds_write_b64 {faddr}, {vr(a,2)} offset:{rt*512}"]
        return L
    for rt in rts:
        a = accs[rt]; sr = statreg(rt)
        for h in range(2):
            if kind == 'T': L.append(f"v_pk_mul_f32 {vr(a+2*h,2)}, {vr(a+2*h,2)}, {vr(sr,2)} op_sel_hi:[1,0]")
            else: L.append(f"v_pk_mul_f32 {vr(a+2*h,2)}, {vr(a+2*h,2)}, {vr(sr+2*h,2)}")
    for rt in rts:
        a = accs[rt]; sr = statreg(rt)
        for h in range(2):
            if kind == 'T': L.append(f"v_pk_fma_f32 {vr(a+2*h,2)}, {vr(cs+2*h,2)}, {vr(sr,2)}, {vr(a+2*h,2)} op_sel:[0,1,0] op_sel_hi:[1,1,1] neg_lo:[0,1,0] neg_hi:[0,1,0]")
            else: L.append(f"v_pk_fma_f32 {vr(a+2*h,2)}, {vr(sr+4+2*h,2)}, {vr(cs,2)}, {vr(a+2*h,2)} op_sel_hi:[1,0,1] neg_lo:[1,0,0] neg_hi:[1,0,0]")
    for rt in rts:
        a = accs[rt]
        L += [f"v_cvt_pk_bf16_f32 v{a}, v{a}, v{a+1}", f"v_cvt_pk_bf16_f32 v{a+1}, v{a+2}, v{a+3}",
              f"ds_write_b64 {faddr}, {vr(a,2)} offset:{rt*512}"]
    return L

def gen_prog(k, p):
    (kA, rA), (kB, rB) = PROGS[p]
    isV = p == 'PV'; w7 = p == 'S7'
    a = ACC; accA = {}; accB = {}
    for rt in rA: accA[rt] = a; a += 4
    for rt in rB: accB[rt] = a; a += 4
    nacc = a
    vq = []
    def vwait(tag):
        idx = -1
        for i, t in enumerate(vq):
            if t == tag: idx = i
        if idx >= 0:
            k(f"s_waitcnt vmcnt({len(vq)-1-idx})")
            del vq[:idx+1]
    def mf(kind, d, wf, x):
        d = vr(d, 4)
        if kind == 'T': k(f"v_mfma_f32_16x16x32_bf16 {d}, {wf}, {x}, {d}")
        else: k(f"v_mfma_f32_16x16x32_bf16 {d}, {x}, {wf}, {d}")
    def rd(first, ks, rts, regs=None):
        base = A0 if ks % 2 == 0 else A1
        for rt in rts:
            R = vr(regs[rt] if regs else base+4*rt, 4)
            if rt == 0: k(f"ds_read_b128 {R}, {vH} offset:{ks*512}")
            else:
                off = ks*4096 + (rt-1)*256
                if off >= HI: k(f"ds_read_b128 {R}, {vAh} offset:{off-HI}")
                else: k(f"ds_read_b128 {R}, {vA} offset:{off}")
    def issue_x(s):
        k(f"""
        s_add_u32 m0, s26, {s*8192}
        s_nop 0
        buffer_load_dwordx4 {vL}, s[12:15], s27 offen{XSC} lds
        s_add_u32 s27, s27, 8192
        """)
        vq.append(('x', s))
        if w7:
            k(f"""
            s_mov_b32 m0, {HALO + s*1024}
            s_nop 0
            buffer_load_dwordx4 {vX2}, s[12:15], s85 offen{XSC} lds
            s_add_u32 s85, s85, 8192
            """)
            vq.append(('x', s))
    r1 = rA if isV else [0,1,2,3,4]
    n1 = len(r1)
    LAGA = 6 if isV else 4
    SB = 88 if isV else 100
    def stat_loads():
        k(f"""
        s_lshl_b32 s5, s3, 18
        s_lshl_b32 s6, s21, 13
        s_add_u32 s5, s5, s6
        s_add_u32 s5, s5, {PST}
        """)
        if isV:
            k(f"""
            v_lshrrev_b32 v2, 3, v0
            v_and_b32 v3, 7, v0
            v_lshlrev_b32 v3, 4, v3
            v_lshl_add_u32 v2, v2, 9, v3
            s_lshl_b32 s6, s4, 7
            s_add_u32 s5, s5, s6
            buffer_load_dwordx4 {vr(SB,4)}, v2, s[12:15], s5 offen sc1
            s_add_u32 s5, s5, 4096
            buffer_load_dwordx4 {vr(SB+4,4)}, v2, s[12:15], s5 offen sc1
            """)
            vq.extend([('sp', 0)]*2)
        else:
            k(f"""
            v_lshrrev_b32 v2, 2, v0
            v_and_b32 v3, 3, v0
            v_lshlrev_b32 v3, 4, v3
            v_lshl_add_u32 v2, v2, 9, v3
            v_bfrev_b32 v3, 1
            s_cmp_eq_u32 s23, 0
            s_cselect_b64 vcc, -1, 0
            s_sub_u32 s5, s5, {8192 - 448}
            s_nop 0
            v_cndmask_b32 v2, v2, v3, vcc
            buffer_load_dwordx4 {vr(SB,4)}, v2, s[12:15], s5 offen sc1
            """)
            vq.append(('sp', 0))
    def stat_list():
        L = []
        if isV:
            L += [f"v_add_f32 v{SB+i}, v{SB+i}, v{SB+4+i}" for i in range(4)]
            rors = (8,)
        else: rors = (4, 8)
        for sh in rors:
            L += ["s_nop 1"] + [f"v_add_f32_dpp v{SB+i}, v{SB+i}, v{SB+i} row_ror:{sh} row_mask:0xf bank_mask:0xf" for i in range(4)]
        for op in ("v_permlane16_swap_b32", "v_permlane32_swap_b32"):
            L += [f"v_mov_b32 v{SB+4+i}, v{SB+i}" for i in range(4)] + ["s_nop 1"]
            L += [f"{op} v{SB+i}, v{SB+4+i}" for i in range(4)]
            L += [f"v_add_f32 v{SB+i}, v{SB+i}, v{SB+4+i}" for i in range(4)]
        L += ["s_mov_b32 s64, 0x3ae38e39", "s_mov_b32 s65, 0x3727c5ac"]
        for a_ in (SB, SB+2):
            L += [f"v_mul_f32 v{a_}, s64, v{a_}", f"v_mul_f32 v{a_+1}, s64, v{a_+1}", f"v_fma_f32 v{a_+1}, -v{a_}, v{a_}, v{a_+1}",
                  f"v_max_f32 v{a_+1}, 0, v{a_+1}", f"v_add_f32 v{a_+1}, s65, v{a_+1}", f"v_rsq_f32 v{a_+1}, v{a_+1}"]
        L += ["s_nop 0", f"v_mul_f32 v{SB}, v{SB}, v{SB+1}", f"v_mul_f32 v{SB+2}, v{SB+2}, v{SB+3}"]
        if isV: L += [f"s_lshl_b32 s64, s4, 6\nv_lshl_add_u32 v{SB+4}, v0, 3, s64"]
        else: L += [f"v_lshlrev_b32 v{SB+4}, 3, v0"]
        o = 16 if isV else 0
        L += [f"s_mov_b64 exec, 0xff\nds_write2_b32 v{SB+4}, v{SB+1}, v{SB+3} offset0:{o} offset1:{o+1}\nds_write2_b32 v{SB+4}, v{SB}, v{SB+2} offset0:{80+o} offset1:{81+o}\ns_mov_b64 exec, -1"]
        if isV: L += [f"v_mov_b32 v{SB+i}, 0" for i in range(8)]
        return L
    dostat = isV or p == 'S5'
    def w0(ks):
        for c in range(2):
            k(f"buffer_load_dwordx4 {vr(WF + 8*ks + 4*c, 4)}, {vW0 if c == 0 else vW1}, s[16:19], s86 offen"); vq.append(('w', ks))
        k(f"s_add_u32 s86, s86, 13824")
    def body(first):
        del vq[:]
        for r in range(ACC, nacc): k(f"v_mov_b32 v{r}, 0")
        for s in range(5 if first else 4):
            k(f"s_setprio {max(3-s,0)}")
            if s < 4: issue_x(s)
            if first: w0(2*s); w0(2*s+1)
            if s == 1 and dostat: stat_loads()
        if first and p in ('S4', 'S6'):
            m = 0 if p == 'S4' else 1
            k(f"""
            v_mul_u32_u24 v2, 3641, v0
            v_lshrrev_b32 v2, 16, v2
            v_mul_u32_u24 v3, {2304-288}, v2
            v_lshl_add_u32 v6, v0, 4, v3
            s_lshl_b32 s5, s25, 1
            s_add_u32 s5, s5, {CS[m]}
            buffer_load_dwordx4 v[104:107], v6, s[12:15], s5 offen
            """)
            vq.append(('cs', 0))
        su = setup_list(p)
        sl = stat_list() if dostat else []
        if not isV: k("s_setprio 2")
        vwait(('x', 0))
        k("s_barrier")
        stamp(k)
        rd(first, 0, r1)
        for ks in range(18):
            base = A0 if ks % 2 == 0 else A1
            if ks in BARS:
                vwait(('x', BARS[ks]))
                k("s_barrier")
            if ks + 1 < 18:
                rd(first, ks + 1, r1)
                k(f"s_waitcnt lgkmcnt({n1})")
            elif isV:
                rd(first, 0, rB)
                k(f"s_waitcnt lgkmcnt(5)")
            else:
                k("s_waitcnt lgkmcnt(0)")
            if first: vwait(('w', ks))
            if ks == 2: vwait(('sp', 0))
            ml = [(kA, accA[rt], vr(WF + 8*ks, 4), rt) for rt in rA]
            if not isV: ml += [(kB, accB[rt], vr(WF + 8*ks + 4, 4), rt) for rt in rB]
            for i, (kind, d, wf, rt) in enumerate(ml):
                mf(kind, d, wf, vr(base+4*rt, 4))
                if ks >= 16:
                    for _ in range(5 if not isV else 3):
                        if su: k(su.pop(0))
                if 2 <= ks < 9:
                    for _ in range(3):
                        if sl: k(sl.pop(0))
                if i == 1:
                    if ks % 2 == 0 and ks // 2 + 4 < 9: issue_x(ks // 2 + 4)
                    if first and ks + D0 < 18: w0(ks + D0)
            assert not (ks == 8 and sl)
            if not first and LAGA <= ks < 16:
                for c in ((0,) if isV else (0, 1)):
                    k(wn1(ks - LAGA, c)); vq.append(('wn', 0))
            if first and ks == 10:
                if p in ('S4', 'S6'):
                    vwait(('cs', 0))
                    k(f"s_mov_b32 exec_hi, 0x3fffff\nds_write_b128 {vL}, v[104:107] offset:{CSL[0 if p == 'S4' else 1]}\ns_mov_b64 exec, -1")
                k(f"s_mul_i32 s5, s20, 9216\ns_add_u32 s5, s5, s24")
                for ct in range(3):
                    k(f"buffer_load_dwordx2 {vr(RES+2*ct,2)}, {vBO}, s[12:15], s5 offen\ns_add_u32 s5, s5, 2048"); vq.append(('res', 0))
            if first and not w7 and 10 <= ks < 16:
                wo_dma(k); vq.append(('wo', 0))
        while su: k(su.pop(0))
        k("s_setprio 1" if isV else "s_setprio 0")
        stamp(k)
        if first: k(f"s_branch M_{p}_epi")
    def pass2():
        first = False
        SQ = {1: 108, 2: 110, 3: 228, 4: 230} if False else None
        sq = {1: "A", 2: "A", 3: "A", 4: "A"}
        sreg = {1: 208, 2: 210, 3: 216, 4: 218}
        k(f"ds_read_b128 v[200:203], {eC0}")
        for rt in rA: k(f"ds_read2_b32 {vr(sreg[rt],2)}, {eT} offset0:{16*rt} offset1:{80+16*rt}")
        e3 = e3_list('T', accA, rA, lambda rt: sreg[rt], 200, eF0)
        SETS = [[A0+4*i for i in range(5)], [A1+4*i for i in range(5)], [72, 76, 80, 84, 108]]
        setof = {0: 0, 1: 1, 2: 0, 3: 1}
        for ks in range(4, 18): setof[ks] = {4: 2, 5: 0}.get(ks, None)
        order = [2, 0, 1]
        for ks in range(4, 18): setof[ks] = order[(ks - 4) % 3]
        issued = 0
        for ks in range(18):
            want = min(17, ks + (1 if ks < 3 else 2))
            while issued < want:
                issued += 1
                rd(first, issued, rB, SETS[setof[issued]])
            k(f"s_waitcnt lgkmcnt({5*(issued-ks)})")
            if ks == X1K:
                k("s_barrier")
            for i, rt in enumerate(rB):
                mf('N', accB[rt], vr(WF + 8*ks + 4, 4), vr(SETS[setof[ks]][rt], 4))
                if ks in (0, 1, 2) and (ks > 0 or i >= 2):
                    for _ in range(4):
                        if e3: k(e3.pop(0))
            assert not (ks == 2 and e3)
            if not first and ks >= 3:
                k(wn1(ks - 3, 1))
                if ks in (4, 6): k(wn1(10, 0) if ks == 4 else wn1(16, 0))
                if ks in (8, 10, 12, 14): k(wn1({8: 17, 10: 11, 12: 12, 14: 13}[ks], 0))
    k.label(f"M_{p}")
    body(True)
    k.label(f"M_{p}_loop")
    body(False)
    k.label(f"M_{p}_epi")
    if isV:
        pass2()
        stamp(k)
        k(f"ds_read_b32 v{CSR}, {eC1}")
        for rt in rB:
            k(f"ds_read_b128 {vr(8+8*rt,4)}, {eN} offset:{rt*64}")
            k(f"ds_read_b128 {vr(8+8*rt+4,4)}, {eN} offset:{320+rt*64}")
        k("s_waitcnt lgkmcnt(0)")
        for t in e3_list('N', accB, rB, lambda rt: 8+8*rt, CSR, eF1, True): k(t)
        k("s_waitcnt lgkmcnt(0)")
        stamp(k)
        k("s_setprio 0")
        k("s_barrier")
        stamp(k)
        for t in (wn1(15,1), wn1(16,1)): k(t)
        stamp(k)
        k("s_branch M_mid")
        return
    k(f"ds_read_b128 {vr(CSR,4)}, {eC0}")
    if kB == 'T': k(f"ds_read_b128 {vr(CSR+4,4)}, {eC1}")
    else: k(f"ds_read_b32 v{CSR+4}, {eC1}")
    for rt in range(5): k(f"ds_read2_b32 {vr(8+2*rt,2)}, {eT} offset0:{16*rt} offset1:{80+16*rt}")
    nb = {rt: 18 + 8*i for i, rt in enumerate(rB)}
    if kB == 'N':
        for rt in rB:
            k(f"ds_read_b128 {vr(nb[rt],4)}, {eN} offset:{rt*64}")
            k(f"ds_read_b128 {vr(nb[rt]+4,4)}, {eN} offset:{320+rt*64}")
    k("s_waitcnt lgkmcnt(0)")
    for t in e3_list('T', accA, rA, lambda rt: 8+2*rt, CSR, eF0): k(t)
    if kB == 'T':
        for t in e3_list('T', accB, rB, lambda rt: 8+2*rt, CSR+4, eF1): k(t)
    else:
        for t in e3_list('N', accB, rB, lambda rt: nb[rt], CSR+4, eF1): k(t)
    k("s_branch M_att")

def gen_att(k):
    k.label("M_att")
    RQ, KP, KS, QH = 8, 18, 28, 72
    S = [88, 96, 104, 40]; T = [48, 50, 52, 54]
    M1, M2 = "s[60:61]", "s[62:63]"
    k(f"""
    s_mov_b32 s58, 0x3eae1a93
    s_mov_b32 s59, 0x3eae1a93
    s_mov_b32 s60, 0xffff0000
    s_mov_b32 s61, -1
    s_mov_b32 s62, 0
    s_mov_b32 s63, -1
    s_waitcnt lgkmcnt(0)
    """)
    stamp(k)
    k("s_barrier")
    stamp(k)
    for t in range(5): k(f"ds_read_b64 {vr(RQ+2*t,2)}, {aQ} offset:{t*2560 + 512}")
    for j in range(4):
        k(f"ds_read_b64 {vr(KP+2*j,2)}, {aQ} offset:{(5+j)*2560}")
        k(f"ds_read_b64 {vr(KS+2*j,2)}, {aQ} offset:{(5+j)*2560 + 512}")
    k(f"ds_read_b64 {vr(KP+8,2)}, {aK}")
    k(f"ds_read_b64 {vr(KS+8,2)}, {aK} offset:512")
    def bgw(name, kss):
        for ks in kss:
            for t in wn_load(ks): k(t)
    k("s_waitcnt lgkmcnt(10)")
    def keep_ge(dst, src, x):
        if x <= 0: return f"v_mov_b32 v{dst}, v{src}"
        return f"v_cndmask_b32 v{dst}, 0, v{src}, {M1 if x == 1 else M2}"
    def keep_le(dst, src, x):
        if x < 0: return f"v_mov_b32 v{dst}, 0"
        return f"v_cndmask_b32 v{dst}, v{src}, 0, {M1 if x == 0 else M2}"
    for h in range(4):
        for p_ in range(2):
            k(keep_ge(QH+4*h+p_, RQ+2*h+p_, (h - p_ + 1)//2))
        for p_ in range(2):
            k(keep_le(QH+4*h+2+p_, RQ+2*(h+1)+p_, (h - p_)//2 if h - p_ >= 0 else -1))
    k("s_waitcnt lgkmcnt(0)\ns_nop 0")
    for h in range(4):
        k(f"v_mfma_f32_16x16x32_bf16 {vr(S[h],4)}, {vr(KP+2*h,4)}, {vr(QH+4*h,4)}, {vr(CBp,4)}")
        k(f"v_mfma_f32_16x16x32_bf16 {vr(S[h]+4,4)}, {vr(KS+2*h,4)}, {vr(QH+4*h,4)}, {vr(CBs,4)}")
    bgw("M_b2", (12,))
    k("s_nop 3")
    def allh(f):
        for h in range(4): k(f(h))
    for i in range(4): allh(lambda h: f"v_max_f32 v{S[h]+i}, v{S[h]+i}, v{S[h]+4+i}")
    allh(lambda h: f"v_max3_f32 v{T[h]}, v{S[h]}, v{S[h]+1}, v{S[h]+2}")
    allh(lambda h: f"v_max_f32 v{T[h]}, v{T[h]}, v{S[h]+3}")
    for op in ("v_permlane32_swap_b32", "v_permlane16_swap_b32"):
        allh(lambda h: f"v_mov_b32 v{T[h]+1}, v{T[h]}")
        allh(lambda h: f"{op} v{T[h]}, v{T[h]+1}")
        allh(lambda h: f"v_max_f32 v{T[h]}, v{T[h]}, v{T[h]+1}")
    allh(lambda h: f"v_mul_f32 v{T[h]}, s58, v{T[h]}")
    for i in range(4): allh(lambda h: f"v_fma_f32 v{S[h]+i}, v{S[h]+i}, s58, -v{T[h]}")
    for i in range(4): allh(lambda h: f"v_exp_f32 v{S[h]+i}, v{S[h]+i}")
    allh(lambda h: f"v_add_f32 v{S[h]+4}, v{S[h]}, v{S[h]+1}")
    allh(lambda h: f"v_add_f32 v{S[h]+5}, v{S[h]+2}, v{S[h]+3}")
    allh(lambda h: f"v_add_f32 v{T[h]}, v{S[h]+4}, v{S[h]+5}")
    for op in ("v_permlane32_swap_b32", "v_permlane16_swap_b32"):
        allh(lambda h: f"v_mov_b32 v{T[h]+1}, v{T[h]}")
        allh(lambda h: f"{op} v{T[h]}, v{T[h]+1}")
        allh(lambda h: f"v_add_f32 v{T[h]}, v{T[h]}, v{T[h]+1}")
    allh(lambda h: f"v_rcp_f32 v{T[h]}, v{T[h]}")
    for i in range(4): allh(lambda h: f"v_mul_f32 v{S[h]+i}, v{S[h]+i}, v{T[h]}")
    for i in range(2): allh(lambda h: f"v_cvt_pk_bf16_f32 v{S[h]+4+i}, v{S[h]+2*i}, v{S[h]+2*i+1}")
    for i in range(2): allh(lambda h: f"v_cndmask_b32 v{QH+4*h+i}, v{S[h]+4+i}, 0, s[80:81]")
    for i in range(2): allh(lambda h: f"v_cndmask_b32 v{QH+4*h+2+i}, 0, v{S[h]+4+i}, s[80:81]")
    bgw("M_b4", (13,))
    k(f"""
    s_mul_i32 s83, s3, {OBUF[1]-OBUF[0]}
    s_add_u32 s83, s83, {OBUF[0] - 6144}
    s_add_u32 s83, s83, s24
    s_mul_i32 s5, s20, 9216
    s_add_u32 s83, s83, s5
    """)
    stamp(k)
    k("s_barrier")
    stamp(k)
    VF = 8
    for t in range(5):
        k(f"ds_read_b64 {vr(VF+4*t,2)}, {aQ} offset:{(9+t)*2560}")
        k(f"ds_read_b64 {vr(VF+4*t+2,2)}, {aQ} offset:{(9+t)*2560 + 512}")
    for h in range(4):
        k(f"s_waitcnt lgkmcnt({6-2*h})")
        k(f"v_mfma_f32_16x16x32_bf16 {vr(S[h],4)}, {vr(VF+4*h,4)}, {vr(QH+4*h,4)}, 0")
        k(f"v_mfma_f32_16x16x32_bf16 {vr(S[h]+4,4)}, {vr(VF+4*(h+1),4)}, {vr(QH+4*h,4)}, 0")
    k("s_nop 3")
    for h in range(4):
        k(f"v_cvt_pk_bf16_f32 v{S[h]}, v{S[h]}, v{S[h]+1}")
        k(f"v_cvt_pk_bf16_f32 v{S[h]+1}, v{S[h]+2}, v{S[h]+3}")
        k(f"v_cvt_pk_bf16_f32 v{S[h]+4}, v{S[h]+4}, v{S[h]+5}")
        k(f"v_cvt_pk_bf16_f32 v{S[h]+5}, v{S[h]+6}, v{S[h]+7}")
        if h >= 1:
            for p_ in range(2):
                x = (h - p_ + 1)//2
                if x > 0: k(f"v_cndmask_b32 v{S[h]+p_}, v{S[h-1]+4+p_}, v{S[h]+p_}, {M1 if x == 1 else M2}")
        k(f"buffer_store_dwordx2 {vr(S[h],2)}, {vBO}, s[12:15], s83 offen sc1\ns_add_u32 s83, s83, 2048")
    k(f"""
    s_mov_b64 exec, 0xffffffff
    buffer_store_dwordx2 {vr(S[3]+4,2)}, {vBO}, s[12:15], s83 offen sc1
    s_mov_b64 exec, -1
    """)
    k("s_setprio 0")
    stamp(k)

def gen_mid(k):
    k.label("M_mid")
    k(f"""
    s_mul_i32 s88, s3, {OBUF[1]-OBUF[0]}
    s_add_u32 s88, s88, {OBUF[0]}
    s_add_u32 s88, s88, s24
    s_lshl_b32 s90, s3, 13
    s_lshl_b32 s5, s21, 7
    s_add_u32 s90, s90, s5
    s_add_u32 s90, s90, {FLG}
    s_and_b32 s5, s4, 1
    s_lshl_b32 s6, s5, 12
    s_and_b32 s7, s4, 2
    s_lshl_b32 s7, s7, 8
    s_add_u32 s6, s6, s7
    v_add_u32 v108, s6, {vA}
    v_add_u32 v109, {4*8192}, v108
    s_mul_i32 s5, s5, 4608
    s_lshr_b32 s6, s4, 2
    s_mul_i32 s6, s6, 3072
    s_add_u32 s6, s6, s5
    s_add_u32 s6, s6, {WOL}
    v_add_u32 v7, s6, {vL}
    v_add_u32 v110, {4*9216}, v7
    v_lshrrev_b32 v71, 4, v0
    v_and_b32 v69, 7, v0
    v_lshl_add_u32 v69, v71, 3, v69
    v_lshlrev_b32 v69, 4, v69
    s_add_u32 s5, s5, {WOL + 4096}
    v_add_u32 v69, s5, v69
    v_add_u32 v111, {4*9216}, v69
    s_lshl_b32 s5, s4, 10
    s_add_u32 s88, s88, s5
    s_mul_i32 s5, s4, 3072
    s_add_u32 s5, s5, {XI}
    v_add_u32 v56, s5, {vL}
    s_xor_b32 s6, s4, 1
    s_mul_i32 s6, s6, 3072
    s_add_u32 s6, s6, {XI}
    v_add_u32 v71, s6, {vL}
    """)
    k("s_mov_b32 s91, s90")
    signal(k, "M_sigA")
    stamp(k)
    k(f"s_cmp_eq_u32 s4, 7\ns_cbranch_scc1 M_nolate\ns_mov_b32 s82, s87\ns_lshl_b32 s87, s4, 10")
    wo_dma(k, True)
    for _ in range(5): wo_dma(k, True)
    k.label("M_nolate")
    for r in range(72, 96): k(f"v_mov_b32 v{r}, 0")
    poll(k, "M_pollA", False)
    stamp(k)

def gen_Bphase(k):
    def odma(st):
        k(f"""
        s_add_u32 m0, s26, {st*8192}
        s_nop 0
        buffer_load_dwordx4 {vL}, s[12:15], s88 offen{XSC} lds
        s_add_u32 s88, s88, 8192
        """)
    PFD = 5
    for st in range(PFD):
        k(f"s_setprio {max(3-st,0)}")
        odma(st)
    k(f"""
    s_cmp_ge_u32 s4, 4
    s_cbranch_scc1 M_Bh1
    """)
    OF = [8, 28]; WFb = [16, 36]
    GR = {0: 0, 1: 1, 2: 3, 4: 5, 6: 8}
    for half in range(2):
        k.label(f"M_Bh{half}")
        n = 3 if half == 0 else 2
        def reads(st):
            p = st % 2
            hi = st >= 4; s_ = st - 4 if hi else st
            for r in range(2):
                k(f"ds_read_b128 {vr(OF[p]+4*r,4)}, {'v109' if hi else 'v108'} offset:{8192*s_ + 256*r}")
            for ct in range(n):
                if half == 1 and ct == 1:
                    k(f"ds_read_b128 {vr(WFb[p]+4*ct,4)}, {'v111' if hi else 'v69'} offset:{9216*s_}")
                else:
                    k(f"ds_read_b128 {vr(WFb[p]+4*ct,4)}, {'v110' if hi else 'v7'} offset:{9216*s_ + 1024*ct}")
        def mm(p):
            for ct in range(n):
                for r in range(2):
                    d = vr(72+12*r+4*ct, 4)
                    k(f"v_mfma_f32_16x16x32_bf16 {d}, {vr(WFb[p]+4*ct,4)}, {vr(OF[p]+4*r,4)}, {d}")
        nreads = 2 + n
        issued = PFD
        EXTRA = {6: 2 if half == 1 else 1}
        k(f"s_waitcnt vmcnt({issued-1})")
        k("s_barrier")
        stamp(k)
        reads(0)
        for st in range(9):
            for _ in range(2):
                if issued < 9: odma(issued); issued += 1
            nx = st + 1
            if nx < 9 and nx not in GR:
                reads(nx)
                k(f"s_waitcnt lgkmcnt({nreads})")
                mm(st % 2)
            else:
                k("s_waitcnt lgkmcnt(0)")
                mm(st % 2)
                if nx < 9:
                    k(f"s_waitcnt vmcnt({issued-1-GR[nx] + EXTRA.get(nx, 0)})")
                    k("s_barrier")
                    reads(nx)
            if st >= 3:
                k(f"s_cmp_lg_u32 s3, 0\ns_cbranch_scc1 M_g2{half}_{st}")
                if half == 0:
                    for ks in (2*(st-3), 2*(st-3)+1):
                        if ks < 10: k(wn1(ks, 0))
                else:
                    for t in wn_load(st-3): k(t)
                k.label(f"M_g2{half}_{st}")
            if half == 1 and st in (4, 5, 6, 7):
                for t in wn_load(10 + st): k(t)
            if half == 0 and st in (4, 5, 6):
                k((wn1(17,1), wn1(14,0), wn1(15,0))[st-4])
        if 'f' in EXP: stamp(k)
        k(f"""
        s_and_b32 s7, s4, 1
        s_cmp_eq_u32 s7, 0
        s_nop 6
        s_cbranch_scc1 M_Bx{half}_k0
        """)
        for kh in (1, 0):
            if kh == 0: k.label(f"M_Bx{half}_k0")
            keep = 72 + 12*kh; send = 72 + 12*(1-kh)
            for ct in range(n):
                k(f"ds_write_b128 v56, {vr(send+4*ct,4)} offset:{1024*ct}")
            k("s_waitcnt lgkmcnt(0)\ns_barrier")
            for ct in range(n):
                k(f"ds_read_b128 {vr(8+4*ct,4)}, v71 offset:{1024*ct}")
            for ct in range(n):
                k(f"s_waitcnt lgkmcnt({n-1-ct})")
                for h in range(2):
                    k(f"v_pk_add_f32 {vr(96+4*ct+2*h,2)}, {vr(keep+4*ct+2*h,2)}, {vr(8+4*ct+2*h,2)}")
            if kh == 1: k(f"s_branch M_Bx{half}_j")
        k.label(f"M_Bx{half}_j")
        stamp(k)
        T = lambda ct, i: 8 + 10*ct + i
        steps = [
            lambda ct, d, x: f"v_cvt_pk_bf16_f32 v{T(ct,8)}, v{d}, v{d+1}",
            lambda ct, d, x: f"v_cvt_pk_bf16_f32 v{T(ct,9)}, v{d+2}, v{d+3}",
            lambda ct, d, x: f"v_lshlrev_b32 v{T(ct,4)}, 16, v{x}",
            lambda ct, d, x: f"v_and_b32 v{T(ct,5)}, 0xffff0000, v{x}",
            lambda ct, d, x: f"v_lshlrev_b32 v{T(ct,6)}, 16, v{x+1}",
            lambda ct, d, x: f"v_and_b32 v{T(ct,7)}, 0xffff0000, v{x+1}",
            lambda ct, d, x: f"v_lshlrev_b32 v{T(ct,0)}, 16, v{T(ct,8)}",
            lambda ct, d, x: f"v_and_b32 v{T(ct,1)}, 0xffff0000, v{T(ct,8)}",
            lambda ct, d, x: f"v_lshlrev_b32 v{T(ct,2)}, 16, v{T(ct,9)}",
            lambda ct, d, x: f"v_and_b32 v{T(ct,3)}, 0xffff0000, v{T(ct,9)}",
            lambda ct, d, x: f"v_pk_add_f32 {vr(T(ct,0),2)}, {vr(T(ct,0),2)}, {vr(T(ct,4),2)}",
            lambda ct, d, x: f"v_pk_add_f32 {vr(T(ct,2),2)}, {vr(T(ct,2),2)}, {vr(T(ct,6),2)}",
            lambda ct, d, x: f"v_cvt_pk_bf16_f32 v{x}, v{T(ct,0)}, v{T(ct,1)}",
            lambda ct, d, x: f"v_cvt_pk_bf16_f32 v{x+1}, v{T(ct,2)}, v{T(ct,3)}",
        ]
        k(f"""
        s_mul_i32 s5, s3, {XSTR}
        s_add_u32 s5, s5, s24
        s_mul_i32 s6, s20, 9216
        s_add_u32 s5, s5, s6
        s_add_u32 s5, s5, {XSTR}
        """)
        for stp in steps:
            for ct in range(n): k(stp(ct, 96 + 4*ct, RES + 2*ct))
        k(f"""
        s_cmp_eq_u32 s3, 3
        s_cbranch_scc1 M_Bf{half}
        """)
        for ct in range(n):
            x = RES + 2*ct
            if half == 1 and ct == 1: k("s_mov_b64 exec, 0xffffffff")
            k(f"buffer_store_dwordx2 {vr(x,2)}, {vBO}, s[12:15], s5 offen sc1\ns_add_u32 s5, s5, 2048")
        k("s_mov_b64 exec, -1")
        if half == 1:
            k(f"""
            s_mov_b32 s6, 0
            s_mov_b32 s7, -1
            v_cndmask_b32 v40, v{RES+2}, 0, s[6:7]
            v_cndmask_b32 v41, v{RES+3}, 0, s[6:7]
            """)
        srcs = [(RES+2*ct if not (half == 1 and ct == 1) else 40) for ct in range(n)]
        k("v_mov_b32 v8, 0x3f803f80")
        regs = [x + i for x in srcs for i in range(2)]
        for i, r_ in enumerate(regs):
            k(f"v_dot2_f32_bf16 v28, v{r_}, v8, {'0' if i == 0 else 'v28'}")
            k(f"v_dot2_f32_bf16 v29, v{r_}, v{r_}, {'0' if i == 0 else 'v29'}")
        k(f"""
        s_nop 2
        v_mov_b32 v30, v28
        v_mov_b32 v31, v29
        s_lshl_b32 s5, s3, 18
        s_lshl_b32 s6, s21, 13
        v_permlane32_swap_b32 v28, v30
        v_permlane32_swap_b32 v29, v31
        v_pk_add_f32 v[28:29], v[28:29], v[30:31]
        v_mov_b32 v30, v28
        v_mov_b32 v31, v29
        s_add_u32 s5, s5, s6
        s_lshl_b32 s6, s20, 10
        v_permlane16_swap_b32 v28, v30
        v_permlane16_swap_b32 v29, v31
        v_pk_add_f32 v[28:29], v[28:29], v[30:31]
        s_add_u32 s5, s5, s6
        s_and_b32 s6, s4, 3
        s_lshl_b32 s6, s6, 7
        s_add_u32 s5, s5, s6
        s_add_u32 s5, s5, {PST + (1 << 18) + 512*half}
        v_lshlrev_b32 v30, 3, v0
        s_mov_b64 exec, 0xffff
        buffer_store_dwordx2 v[28:29], v30, s[12:15], s5 offen sc1
        s_mov_b64 exec, -1
        s_branch M_Bdone
        """)
        k.label(f"M_Bf{half}")
        for ct in range(n):
            x = RES + 2*ct
            if half == 1 and ct == 1: k("s_mov_b64 exec, 0xffffffff")
            k(f"buffer_store_dwordx2 {vr(x,2)}, {vBN}, s[92:95], 0 offen offset:{32*ct}")
        k("s_mov_b64 exec, -1\ns_branch M_fin")
    k.label("M_Bdone")
    stamp(k)
    k("s_add_u32 s91, s90, 4096")
    signal(k, "M_sigB")
    stamp(k)
    k("s_cmp_lt_u32 s4, 4\ns_cbranch_scc1 M_g3")
    guarded0(k, "M_g3", range(6, 12))
    k(f"""
    s_add_u32 s3, s3, 1
    s_and_b32 s5, s3, 1
    s_cmp_eq_u32 s5, 0
    s_mov_b32 s28, {PQ[0]}
    s_cselect_b32 s28, {PQ[1]}, s28
    s_add_u32 s28, s28, s96
    s_cmp_eq_u32 s3, 3
    s_cselect_b32 s18, 0, s18
    """)
    x_setup(k)
    wo_setup(k)
    k("s_cmp_eq_u32 s4, 7\ns_cbranch_scc1 M_nowo")
    for i in range(6): wo_dma(k)
    k.label("M_nowo")
    poll(k, "M_pollB", True)
    stamp(k)
    if 'r' in EXP: k("s_add_u32 s84, s3, 1")
    rts(k, "s84", True)
    dispatch(k, "_loop")
    k.label("M_fin")
    if 'r' in EXP: k("s_waitcnt vmcnt(0)")
    rts(k, 5, True)
    if DBG:
        k(f"""
        s_waitcnt vmcnt(0)
        """)
        stamp(k)
        k(f"""
        s_lshl_b32 s5, s2, 3
        s_add_u32 s5, s5, s4
        s_lshl_b32 s5, s5, 8
        s_add_u32 s5, s5, {DBGO}
        v_lshlrev_b32 v2, 2, v0
        buffer_store_dword v68, v2, s[12:15], s5 offen
        """)


def kd(name, vgpr, sgpr=102):
    acc = (vgpr + 3)//4*4
    return f""".p2align 6
.amdhsa_kernel {name}
  .amdhsa_next_free_vgpr {vgpr}
  .amdhsa_next_free_sgpr {sgpr}
  .amdhsa_accum_offset {acc}
  .amdhsa_group_segment_fixed_size 0
  .amdhsa_kernarg_size 72
  .amdhsa_user_sgpr_count 2
  .amdhsa_user_sgpr_kernarg_segment_ptr 1
  .amdhsa_system_sgpr_workgroup_id_x 1
.end_amdhsa_kernel
"""

def main():
    out = sys.argv[1]
    global DBG
    DBG = len(sys.argv) > 2 and sys.argv[2] == '1'
    hdr = [f"; @launch kernel=p_kernel grid=({NP},1,1) block=(256,1,1) lds=16384",
           f"; @launch kernel=m_kernel grid=(256,1,1) block=(512,1,1) lds={LDSZ}"]
    k = K()
    k.raw('.amdgcn_target "amdgcn-amd-amdhsa--gfx950"\n.text')
    k.raw(f".globl p_kernel\n.p2align 8\n.type p_kernel,@function\np_kernel:")
    gen_P(k)
    k.raw(f".globl m_kernel\n.p2align 8\n.type m_kernel,@function\nm_kernel:")
    gen_M(k)
    k.raw('.section .rodata,"a"')
    k.raw(kd("p_kernel", 96))
    k.raw(kd("m_kernel", 256))
    open(out, "w").write("\n".join(hdr) + "\n" + k.text())
main()
```

```python
import sys

XB = 2048 * 576 * 2
WQB = 576 * 1728 * 2
WOB = 576 * 576 * 2
XSTR = 0x280000
XBUF = [0x000000, 0x280000, 0x500000, 0x780000]
OBUF = [0xA00000, 0xC80000, 0xF00000, 0x1180000]
PQ = [0x1400000, 0x1600000]
PO = [0x1800000, 0x1A00000]
CS = [0x1B00000, 0x1B10000]
FLG = 0x1B20000
DBGO = 0x1900000
WSZ = 0x2000000
BLK = 73728

class K:
    def __init__(self): self.l = []; self.bg = []
    def bgp(self, n=1):
        for _ in range(n):
            if self.bg: self(self.bg.pop(0))
    def __call__(self, s):
        for x in s.strip().split("\n"):
            x = x.strip()
            if x: self.l.append("    " + x)
    def label(self, n): self.l.append(n + ":")
    def raw(self, s): self.l.append(s)
    def text(self): return "\n".join(self.l) + "\n"

DBG = False
import os
EXP = os.environ.get("EXP", "")
def stamp(k):
    if DBG:
        k(("s_memrealtime" if 'R' in EXP else "s_memtime") + """ s[98:99]
        s_waitcnt lgkmcnt(0)
        s_mov_b32 m0, s100
        v_writelane_b32 v68, s98, m0
        s_add_u32 s100, s100, 1
        s_min_u32 s100, s100, 63""")
def rts(k, idx, main):
    if 'r' not in EXP: return
    lab = f"rts_{len(k.l)}"
    k(f"""s_or_b32 s5, s2, s4
    s_cmp_lg_u32 s5, 0
    s_cbranch_scc1 {lab}
    s_memrealtime s[98:99]
    s_waitcnt lgkmcnt(0)
    s_add_u32 s6, s46, {0 if main else 512}
    s_addc_u32 s7, s47, 0
    s_mov_b64 exec, 1
    v_mov_b32 v2, {idx}
    v_lshlrev_b32 v2, 2, v2
    v_mov_b32 v3, s98
    global_store_dword v2, v3, s[6:7]
    s_mov_b64 exec, -1""")
    k.label(lab)
def vr(a, n): return f"v[{a}:{a+n-1}]"

def head(k, pfx, nwg):
    k(f"""
    s_cmp_ge_u32 s2, {nwg}
    s_cbranch_scc1 {pfx}_exit
    s_load_dwordx16 s[32:47], s[0:1], 0
    s_load_dwordx2 s[48:49], s[0:1], 64
    v_lshrrev_b32 v1, 6, v0
    v_and_b32 v0, 63, v0
    v_readfirstlane_b32 s4, v1
    """)

def emit_k_from_rho(k, vk, vrho, vt):
    k(f"""
    v_and_b32 {vk}, 0x78, {vrho}
    v_bfe_u32 {vt}, {vrho}, 1, 2
    v_or_b32 {vk}, {vk}, {vt}
    v_and_b32 {vt}, 1, {vrho}
    v_lshl_or_b32 {vk}, {vt}, 2, {vk}
    """)

def tile_off(t):
    if t < 4: return 32*t
    if t == 4: return None
    if t < 9: return 144 + 32*(t-5)
    return 288 + 32*(t-9)

NQ, NO, NC = 288, 96, 54
NX = 72
NW = 16 if 'w' in EXP else 0
NP0 = NQ + NO + NC + 1 + NX
NP = NP0 + NW
def gen_P(k):
    k.label("P_body")
    head(k, "P", NP)
    k(f"""
    s_waitcnt lgkmcnt(0)""")
    rts(k, 0, False)
    k(f"""
    s_mov_b32 s16, s48
    s_mov_b32 s17, s49
    s_mov_b32 s18, {WSZ}
    s_mov_b32 s19, 0x20000
    s_mov_b32 s11, 0x20000
    v_lshrrev_b32 v3, 4, v0
    v_bfe_u32 v4, v0, 2, 2
    v_lshlrev_b32 v4, 1, v4
    v_lshl_add_u32 v12, v3, 3, v4
    v_and_b32 v13, 3, v0
    v_lshlrev_b32 v13, 3, v13
    v_lshlrev_b32 v14, 4, v0
    v_and_b32 v4, 7, v0
    v_lshl_add_u32 v15, v3, 3, v4
    v_lshlrev_b32 v15, 4, v15
    v_and_b32 v4, 8, v0
    v_cmp_eq_u32 s[50:51], 0, v4
    v_bfrev_b32 v16, 1
    s_cmp_ge_u32 s2, {NP0}
    s_cbranch_scc1 P_warm
    s_cmp_gt_u32 s2, {NQ+NO+NC}
    s_cbranch_scc1 P_x
    s_cmp_eq_u32 s2, {NQ+NO+NC}
    s_cbranch_scc1 P_flg
    s_cmp_ge_u32 s2, {NQ+NO}
    s_cbranch_scc1 P_cs
    s_cmp_ge_u32 s2, {NQ}
    s_cbranch_scc1 P_o
    """)
    k(f"""
    s_cmp_ge_u32 s2, 144
    s_cselect_b32 s5, 144, 0
    s_cselect_b64 s[8:9], s[40:41], s[34:35]
    s_mov_b32 s22, {PQ[0]}
    s_cselect_b32 s22, {PQ[1]}, s22
    s_mov_b32 s10, {WQB}
    s_sub_u32 s5, s2, s5
    s_mul_i32 s6, s5, 3641
    s_lshr_b32 s6, s6, 16
    s_mul_i32 s7, s6, 18
    s_sub_u32 s7, s5, s7
    s_mul_i32 s23, s5, 13824
    s_add_u32 s22, s22, s23
    s_mul_i32 s24, s7, {32*3456}
    s_mul_i32 s25, s6, 144
    s_add_u32 s24, s24, s25
    """)
    for n in range(4):
        k(f"""
        s_lshl_b32 s26, s4, 6
        s_add_u32 s26, s26, {256*n}
        v_add_u32 v2, s26, v0
        v_cmp_gt_u32 vcc, 864, v2
        v_mul_u32_u24 v3, 2428, v2
        v_lshrrev_b32 v3, 16, v3
        v_mul_u32_u24 v4, 27, v3
        v_sub_u32 v2, v2, v4
        v_mul_u32_u24 v4, 57, v2
        v_lshrrev_b32 v4, 9, v4
        v_mul_u32_u24 v5, 9, v4
        v_sub_u32 v2, v2, v5
        """)
        emit_k_from_rho(k, "v5", "v3", "v6")
        k(f"""
        v_mul_u32_u24 v5, 3456, v5
        v_mul_u32_u24 v4, 1152, v4
        v_add_u32 v5, v5, v4
        v_lshl_add_u32 v5, v2, 4, v5
        v_cndmask_b32 v5, v16, v5, vcc
        s_lshl_b32 s26, s26, 4
        s_mov_b32 m0, s26
        s_nop 0
        buffer_load_dwordx4 v5, s[8:11], s24 offen lds
        """)
    k(f"""
    v_mul_u32_u24 v12, 432, v12
    v_add_u32 v12, v12, v13
    v_bfe_u32 v5, v0, 1, 1
    v_lshlrev_b32 v5, 7, v5
    v_add_u32 v5, 128, v5
    v_add_u32 v13, v12, v5
    s_waitcnt vmcnt(0)
    s_barrier
    """)
    for w in range(1, 4): k(f"s_cmp_eq_u32 s4, {w}\ns_cbranch_scc1 P_q{w}")
    for w in range(4):
        k.label(f"P_q{w}")
        ts = [t for t in range(w, 14, 4)]
        for i, t in enumerate(ts):
            for b in range(2):
                if t == 4: k(f"ds_read_b64_tr_b16 {vr(20+4*i+2*b,2)}, v13 offset:{b*432}")
                else: k(f"ds_read_b64_tr_b16 {vr(20+4*i+2*b,2)}, v12 offset:{b*432 + tile_off(t)}")
        for i, t in enumerate(ts):
            k(f"s_waitcnt lgkmcnt({2*(len(ts)-1-i)})")
            k(f"s_add_u32 s26, s22, {t*1024}")
            if t == 13:
                k("s_mov_b64 exec, s[50:51]")
                k(f"buffer_store_dwordx4 {vr(20+4*i,4)}, v15, s[16:19], s26 offen")
            else:
                k(f"buffer_store_dwordx4 {vr(20+4*i,4)}, v14, s[16:19], s26 offen")
        k("s_endpgm")
    k.label("P_o")
    k(f"""
    s_sub_u32 s5, s2, {NQ}
    s_cmp_ge_u32 s5, 48
    s_cselect_b32 s6, 48, 0
    s_cselect_b64 s[8:9], s[42:43], s[36:37]
    s_mov_b32 s22, {PO[0]}
    s_cselect_b32 s22, {PO[1]}, s22
    s_mov_b32 s10, {WOB}
    s_sub_u32 s5, s5, s6
    s_mul_i32 s6, s5, 43
    s_lshr_b32 s6, s6, 8
    s_mul_i32 s7, s6, 6
    s_sub_u32 s7, s5, s7
    s_mul_i32 s23, s5, 13824
    s_add_u32 s22, s22, s23
    s_mul_i32 s24, s7, {96*1152}
    s_mul_i32 s25, s6, 144
    s_add_u32 s24, s24, s25
    """)
    for n in range(4):
        k(f"""
        s_lshl_b32 s26, s4, 6
        s_add_u32 s26, s26, {256*n}
        v_add_u32 v2, s26, v0
        v_cmp_gt_u32 vcc, 864, v2
        v_mul_u32_u24 v3, 7282, v2
        v_lshrrev_b32 v3, 16, v3
        v_mul_u32_u24 v4, 9, v3
        v_sub_u32 v2, v2, v4
        """)
        emit_k_from_rho(k, "v5", "v3", "v6")
        k(f"""
        v_mul_u32_u24 v5, 1152, v5
        v_lshl_add_u32 v5, v2, 4, v5
        v_cndmask_b32 v5, v16, v5, vcc
        s_lshl_b32 s26, s26, 4
        s_mov_b32 m0, s26
        s_nop 0
        buffer_load_dwordx4 v5, s[8:11], s24 offen lds
        """)
    k(f"""
    v_mul_u32_u24 v12, 144, v12
    v_add_u32 v12, v12, v13
    s_waitcnt vmcnt(0)
    s_barrier
    """)
    for w in range(1, 4): k(f"s_cmp_eq_u32 s4, {w}\ns_cbranch_scc1 P_o{w}")
    for w in range(4):
        k.label(f"P_o{w}")
        ts = [t for t in range(w, 15, 4)]
        for i, t in enumerate(ts):
            ks, ct = t // 5, t % 5
            for b in range(2):
                k(f"ds_read_b64_tr_b16 {vr(20+4*i+2*b,2)}, v12 offset:{ks*4608 + b*144 + 32*ct}")
        for i, t in enumerate(ts):
            ks, ct = t // 5, t % 5
            k(f"s_waitcnt lgkmcnt({2*(len(ts)-1-i)})")
            k(f"s_add_u32 s26, s22, {ks*4608 + ct*1024}")
            if ct == 4:
                k("s_mov_b64 exec, s[50:51]")
                k(f"buffer_store_dwordx4 {vr(20+4*i,4)}, v15, s[16:19], s26 offen")
                k("s_mov_b64 exec, -1")
            else:
                k(f"buffer_store_dwordx4 {vr(20+4*i,4)}, v14, s[16:19], s26 offen")
        k("s_endpgm")
    k.label("P_cs")
    k(f"""
    s_sub_u32 s5, s2, {NQ+NO}
    s_cmp_ge_u32 s5, 27
    s_cselect_b32 s6, 27, 0
    s_cselect_b64 s[8:9], s[40:41], s[34:35]
    s_mov_b32 s22, {CS[0]}
    s_cselect_b32 s22, {CS[1]}, s22
    s_mov_b32 s10, {WQB}
    s_sub_u32 s5, s5, s6
    s_lshl_b32 s24, s5, 7
    s_lshl_b32 s23, s5, 8
    s_add_u32 s22, s22, s23
    s_lshl_b32 s6, s4, 3
    v_lshrrev_b32 v2, 3, v0
    v_add_u32 v2, s6, v2
    v_and_b32 v3, 7, v0
    v_mul_u32_u24 v4, 3456, v2
    v_lshl_add_u32 v4, v3, 4, v4
    """)
    for r in range(18):
        k(f"buffer_load_dwordx4 {vr(24+4*r,4)}, v4, s[8:11], s24 offen")
        k(f"s_add_u32 s24, s24, {32*3456}")
    for i in range(8): k(f"v_mov_b32 v{8+i}, 0")
    for r in range(18):
        k(f"s_waitcnt vmcnt({17-r})")
        for d in range(4):
            k(f"""
            v_lshlrev_b32 v5, 16, v{24+4*r+d}
            v_and_b32 v6, 0xffff0000, v{24+4*r+d}
            v_add_f32 v{8+2*d}, v{8+2*d}, v5
            v_add_f32 v{9+2*d}, v{9+2*d}, v6
            """)
    k(f"""
    v_lshlrev_b32 v5, 8, v2
    v_lshl_add_u32 v5, v3, 5, v5
    ds_write_b128 v5, v[8:11]
    ds_write_b128 v5, v[12:15] offset:16
    s_waitcnt lgkmcnt(0)
    s_barrier
    s_cmp_lg_u32 s4, 0
    s_cbranch_scc1 P_exit
    v_lshlrev_b32 v5, 2, v0
    """)
    for r in range(32): k(f"ds_read_b32 v{24+r}, v5 offset:{256*r}")
    k("s_waitcnt lgkmcnt(0)")
    for st in (16, 8, 4, 2, 1):
        for i in range(st): k(f"v_add_f32 v{24+i}, v{24+i}, v{24+i+st}")
    k("buffer_store_dword v24, v5, s[16:19], s22 offen")
    k("s_endpgm")
    k.label("P_flg")
    k(f"""
    v_mov_b32 v8, 0
    v_mov_b32 v9, 0
    v_mov_b32 v10, 0
    v_mov_b32 v11, 0
    s_lshl_b32 s5, s4, 13
    s_add_u32 s5, s5, {FLG}
    """)
    for i in range(8):
        k(f"buffer_store_dwordx4 v[8:11], v14, s[16:19], s5 offen\ns_add_u32 s5, s5, 1024")
    k("s_endpgm")
    k.label("P_warm")
    k(f"""
    s_getpc_b64 s[20:21]
    s_add_u32 s20, s20, m_kernel - . + 4
    s_addc_u32 s21, s21, 0
    s_mul_i32 s5, s4, 12288
    v_add_u32 v2, s5, v14
    """)
    for i in range(12):
        k(f"v_min_u32 v3, M_exit - m_kernel - 16, v2\nglobal_load_dwordx4 {vr(20+4*i,4)}, v3, s[20:21]\nv_add_u32 v2, 1024, v2")
    k("s_waitcnt vmcnt(0)\ns_endpgm")
    k.label("P_x")
    k(f"""
    s_sub_u32 s5, s2, {NQ+NO+NC+1}
    s_lshl_b32 s5, s5, 2
    s_add_u32 s5, s5, s4
    s_mul_i32 s6, s5, 7282
    s_lshr_b32 s6, s6, 16
    s_mul_i32 s7, s6, 9
    s_sub_u32 s7, s5, s7
    s_mov_b32 s8, s32
    s_mov_b32 s9, s33
    s_mov_b32 s10, {XB}
    s_lshr_b32 s22, s6, 4
    s_and_b32 s23, s6, 15
    s_mul_i32 s24, s23, {128*1152}
    s_mul_i32 s25, s22, 1152
    s_add_u32 s24, s24, s25
    s_lshl_b32 s25, s7, 7
    s_add_u32 s24, s24, s25
    s_mul_i32 s26, s6, {BLK}
    s_lshl_b32 s25, s7, 13
    s_add_u32 s26, s26, s25
    s_add_u32 s26, s26, {XBUF[0]}
    v_lshrrev_b32 v2, 3, v0
    v_and_b32 v3, 7, v0
    v_mul_u32_u24 v4, 2304, v2
    v_lshl_add_u32 v4, v3, 4, v4
    v_lshlrev_b32 v5, 10, v3
    v_lshl_add_u32 v5, v2, 4, v5
    """)
    for i in range(8):
        k(f"buffer_load_dwordx4 {vr(20+4*i,4)}, v4, s[8:11], s24 offen\ns_add_u32 s24, s24, {8*2304}")
    for i in range(8):
        k(f"s_waitcnt vmcnt({7-i + i})" if False else f"s_waitcnt vmcnt(7)")
        k(f"buffer_store_dwordx4 {vr(20+4*i,4)}, v5, s[16:19], s26 offen offset:{128*i}")
    k(f"""
    v_mov_b32 v6, 0x3f803f80
    s_lshl_b32 s27, s6, 13
    s_lshl_b32 s25, s7, 9
    s_add_u32 s27, s27, s25
    s_add_u32 s27, s27, {0x1C00000}
    v_lshlrev_b32 v7, 3, v2
    v_cmp_eq_u32 s[52:53], 0, v3
    """)
    for i in range(8):
        a = 56 + 2*i
        k(f"v_dot2_f32_bf16 v{a}, v{20+4*i}, v6, 0\nv_dot2_f32_bf16 v{a+1}, v{20+4*i}, v{20+4*i}, 0")
        for d in range(1, 4):
            k(f"v_dot2_f32_bf16 v{a}, v{20+4*i+d}, v6, v{a}\nv_dot2_f32_bf16 v{a+1}, v{20+4*i+d}, v{20+4*i+d}, v{a+1}")
    k("s_nop 3")
    for dp in ("quad_perm:[1,0,3,2]", "quad_perm:[2,3,0,1]", "row_half_mirror"):
        for r in range(56, 72): k(f"v_add_f32_dpp v{r}, v{r}, v{r} {dp} row_mask:0xf bank_mask:0xf")
    k("s_mov_b64 exec, s[52:53]")
    for i in range(8):
        k(f"buffer_store_dwordx2 {vr(56+2*i,2)}, v7, s[16:19], s27 offen offset:{64*i}")
    k(f"""
    s_mov_b64 exec, -1
    s_cmp_ge_u32 s7, 7
    s_cbranch_scc1 P_exit
    v_mov_b32 v8, 0
    v_mov_b32 v9, 0
    v_lshlrev_b32 v7, 3, v0
    s_add_u32 s27, s27, {9*512}
    buffer_store_dwordx2 v[8:9], v7, s[16:19], s27 offen
    """)
    k.label("P_exit")
    k("s_endpgm")

CSL = [640, 1536]
XI = 3072
HALO = XI + BLK
WOL = 80896
FR = WOL + 46*1024
LDSZ = 163840
PST = 0x1C00000
A0, A1, ACC, WF = 8, 28, 72, 112
CSR = 48
vA, vAh, vH = "v1", "v4", "v5"
vX2, vW0, vW1, vBN, vBO, vL = "v57", "v58", "v59", "v66", "v67", "v70"
RES = 60
HI = 9*4096
XSC = " sc1"

def gen_M(k):
    k.label("M_body")
    head(k, "M", 256)
    k(f"""
    s_and_b32 s5, s2, 7
    s_lshr_b32 s6, s2, 3
    s_and_b32 s7, s5, 1
    s_lshl_b32 s7, s7, 2
    s_and_b32 s20, s6, 3
    s_add_u32 s20, s20, s7
    s_lshr_b32 s7, s5, 1
    s_lshl_b32 s7, s7, 3
    s_lshr_b32 s21, s6, 2
    s_add_u32 s21, s21, s7
    s_lshr_b32 s22, s21, 4
    s_and_b32 s23, s21, 15
    s_mul_i32 s24, s21, {BLK}
    s_mul_i32 s25, s20, 144
    s_mov_b32 s3, 0
    s_mov_b32 s100, 0
    s_mov_b32 s101, 1
    v_mov_b32 v68, 0
    v_lshlrev_b32 {vL}, 4, v0
    s_lshl_b32 s26, s4, 10
    s_add_u32 s26, s26, {XI}
    s_add_u32 s31, s4, 9
    s_mov_b32 s30, s4
    s_cmp_lt_u32 s4, 4
    s_cbranch_scc1 M_tiles_ok
    s_add_u32 s30, s4, 1
    s_cmp_lt_u32 s4, 6
    s_cselect_b32 s31, 13, 4
    """)
    k.label("M_tiles_ok")
    k(f"""
    s_lshl_b32 s5, s30, 10
    v_add_u32 {vW0}, s5, {vL}
    s_lshl_b32 s5, s31, 10
    v_add_u32 {vW1}, s5, {vL}
    v_and_b32 v2, 15, v0
    v_lshrrev_b32 v3, 4, v0
    v_and_b32 v8, 7, v0
    v_lshl_add_u32 v10, v3, 3, v8
    v_lshlrev_b32 v10, 4, v10
    s_cmp_lg_u32 s31, 13
    s_cbranch_scc1 M_nh
    v_add_u32 {vW1}, {13*1024}, v10
    """)
    k.label("M_nh")
    k(f"""
    v_lshlrev_b32 v6, 4, v2
    v_lshl_add_u32 {vA}, v3, 10, v6
    v_add_u32 {vA}, {XI}, {vA}
    v_add_u32 {vAh}, {HI}, {vA}
    v_and_b32 v8, 0x70, v6
    v_lshl_add_u32 {vH}, v3, 7, v8
    v_add_u32 {vH}, {HALO}, {vH}
    v_lshrrev_b32 v8, 3, v0
    v_and_b32 v9, 7, v0
    v_lshlrev_b32 v9, 4, v9
    v_lshl_add_u32 v8, v8, 10, v9
    v_add_u32 v8, 896, v8
    v_bfrev_b32 v9, 1
    s_cmp_eq_u32 s23, 0
    s_cselect_b64 vcc, -1, 0
    s_and_b32 s6, s4, 3
    s_lshl_b32 s6, s6, 4
    v_cndmask_b32 {vX2}, v8, v9, vcc
    v_add_u32 v8, s6, v2
    v_lshrrev_b32 v9, 1, v3
    v_lshlrev_b32 v9, 10, v9
    v_lshl_add_u32 v9, v8, 4, v9
    v_and_b32 v10, 1, v3
    v_lshl_add_u32 v9, v10, 3, v9
    s_lshr_b32 s7, s4, 2
    s_mul_i32 s5, s7, 6144
    v_add_u32 {vBO}, s5, v9
    s_lshl_b32 s5, s23, 6
    v_add_u32 v8, s5, v8
    v_lshlrev_b32 v8, 1, v8
    v_add_u32 v8, s22, v8
    v_mul_u32_u24 v8, 1152, v8
    v_lshl_add_u32 v8, v3, 3, v8
    s_mul_i32 s7, s7, 96
    s_add_u32 s7, s7, s25
    v_add_u32 {vBN}, s7, v8
    s_waitcnt lgkmcnt(0)
    s_mov_b32 s12, s48
    s_mov_b32 s13, s49
    s_mov_b32 s14, {WSZ}
    s_mov_b32 s15, 0x20000
    s_mov_b32 s16, s48
    s_mov_b32 s17, s49
    s_mov_b32 s18, {WSZ}
    s_mov_b32 s19, 0x20000
    s_mov_b32 s92, s44
    s_mov_b32 s93, s45
    s_mov_b32 s94, {XB}
    s_mov_b32 s95, 0x20000
    s_mul_i32 s96, s20, {18*13824}
    s_add_u32 s28, s96, {PQ[1]}
    s_add_u32 s86, s96, {PQ[0]}
    """)
    x_setup(k)
    k("s_max_i32 s85, s85, 0")
    wo_setup(k)
    stamp(k)
    dispatch(k, "")
    for p in PROGS:
        gen_prog(k, p)
    gen_att(k)
    gen_mid(k)
    gen_Bphase(k)
    k.label("M_exit")
    k("s_endpgm")

def poll_core(k, name):
    k(f"""
    s_mov_b32 s5, 0x20000
    buffer_load_dword v8, v2, s[12:15], s91 offen sc1
    s_sleep 2
    buffer_load_dword v9, v2, s[12:15], s91 offen sc1
    s_sleep 2
    """)
    k.label(f"{name}_loop")
    for r in (10, 8, 9):
        chk = {10: 8, 8: 9, 9: 10}[r]
        k(f"""
        buffer_load_dword v{r}, v2, s[12:15], s91 offen sc1
        s_waitcnt vmcnt(2)
        v_cmp_eq_u32 vcc, s101, v{chk}
        s_nop 1
        s_cmp_eq_u64 vcc, exec
        s_cbranch_scc1 {name}_ok
        """)
    k(f"""
    s_sub_u32 s5, s5, 1
    s_cmp_lg_u32 s5, 0
    s_cbranch_scc1 {name}_loop
    """)
    k.label(f"{name}_ok")
    k("s_mov_b64 exec, -1")

def poll_simple(k, name, vtmp):
    k("s_mov_b32 s5, 0x40000")
    k.label(f"{name}_loop")
    k(f"""
    buffer_load_dword {vtmp}, v2, s[12:15], s91 offen sc1
    s_waitcnt vmcnt(0)
    v_cmp_eq_u32 vcc, s101, {vtmp}
    s_nop 1
    s_cmp_eq_u64 vcc, exec
    s_cbranch_scc1 {name}_ok
    s_sleep 2
    s_sub_u32 s5, s5, 1
    s_cmp_lg_u32 s5, 0
    s_cbranch_scc1 {name}_loop
    """)
    k.label(f"{name}_ok")
    k("s_mov_b64 exec, -1")

def poll(k, name, two):
    k(f"""
    s_cmp_lg_u32 s4, 7
    s_cbranch_scc1 {name}_done
    v_and_b32 v2, 7, v0
    v_lshlrev_b32 v2, 2, v2
    """)
    if two:
        k(f"""
        s_cmp_eq_u32 s23, 0
        s_cselect_b32 s5, 128, 0
        v_and_b32 v3, 8, v0
        v_lshlrev_b32 v3, 4, v3
        v_max_u32 v3, s5, v3
        v_add_u32 v2, v2, v3
        s_sub_u32 s91, s91, 128
        s_mov_b64 exec, 0xffff
        """)
    else:
        k("s_mov_b64 exec, 0xff")
    poll_core(k, name)
    k.label(f"{name}_done")
    k("s_barrier")

def flag_store(k, soff, voff_expr):
    k(f"""
    s_mov_b64 exec, 1
    v_mov_b32 v2, {voff_expr}
    v_mov_b32 v3, s101
    buffer_store_dword v3, v2, s[12:15], {soff} offen sc1
    s_mov_b64 exec, -1
    """)

def signal(k, name, extra=None):
    k(f"""
    s_waitcnt vmcnt(0)
    s_barrier
    s_cmp_lg_u32 s4, 7
    s_cbranch_scc1 {name}_ns
    s_lshl_b32 s5, s20, 2
    """)
    flag_store(k, "s91", "s5")
    if extra: extra()
    k.label(f"{name}_ns")

def wo_dma(k, late=False):
    if late:
        k(f"""
        s_add_u32 s6, s87, {41*1024}
        s_cmp_lt_u32 s87, {5*1024}
        s_cselect_b32 s6, s87, s6
        s_min_u32 s6, s6, {80*1024}
        """)
    else:
        k(f"s_min_u32 s6, s87, {45*1024}")
    k(f"""
    s_add_u32 m0, s6, {WOL}
    s_add_u32 s7, s6, s89
    buffer_load_dwordx4 {vL}, s[12:15], s7 offen lds
    s_add_u32 s87, s87, 7168
    """)
def wo_setup(k):
    k(f"""
    s_and_b32 s5, s3, 1
    s_cmp_eq_u32 s5, 0
    s_mov_b32 s89, {PO[1]}
    s_cselect_b32 s89, {PO[0]}, s89
    s_mul_i32 s5, s20, {18*4608}
    s_add_u32 s89, s89, s5
    s_lshl_b32 s87, s4, 10
    s_add_u32 s87, s87, {5*1024}
    """)
def x_setup(k):
    k(f"""
    s_mul_i32 s27, s3, {XSTR}
    s_add_u32 s27, s27, s24
    s_sub_u32 s85, s27, {BLK}
    s_lshl_b32 s5, s4, 10
    s_add_u32 s27, s27, s5
    """)
def wn1(ks, c):
    return f"s_add_u32 s84, s28, {ks*13824}\nbuffer_load_dwordx4 {vr(WF + 8*ks + 4*c, 4)}, {vW0 if c == 0 else vW1}, s[16:19], s84 offen"
def wn_load(ks): return [wn1(ks, 0), wn1(ks, 1)]
def guarded0(k, name, kss, nwo=0):
    k(f"s_cmp_lg_u32 s3, 0\ns_cbranch_scc1 {name}")
    if nwo:
        k(f"s_cmp_eq_u32 s4, 7\ns_cbranch_scc1 {name}_w")
        for _ in range(nwo): wo_dma(k)
        k.label(f"{name}_w")
    for ks in kss:
        for t in wn_load(ks): k(t)
    k.label(name)

def dispatch(k, sfx):
    k(f"""
    s_cmp_lt_u32 s4, 4
    s_cbranch_scc1 M_PV{sfx}
    s_cmp_eq_u32 s4, 4
    s_cbranch_scc1 M_S4{sfx}
    s_cmp_eq_u32 s4, 5
    s_cbranch_scc1 M_S5{sfx}
    s_cmp_eq_u32 s4, 6
    s_cbranch_scc1 M_S6{sfx}
    s_branch M_S7{sfx}
    """)

BARS = {1: 2, 5: 4, 9: 6, 13: 8}
D0 = int(os.environ.get('D0', '10'))
X1K = int(os.environ.get('X1K', '6'))
PROGS = {
    'PV': [('T', [1,2,3,4]), ('N', [0,1,2,3,4])],
    'S4': [('T', [0,1,2,3,4]), ('N', [0,1,2])],
    'S5': [('T', [0,1,2,3,4]), ('N', [3,4])],
    'S6': [('T', [0,1,2,3,4]), ('T', [0,1,2])],
    'S7': [('T', [0,1,2,3,4]), ('T', [3,4])],
}
eT, eN, eF0, eF1 = "v224", "v225", "v226", "v227"
eC0, eC1, aQ, aK = "v232", "v233", "v234", "v235"
CBp, CBs = 228, 236

def colsum_reduce(k, m, regs):
    k(f"""
    v_mul_u32_u24 v2, 3641, v0
    v_lshrrev_b32 v2, 16, v2
    v_mul_u32_u24 v3, {2304-288}, v2
    v_lshl_add_u32 v6, v0, 4, v3
    s_lshl_b32 s5, s25, 1
    s_add_u32 s5, s5, {PCS[m]}
    """)
    for r in range(18):
        k(f"buffer_load_dwordx4 {vr(regs[r],4)}, v6, s[12:15], s5 offen\ns_add_u32 s5, s5, 8192")
    k("s_waitcnt vmcnt(0)")
    for r in range(9):
        for h in range(2): k(f"v_pk_add_f32 {vr(regs[r]+2*h,2)}, {vr(regs[r]+2*h,2)}, {vr(regs[r+9]+2*h,2)}")
    for st in ((0,4),(1,5),(2,6),(3,7),(0,2),(1,3),(0,1),(0,8)):
        for h in range(2): k(f"v_pk_add_f32 {vr(regs[st[0]]+2*h,2)}, {vr(regs[st[0]]+2*h,2)}, {vr(regs[st[1]]+2*h,2)}")
    k(f"""
    s_mov_b32 exec_hi, 0x3fffff
    ds_write_b128 {vL}, {vr(regs[0],4)} offset:{CSL[m]}
    s_mov_b64 exec, -1
    """)
R18 = [8+4*i for i in range(10)] + [72+4*i for i in range(8)]

def gen_start0(k):
    for ks in range(D0):
        if ks % 2 == 0: k(f"s_setprio {max(3-ks//2,0)}")
        for c in range(2):
            k(f"buffer_load_dwordx4 {vr(WF + 8*ks + 4*c, 4)}, {vW0 if c == 0 else vW1}, s[16:19], s86 offen")
        k(f"s_add_u32 s86, s86, 13824")
    k(f"""
    s_waitcnt vmcnt({2*D0})
    s_barrier
    s_cmp_lg_u32 s4, 5
    s_cbranch_scc1 M_nocsA
    """)
    colsum_reduce(k, 0, R18)
    k.label("M_nocsA")
    k(f"""
    s_cmp_gt_u32 s4, 4
    s_cbranch_scc1 M_st0_done
    s_sub_u32 s5, s4, 1
    s_lshl_b32 s5, s5, 11
    s_cmp_eq_u32 s4, 0
    s_cselect_b64 vcc, -1, 0
    """)
    for i in range(4):
        k(f"v_add_u32 v{104+i}, s5, v{nA[i]}\nv_cndmask_b32 v{104+i}, v{104+i}, v{nH[i]}, vcc")
    for i in range(4): k(f"v_mov_b32 v{108+i}, 0x3f803f80")
    for i in range(8): k(f"v_mov_b32 v{96+i}, 0")
    for half in range(2):
        for i in range(9):
            ks = 9*half + i
            off = (ks // 2)*XS0
            h = 2 if off >= HI0 else 0
            k(f"ds_read_b128 {vr(8+4*i,4)}, v{104 + h + ks % 2} offset:{off - (HI0 if h else 0)}")
        for i in range(9):
            k(f"s_waitcnt lgkmcnt({8-i})")
            x = vr(8+4*i, 4)
            k(f"v_mfma_f32_16x16x32_bf16 v[96:99], {x}, {x}, v[96:99]")
            k(f"v_mfma_f32_16x16x32_bf16 v[100:103], v[108:111], {x}, v[100:103]")
    k(f"""
    v_and_b32 v2, 15, v0
    v_lshrrev_b32 v3, 4, v0
    v_lshrrev_b32 v6, 2, v2
    v_cmp_eq_u32 s[52:53], v3, v6
    v_and_b32 v6, 3, v0
    v_cmp_eq_u32 s[54:55], 1, v6
    v_cmp_eq_u32 s[56:57], 2, v6
    v_cmp_eq_u32 s[60:61], 3, v6
    s_lshl_b32 s5, s4, 6
    v_lshl_add_u32 v6, v2, 2, s5
    s_mov_b32 s5, 0x3ae38e39
    s_mov_b32 s6, 0x3727c5ac
    v_cndmask_b32 v8, v96, v97, s[54:55]
    v_cndmask_b32 v8, v8, v98, s[56:57]
    v_cndmask_b32 v8, v8, v99, s[60:61]
    v_mul_f32 v9, s5, v100
    v_mul_f32 v8, s5, v8
    v_fma_f32 v8, -v9, v9, v8
    v_max_f32 v8, 0, v8
    v_add_f32 v8, s6, v8
    v_rsq_f32 v8, v8
    s_nop 0
    v_mul_f32 v9, v9, v8
    s_mov_b64 exec, s[52:53]
    ds_write2_b32 v6, v8, v9 offset0:0 offset1:80
    s_mov_b64 exec, -1
    """)
    k.label("M_st0_done")

def stats_from_partials(k):
    fin = lambda a: f"""
    v_mul_f32 v{a}, s5, v{a}
    v_mul_f32 v{a+1}, s5, v{a+1}
    v_fma_f32 v{a+1}, -v{a}, v{a}, v{a+1}
    v_max_f32 v{a+1}, 0, v{a+1}
    v_add_f32 v{a+1}, s6, v{a+1}
    v_rsq_f32 v{a+1}, v{a+1}
    s_nop 0
    v_mul_f32 v{a}, v{a}, v{a+1}
    """
    k(f"""
    s_cmp_gt_u32 s4, 1
    s_cbranch_scc1 M_sp_done
    s_mov_b32 s5, 0x3ae38e39
    s_mov_b32 s6, 0x3727c5ac
    s_waitcnt vmcnt(4)
    s_cmp_eq_u32 s4, 1
    s_cbranch_scc1 M_sp_halo
    """)
    for st in ((0,4),(1,5),(2,6),(3,7),(0,2),(1,3),(0,1)):
        for h in range(2): k(f"v_pk_add_f32 {vr(72+4*st[0]+2*h,2)}, {vr(72+4*st[0]+2*h,2)}, {vr(72+4*st[1]+2*h,2)}")
    for i in range(4): k(f"v_mov_b32 v{76+i}, v{72+i}")
    k("s_nop 1")
    for i in range(4): k(f"v_permlane32_swap_b32 v{72+i}, v{76+i}")
    for h in range(2): k(f"v_pk_add_f32 {vr(72+2*h,2)}, {vr(72+2*h,2)}, {vr(76+2*h,2)}")
    k(fin(72)); k(fin(74))
    k(f"""
    v_lshlrev_b32 v2, 3, v0
    s_mov_b64 exec, 0xffffffff
    ds_write2_b32 v2, v73, v75 offset0:16 offset1:17
    ds_write2_b32 v2, v72, v74 offset0:96 offset1:97
    s_mov_b64 exec, -1
    s_branch M_sp_done
    """)
    k.label("M_sp_halo")
    k("s_nop 1")
    for sh in (4, 8):
        for i in range(4): k(f"v_add_f32_dpp v{72+i}, v{72+i}, v{72+i} row_ror:{sh} row_mask:0xf bank_mask:0xf")
        k("s_nop 1")
    for op in ("v_permlane16_swap_b32", "v_permlane32_swap_b32"):
        for i in range(4): k(f"v_mov_b32 v{76+i}, v{72+i}")
        k("s_nop 1")
        for i in range(4): k(f"{op} v{72+i}, v{76+i}")
        for h in range(2): k(f"v_pk_add_f32 {vr(72+2*h,2)}, {vr(72+2*h,2)}, {vr(76+2*h,2)}")
    k(fin(72)); k(fin(74))
    k(f"""
    v_lshlrev_b32 v2, 3, v0
    s_mov_b64 exec, 0xff
    ds_write2_b32 v2, v73, v75 offset0:0 offset1:1
    ds_write2_b32 v2, v72, v74 offset0:80 offset1:81
    s_mov_b64 exec, -1
    """)
    k.label("M_sp_done")

def setup_list(p):
    kA, kB = PROGS[p][0][0], PROGS[p][1][0]
    L = f"""
    v_and_b32 v2, 15, v0
    v_lshrrev_b32 v3, 4, v0
    v_lshlrev_b32 {eT}, 2, v2
    v_lshlrev_b32 {eN}, 4, v3
    v_lshlrev_b32 v6, 3, v0
    s_mul_i32 s5, s30, 2560
    s_add_u32 s5, s5, {FR}
    v_add_u32 {eF0}, s5, v6
    s_mul_i32 s5, s31, 2560
    s_add_u32 s5, s5, {FR}
    v_add_u32 {eF1}, s5, v6
    s_and_b32 s7, s3, 1
    s_mul_i32 s7, s7, {CSL[1]-CSL[0]}
    s_add_u32 s7, s7, {CSL[0]}
    """
    if p == 'PV':
        L += f"""
        s_lshl_b32 s5, s4, 6
        s_add_u32 s5, s5, s7
        v_add_u32 {eC0}, s5, {eN}
        s_add_u32 s5, s5, 576
        v_add_u32 {eC1}, s5, {eT}
        """
        return [x.strip() for x in L.strip().split("\n") if x.strip()]
    i = int(p[1]) - 4
    L += f"s_add_u32 s5, s7, {288 + 64*i}\nv_add_u32 {eC0}, s5, {eN}\n"
    if kB == 'N':
        L += f"s_add_u32 s5, s7, {576 + 256}\nv_add_u32 {eC1}, s5, {eT}\n"
    else:
        L += f"""
        v_lshrrev_b32 {eC1}, 1, v3
        v_lshlrev_b32 {eC1}, 8, {eC1}
        s_add_u32 s5, s7, 256
        v_add3_u32 {eC1}, {eC1}, {eN}, s5
        """
    L += f"""
    v_add_u32 {aQ}, {FR + 512*i}, v6
    v_add_u32 v6, 256, v6
    v_and_b32 v6, 0x1ff, v6
    v_add_u32 {aK}, {FR + 4*2560 + 512*i}, v6
    v_lshlrev_b32 v3, 2, v3
    v_cmp_le_u32 s[80:81], v3, v2
    v_sub_u32 v6, v2, v3
    v_mov_b32 v2, 0xf149f2ca
    """
    if i == 0: L += "s_cmp_lg_u32 s23, 0\ns_cselect_b32 s5, 8, 0\n"
    else: L += "s_mov_b32 s5, 8\n"
    for j in range(4):
        L += f"""
        v_add_u32 v3, {16-j}, v6
        v_cmp_gt_u32 s[76:77], s5, v3
        v_subrev_u32 v3, {j}, v6
        v_cmp_gt_u32 s[78:79], 8, v3
        s_nop 0
        v_cndmask_b32 v{CBp+j}, v2, 0, s[76:77]
        v_cndmask_b32 v{CBs+j}, v2, 0, s[78:79]
        """
    return [x.strip() for x in L.strip().split("\n") if x.strip()]

def e3_list(kind, accs, rts, statreg, cs, faddr, pk=False):
    L = []
    if not pk:
        for rt in rts:
            a = accs[rt]; sr = statreg(rt)
            for i in range(4):
                L.append(f"v_mul_f32 v{a+i}, v{a+i}, v{sr if kind == 'T' else sr+i}")
        for rt in rts:
            a = accs[rt]; sr = statreg(rt)
            for i in range(4):
                if kind == 'T': L.append(f"v_fma_f32 v{a+i}, -v{sr+1}, v{cs+i}, v{a+i}")
                else: L.append(f"v_fma_f32 v{a+i}, -v{sr+4+i}, v{cs}, v{a+i}")
        for rt in rts:
            a = accs[rt]
            L += [f"v_cvt_pk_bf16_f32 v{a}, v{a}, v{a+1}", f"v_cvt_pk_bf16_f32 v{a+1}, v{a+2}, v{a+3}",
                  f"ds_write_b64 {faddr}, {vr(a,2)} offset:{rt*512}"]
        return L
    for rt in rts:
        a = accs[rt]; sr = statreg(rt)
        for h in range(2):
            if kind == 'T': L.append(f"v_pk_mul_f32 {vr(a+2*h,2)}, {vr(a+2*h,2)}, {vr(sr,2)} op_sel_hi:[1,0]")
            else: L.append(f"v_pk_mul_f32 {vr(a+2*h,2)}, {vr(a+2*h,2)}, {vr(sr+2*h,2)}")
    for rt in rts:
        a = accs[rt]; sr = statreg(rt)
        for h in range(2):
            if kind == 'T': L.append(f"v_pk_fma_f32 {vr(a+2*h,2)}, {vr(cs+2*h,2)}, {vr(sr,2)}, {vr(a+2*h,2)} op_sel:[0,1,0] op_sel_hi:[1,1,1] neg_lo:[0,1,0] neg_hi:[0,1,0]")
            else: L.append(f"v_pk_fma_f32 {vr(a+2*h,2)}, {vr(sr+4+2*h,2)}, {vr(cs,2)}, {vr(a+2*h,2)} op_sel_hi:[1,0,1] neg_lo:[1,0,0] neg_hi:[1,0,0]")
    for rt in rts:
        a = accs[rt]
        L += [f"v_cvt_pk_bf16_f32 v{a}, v{a}, v{a+1}", f"v_cvt_pk_bf16_f32 v{a+1}, v{a+2}, v{a+3}",
              f"ds_write_b64 {faddr}, {vr(a,2)} offset:{rt*512}"]
    return L

def gen_prog(k, p):
    (kA, rA), (kB, rB) = PROGS[p]
    isV = p == 'PV'; w7 = p == 'S7'
    a = ACC; accA = {}; accB = {}
    for rt in rA: accA[rt] = a; a += 4
    for rt in rB: accB[rt] = a; a += 4
    nacc = a
    vq = []
    def vwait(tag):
        idx = -1
        for i, t in enumerate(vq):
            if t == tag: idx = i
        if idx >= 0:
            k(f"s_waitcnt vmcnt({len(vq)-1-idx})")
            del vq[:idx+1]
    def mf(kind, d, wf, x):
        d = vr(d, 4)
        if kind == 'T': k(f"v_mfma_f32_16x16x32_bf16 {d}, {wf}, {x}, {d}")
        else: k(f"v_mfma_f32_16x16x32_bf16 {d}, {x}, {wf}, {d}")
    def rd(first, ks, rts, regs=None):
        base = A0 if ks % 2 == 0 else A1
        for rt in rts:
            R = vr(regs[rt] if regs else base+4*rt, 4)
            if rt == 0: k(f"ds_read_b128 {R}, {vH} offset:{ks*512}")
            else:
                off = ks*4096 + (rt-1)*256
                if off >= HI: k(f"ds_read_b128 {R}, {vAh} offset:{off-HI}")
                else: k(f"ds_read_b128 {R}, {vA} offset:{off}")
    def issue_x(s):
        k(f"""
        s_add_u32 m0, s26, {s*8192}
        s_nop 0
        buffer_load_dwordx4 {vL}, s[12:15], s27 offen{XSC} lds
        s_add_u32 s27, s27, 8192
        """)
        vq.append(('x', s))
        if w7:
            k(f"""
            s_mov_b32 m0, {HALO + s*1024}
            s_nop 0
            buffer_load_dwordx4 {vX2}, s[12:15], s85 offen{XSC} lds
            s_add_u32 s85, s85, 8192
            """)
            vq.append(('x', s))
    r1 = rA if isV else [0,1,2,3,4]
    n1 = len(r1)
    LAGA = 6 if isV else 4
    SB = 88 if isV else 100
    def stat_loads():
        k(f"""
        s_lshl_b32 s5, s3, 18
        s_lshl_b32 s6, s21, 13
        s_add_u32 s5, s5, s6
        s_add_u32 s5, s5, {PST}
        """)
        if isV:
            k(f"""
            v_lshrrev_b32 v2, 3, v0
            v_and_b32 v3, 7, v0
            v_lshlrev_b32 v3, 4, v3
            v_lshl_add_u32 v2, v2, 9, v3
            s_lshl_b32 s6, s4, 7
            s_add_u32 s5, s5, s6
            buffer_load_dwordx4 {vr(SB,4)}, v2, s[12:15], s5 offen sc1
            s_add_u32 s5, s5, 4096
            buffer_load_dwordx4 {vr(SB+4,4)}, v2, s[12:15], s5 offen sc1
            """)
            vq.extend([('sp', 0)]*2)
        else:
            k(f"""
            v_lshrrev_b32 v2, 2, v0
            v_and_b32 v3, 3, v0
            v_lshlrev_b32 v3, 4, v3
            v_lshl_add_u32 v2, v2, 9, v3
            v_bfrev_b32 v3, 1
            s_cmp_eq_u32 s23, 0
            s_cselect_b64 vcc, -1, 0
            s_sub_u32 s5, s5, {8192 - 448}
            s_nop 0
            v_cndmask_b32 v2, v2, v3, vcc
            buffer_load_dwordx4 {vr(SB,4)}, v2, s[12:15], s5 offen sc1
            """)
            vq.append(('sp', 0))
    def stat_list():
        L = []
        if isV:
            L += [f"v_add_f32 v{SB+i}, v{SB+i}, v{SB+4+i}" for i in range(4)]
            rors = (8,)
        else: rors = (4, 8)
        for sh in rors:
            L += ["s_nop 1"] + [f"v_add_f32_dpp v{SB+i}, v{SB+i}, v{SB+i} row_ror:{sh} row_mask:0xf bank_mask:0xf" for i in range(4)]
        for op in ("v_permlane16_swap_b32", "v_permlane32_swap_b32"):
            L += [f"v_mov_b32 v{SB+4+i}, v{SB+i}" for i in range(4)] + ["s_nop 1"]
            L += [f"{op} v{SB+i}, v{SB+4+i}" for i in range(4)]
            L += [f"v_add_f32 v{SB+i}, v{SB+i}, v{SB+4+i}" for i in range(4)]
        L += ["s_mov_b32 s64, 0x3ae38e39", "s_mov_b32 s65, 0x3727c5ac"]
        for a_ in (SB, SB+2):
            L += [f"v_mul_f32 v{a_}, s64, v{a_}", f"v_mul_f32 v{a_+1}, s64, v{a_+1}", f"v_fma_f32 v{a_+1}, -v{a_}, v{a_}, v{a_+1}",
                  f"v_max_f32 v{a_+1}, 0, v{a_+1}", f"v_add_f32 v{a_+1}, s65, v{a_+1}", f"v_rsq_f32 v{a_+1}, v{a_+1}"]
        L += ["s_nop 0", f"v_mul_f32 v{SB}, v{SB}, v{SB+1}", f"v_mul_f32 v{SB+2}, v{SB+2}, v{SB+3}"]
        if isV: L += [f"s_lshl_b32 s64, s4, 6\nv_lshl_add_u32 v{SB+4}, v0, 3, s64"]
        else: L += [f"v_lshlrev_b32 v{SB+4}, 3, v0"]
        o = 16 if isV else 0
        L += [f"s_mov_b64 exec, 0xff\nds_write2_b32 v{SB+4}, v{SB+1}, v{SB+3} offset0:{o} offset1:{o+1}\nds_write2_b32 v{SB+4}, v{SB}, v{SB+2} offset0:{80+o} offset1:{81+o}\ns_mov_b64 exec, -1"]
        if isV: L += [f"v_mov_b32 v{SB+i}, 0" for i in range(8)]
        return L
    dostat = isV or p == 'S5'
    def w0(ks):
        for c in range(2):
            k(f"buffer_load_dwordx4 {vr(WF + 8*ks + 4*c, 4)}, {vW0 if c == 0 else vW1}, s[16:19], s86 offen"); vq.append(('w', ks))
        k(f"s_add_u32 s86, s86, 13824")
    def body(first):
        del vq[:]
        for r in range(ACC, nacc): k(f"v_mov_b32 v{r}, 0")
        for s in range(max(4, D0//2) if first else 4):
            k(f"s_setprio {max(3-s,0)}")
            if s < 4: issue_x(s)
            if first and 2*s < D0: w0(2*s); w0(2*s+1)
            if s == 1 and dostat: stat_loads()
        if first and p in ('S4', 'S6'):
            m = 0 if p == 'S4' else 1
            k(f"""
            v_mul_u32_u24 v2, 3641, v0
            v_lshrrev_b32 v2, 16, v2
            v_mul_u32_u24 v3, {2304-288}, v2
            v_lshl_add_u32 v6, v0, 4, v3
            s_lshl_b32 s5, s25, 1
            s_add_u32 s5, s5, {CS[m]}
            buffer_load_dwordx4 v[104:107], v6, s[12:15], s5 offen
            """)
            vq.append(('cs', 0))
        su = setup_list(p)
        sl = stat_list() if dostat else []
        if not isV: k("s_setprio 2")
        vwait(('x', 0))
        k("s_barrier")
        stamp(k)
        rd(first, 0, r1)
        for ks in range(18):
            base = A0 if ks % 2 == 0 else A1
            if ks in BARS:
                vwait(('x', BARS[ks]))
                k("s_barrier")
            if ks + 1 < 18:
                rd(first, ks + 1, r1)
                k(f"s_waitcnt lgkmcnt({n1})")
            elif isV:
                rd(first, 0, rB)
                k(f"s_waitcnt lgkmcnt(5)")
            else:
                k("s_waitcnt lgkmcnt(0)")
            if first: vwait(('w', ks))
            if ks == 2: vwait(('sp', 0))
            ml = [(kA, accA[rt], vr(WF + 8*ks, 4), rt) for rt in rA]
            if not isV: ml += [(kB, accB[rt], vr(WF + 8*ks + 4, 4), rt) for rt in rB]
            for i, (kind, d, wf, rt) in enumerate(ml):
                mf(kind, d, wf, vr(base+4*rt, 4))
                if ks >= 16:
                    for _ in range(5 if not isV else 3):
                        if su: k(su.pop(0))
                if 2 <= ks < 9:
                    for _ in range(3):
                        if sl: k(sl.pop(0))
                if i == 1:
                    if ks % 2 == 0 and ks // 2 + 4 < 9: issue_x(ks // 2 + 4)
                    if first and ks + D0 < 18: w0(ks + D0)
            assert not (ks == 8 and sl)
            if not first and LAGA <= ks < 16:
                for c in ((0,) if isV else (0, 1)):
                    k(wn1(ks - LAGA, c)); vq.append(('wn', 0))
            if first and ks == 10:
                if p in ('S4', 'S6'):
                    vwait(('cs', 0))
                    k(f"s_mov_b32 exec_hi, 0x3fffff\nds_write_b128 {vL}, v[104:107] offset:{CSL[0 if p == 'S4' else 1]}\ns_mov_b64 exec, -1")
                k(f"s_mul_i32 s5, s20, 9216\ns_add_u32 s5, s5, s24")
                for ct in range(3):
                    k(f"buffer_load_dwordx2 {vr(RES+2*ct,2)}, {vBO}, s[12:15], s5 offen\ns_add_u32 s5, s5, 2048"); vq.append(('res', 0))
            if first and not w7 and 10 <= ks < 16:
                wo_dma(k); vq.append(('wo', 0))
            if first and 10 <= ks < 16:
                for c in ((0,) if isV else (0, 1)):
                    k(wn1(ks - 10, c)); vq.append(('wn', 0))
        while su: k(su.pop(0))
        k("s_setprio 1" if isV else "s_setprio 0")
        stamp(k)
        if first: k(f"s_branch M_{p}_epi")
    def pass2():
        first = False
        SQ = {1: 108, 2: 110, 3: 228, 4: 230} if False else None
        sq = {1: "A", 2: "A", 3: "A", 4: "A"}
        sreg = {1: 208, 2: 210, 3: 216, 4: 218}
        k(f"ds_read_b128 v[200:203], {eC0}")
        for rt in rA: k(f"ds_read2_b32 {vr(sreg[rt],2)}, {eT} offset0:{16*rt} offset1:{80+16*rt}")
        e3 = e3_list('T', accA, rA, lambda rt: sreg[rt], 200, eF0)
        SETS = [[A0+4*i for i in range(5)], [A1+4*i for i in range(5)], [72, 76, 80, 84, 108]]
        setof = {0: 0, 1: 1, 2: 0, 3: 1}
        for ks in range(4, 18): setof[ks] = {4: 2, 5: 0}.get(ks, None)
        order = [2, 0, 1]
        for ks in range(4, 18): setof[ks] = order[(ks - 4) % 3]
        issued = 0
        for ks in range(18):
            want = min(17, ks + (1 if ks < 3 else 2))
            while issued < want:
                issued += 1
                rd(first, issued, rB, SETS[setof[issued]])
            k(f"s_waitcnt lgkmcnt({5*(issued-ks)})")
            if ks == X1K:
                k("s_barrier")
            for i, rt in enumerate(rB):
                mf('N', accB[rt], vr(WF + 8*ks + 4, 4), vr(SETS[setof[ks]][rt], 4))
                if ks in (0, 1, 2) and (ks > 0 or i >= 2):
                    for _ in range(4):
                        if e3: k(e3.pop(0))
            assert not (ks == 2 and e3)
            if not first and ks >= 3:
                k(wn1(ks - 3, 1))
                if ks in (4, 6): k(wn1(10, 0) if ks == 4 else wn1(16, 0))
                if ks in (8, 10, 12, 14): k(wn1({8: 17, 10: 11, 12: 12, 14: 13}[ks], 0))
    k.label(f"M_{p}")
    body(True)
    k.label(f"M_{p}_loop")
    body(False)
    k.label(f"M_{p}_epi")
    if isV:
        pass2()
        stamp(k)
        k(f"ds_read_b32 v{CSR}, {eC1}")
        for rt in rB:
            k(f"ds_read_b128 {vr(8+8*rt,4)}, {eN} offset:{rt*64}")
            k(f"ds_read_b128 {vr(8+8*rt+4,4)}, {eN} offset:{320+rt*64}")
        k("s_waitcnt lgkmcnt(0)")
        for t in e3_list('N', accB, rB, lambda rt: 8+8*rt, CSR, eF1, True): k(t)
        k("s_waitcnt lgkmcnt(0)")
        stamp(k)
        k("s_setprio 0")
        k("s_barrier")
        stamp(k)
        for t in (wn1(15,1), wn1(16,1)): k(t)
        stamp(k)
        k("s_branch M_mid")
        return
    k(f"ds_read_b128 {vr(CSR,4)}, {eC0}")
    if kB == 'T': k(f"ds_read_b128 {vr(CSR+4,4)}, {eC1}")
    else: k(f"ds_read_b32 v{CSR+4}, {eC1}")
    for rt in range(5): k(f"ds_read2_b32 {vr(8+2*rt,2)}, {eT} offset0:{16*rt} offset1:{80+16*rt}")
    nb = {rt: 18 + 8*i for i, rt in enumerate(rB)}
    if kB == 'N':
        for rt in rB:
            k(f"ds_read_b128 {vr(nb[rt],4)}, {eN} offset:{rt*64}")
            k(f"ds_read_b128 {vr(nb[rt]+4,4)}, {eN} offset:{320+rt*64}")
    k("s_waitcnt lgkmcnt(0)")
    for t in e3_list('T', accA, rA, lambda rt: 8+2*rt, CSR, eF0): k(t)
    if kB == 'T':
        for t in e3_list('T', accB, rB, lambda rt: 8+2*rt, CSR+4, eF1): k(t)
    else:
        for t in e3_list('N', accB, rB, lambda rt: nb[rt], CSR+4, eF1): k(t)
    k("s_branch M_att")

def gen_att(k):
    k.label("M_att")
    RQ, KP, KS, QH = 8, 18, 28, 72
    S = [88, 96, 104, 40]; T = [48, 50, 52, 54]
    M1, M2 = "s[60:61]", "s[62:63]"
    k(f"""
    s_mov_b32 s58, 0x3eae1a93
    s_mov_b32 s59, 0x3eae1a93
    s_mov_b32 s60, 0xffff0000
    s_mov_b32 s61, -1
    s_mov_b32 s62, 0
    s_mov_b32 s63, -1
    s_waitcnt lgkmcnt(0)
    """)
    stamp(k)
    k("s_barrier")
    stamp(k)
    for t in range(5): k(f"ds_read_b64 {vr(RQ+2*t,2)}, {aQ} offset:{t*2560 + 512}")
    for j in range(4):
        k(f"ds_read_b64 {vr(KP+2*j,2)}, {aQ} offset:{(5+j)*2560}")
        k(f"ds_read_b64 {vr(KS+2*j,2)}, {aQ} offset:{(5+j)*2560 + 512}")
    k(f"ds_read_b64 {vr(KP+8,2)}, {aK}")
    k(f"ds_read_b64 {vr(KS+8,2)}, {aK} offset:512")
    def bgw(name, kss):
        for ks in kss:
            for t in wn_load(ks): k(t)
    k("s_waitcnt lgkmcnt(10)")
    def keep_ge(dst, src, x):
        if x <= 0: return f"v_mov_b32 v{dst}, v{src}"
        return f"v_cndmask_b32 v{dst}, 0, v{src}, {M1 if x == 1 else M2}"
    def keep_le(dst, src, x):
        if x < 0: return f"v_mov_b32 v{dst}, 0"
        return f"v_cndmask_b32 v{dst}, v{src}, 0, {M1 if x == 0 else M2}"
    for h in range(4):
        for p_ in range(2):
            k(keep_ge(QH+4*h+p_, RQ+2*h+p_, (h - p_ + 1)//2))
        for p_ in range(2):
            k(keep_le(QH+4*h+2+p_, RQ+2*(h+1)+p_, (h - p_)//2 if h - p_ >= 0 else -1))
    k("s_waitcnt lgkmcnt(0)\ns_nop 0")
    for h in range(4):
        k(f"v_mfma_f32_16x16x32_bf16 {vr(S[h],4)}, {vr(KP+2*h,4)}, {vr(QH+4*h,4)}, {vr(CBp,4)}")
        k(f"v_mfma_f32_16x16x32_bf16 {vr(S[h]+4,4)}, {vr(KS+2*h,4)}, {vr(QH+4*h,4)}, {vr(CBs,4)}")
    bgw("M_b2", (12,))
    k("s_nop 3")
    def allh(f):
        for h in range(4): k(f(h))
    for i in range(4): allh(lambda h: f"v_max_f32 v{S[h]+i}, v{S[h]+i}, v{S[h]+4+i}")
    allh(lambda h: f"v_max3_f32 v{T[h]}, v{S[h]}, v{S[h]+1}, v{S[h]+2}")
    allh(lambda h: f"v_max_f32 v{T[h]}, v{T[h]}, v{S[h]+3}")
    for op in ("v_permlane32_swap_b32", "v_permlane16_swap_b32"):
        allh(lambda h: f"v_mov_b32 v{T[h]+1}, v{T[h]}")
        allh(lambda h: f"{op} v{T[h]}, v{T[h]+1}")
        allh(lambda h: f"v_max_f32 v{T[h]}, v{T[h]}, v{T[h]+1}")
    allh(lambda h: f"v_mul_f32 v{T[h]}, s58, v{T[h]}")
    for i in range(4): allh(lambda h: f"v_fma_f32 v{S[h]+i}, v{S[h]+i}, s58, -v{T[h]}")
    for i in range(4): allh(lambda h: f"v_exp_f32 v{S[h]+i}, v{S[h]+i}")
    allh(lambda h: f"v_add_f32 v{S[h]+4}, v{S[h]}, v{S[h]+1}")
    allh(lambda h: f"v_add_f32 v{S[h]+5}, v{S[h]+2}, v{S[h]+3}")
    allh(lambda h: f"v_add_f32 v{T[h]}, v{S[h]+4}, v{S[h]+5}")
    for op in ("v_permlane32_swap_b32", "v_permlane16_swap_b32"):
        allh(lambda h: f"v_mov_b32 v{T[h]+1}, v{T[h]}")
        allh(lambda h: f"{op} v{T[h]}, v{T[h]+1}")
        allh(lambda h: f"v_add_f32 v{T[h]}, v{T[h]}, v{T[h]+1}")
    allh(lambda h: f"v_rcp_f32 v{T[h]}, v{T[h]}")
    for i in range(4): allh(lambda h: f"v_mul_f32 v{S[h]+i}, v{S[h]+i}, v{T[h]}")
    for i in range(2): allh(lambda h: f"v_cvt_pk_bf16_f32 v{S[h]+4+i}, v{S[h]+2*i}, v{S[h]+2*i+1}")
    for i in range(2): allh(lambda h: f"v_cndmask_b32 v{QH+4*h+i}, v{S[h]+4+i}, 0, s[80:81]")
    for i in range(2): allh(lambda h: f"v_cndmask_b32 v{QH+4*h+2+i}, 0, v{S[h]+4+i}, s[80:81]")
    bgw("M_b4", (13,))
    k(f"""
    s_mul_i32 s83, s3, {OBUF[1]-OBUF[0]}
    s_add_u32 s83, s83, {OBUF[0] - 6144}
    s_add_u32 s83, s83, s24
    s_mul_i32 s5, s20, 9216
    s_add_u32 s83, s83, s5
    """)
    stamp(k)
    k("s_barrier")
    stamp(k)
    VF = 8
    for t in range(5):
        k(f"ds_read_b64 {vr(VF+4*t,2)}, {aQ} offset:{(9+t)*2560}")
        k(f"ds_read_b64 {vr(VF+4*t+2,2)}, {aQ} offset:{(9+t)*2560 + 512}")
    for h in range(4):
        k(f"s_waitcnt lgkmcnt({6-2*h})")
        k(f"v_mfma_f32_16x16x32_bf16 {vr(S[h],4)}, {vr(VF+4*h,4)}, {vr(QH+4*h,4)}, 0")
        k(f"v_mfma_f32_16x16x32_bf16 {vr(S[h]+4,4)}, {vr(VF+4*(h+1),4)}, {vr(QH+4*h,4)}, 0")
    k("s_nop 3")
    for h in range(4):
        k(f"v_cvt_pk_bf16_f32 v{S[h]}, v{S[h]}, v{S[h]+1}")
        k(f"v_cvt_pk_bf16_f32 v{S[h]+1}, v{S[h]+2}, v{S[h]+3}")
        k(f"v_cvt_pk_bf16_f32 v{S[h]+4}, v{S[h]+4}, v{S[h]+5}")
        k(f"v_cvt_pk_bf16_f32 v{S[h]+5}, v{S[h]+6}, v{S[h]+7}")
        if h >= 1:
            for p_ in range(2):
                x = (h - p_ + 1)//2
                if x > 0: k(f"v_cndmask_b32 v{S[h]+p_}, v{S[h-1]+4+p_}, v{S[h]+p_}, {M1 if x == 1 else M2}")
        k(f"buffer_store_dwordx2 {vr(S[h],2)}, {vBO}, s[12:15], s83 offen sc1\ns_add_u32 s83, s83, 2048")
    k(f"""
    s_mov_b64 exec, 0xffffffff
    buffer_store_dwordx2 {vr(S[3]+4,2)}, {vBO}, s[12:15], s83 offen sc1
    s_mov_b64 exec, -1
    """)
    k("s_setprio 0")
    stamp(k)

def gen_mid(k):
    k.label("M_mid")
    k(f"""
    s_mul_i32 s88, s3, {OBUF[1]-OBUF[0]}
    s_add_u32 s88, s88, {OBUF[0]}
    s_add_u32 s88, s88, s24
    s_lshl_b32 s90, s3, 13
    s_lshl_b32 s5, s21, 7
    s_add_u32 s90, s90, s5
    s_add_u32 s90, s90, {FLG}
    s_and_b32 s5, s4, 1
    s_lshl_b32 s6, s5, 12
    s_and_b32 s7, s4, 2
    s_lshl_b32 s7, s7, 8
    s_add_u32 s6, s6, s7
    v_add_u32 v108, s6, {vA}
    v_add_u32 v109, {4*8192}, v108
    s_mul_i32 s5, s5, 4608
    s_lshr_b32 s6, s4, 2
    s_mul_i32 s6, s6, 3072
    s_add_u32 s6, s6, s5
    s_add_u32 s6, s6, {WOL}
    v_add_u32 v7, s6, {vL}
    v_add_u32 v110, {4*9216}, v7
    v_lshrrev_b32 v71, 4, v0
    v_and_b32 v69, 7, v0
    v_lshl_add_u32 v69, v71, 3, v69
    v_lshlrev_b32 v69, 4, v69
    s_add_u32 s5, s5, {WOL + 4096}
    v_add_u32 v69, s5, v69
    v_add_u32 v111, {4*9216}, v69
    s_lshl_b32 s5, s4, 10
    s_add_u32 s88, s88, s5
    s_mul_i32 s5, s4, 3072
    s_add_u32 s5, s5, {XI}
    v_add_u32 v56, s5, {vL}
    s_xor_b32 s6, s4, 1
    s_mul_i32 s6, s6, 3072
    s_add_u32 s6, s6, {XI}
    v_add_u32 v71, s6, {vL}
    """)
    k("s_mov_b32 s91, s90")
    signal(k, "M_sigA")
    stamp(k)
    k(f"s_cmp_eq_u32 s4, 7\ns_cbranch_scc1 M_nolate\ns_mov_b32 s82, s87\ns_lshl_b32 s87, s4, 10")
    wo_dma(k, True)
    for _ in range(5): wo_dma(k, True)
    k.label("M_nolate")
    for r in range(72, 96): k(f"v_mov_b32 v{r}, 0")
    poll(k, "M_pollA", False)
    stamp(k)

def gen_Bphase(k):
    def odma(st):
        k(f"""
        s_add_u32 m0, s26, {st*8192}
        s_nop 0
        buffer_load_dwordx4 {vL}, s[12:15], s88 offen{XSC} lds
        s_add_u32 s88, s88, 8192
        """)
    PFD = 5
    for st in range(PFD):
        k(f"s_setprio {max(3-st,0)}")
        odma(st)
    k(f"""
    s_cmp_ge_u32 s4, 4
    s_cbranch_scc1 M_Bh1
    """)
    OF = [8, 28]; WFb = [16, 36]
    GR = {0: 0, 1: 1, 2: 3, 4: 5, 6: 8}
    for half in range(2):
        k.label(f"M_Bh{half}")
        n = 3 if half == 0 else 2
        def reads(st):
            p = st % 2
            hi = st >= 4; s_ = st - 4 if hi else st
            for r in range(2):
                k(f"ds_read_b128 {vr(OF[p]+4*r,4)}, {'v109' if hi else 'v108'} offset:{8192*s_ + 256*r}")
            for ct in range(n):
                if half == 1 and ct == 1:
                    k(f"ds_read_b128 {vr(WFb[p]+4*ct,4)}, {'v111' if hi else 'v69'} offset:{9216*s_}")
                else:
                    k(f"ds_read_b128 {vr(WFb[p]+4*ct,4)}, {'v110' if hi else 'v7'} offset:{9216*s_ + 1024*ct}")
        def mm(p):
            for ct in range(n):
                for r in range(2):
                    d = vr(72+12*r+4*ct, 4)
                    k(f"v_mfma_f32_16x16x32_bf16 {d}, {vr(WFb[p]+4*ct,4)}, {vr(OF[p]+4*r,4)}, {d}")
        nreads = 2 + n
        issued = PFD
        EXTRA = {6: 2 if half == 1 else 1}
        k(f"s_waitcnt vmcnt({issued-1})")
        k("s_barrier")
        stamp(k)
        reads(0)
        for st in range(9):
            for _ in range(2):
                if issued < 9: odma(issued); issued += 1
            nx = st + 1
            if nx < 9 and nx not in GR:
                reads(nx)
                k(f"s_waitcnt lgkmcnt({nreads})")
                mm(st % 2)
            else:
                k("s_waitcnt lgkmcnt(0)")
                mm(st % 2)
                if nx < 9:
                    if 'f' in EXP: stamp(k)
                    k(f"s_waitcnt vmcnt({issued-1-GR[nx] + EXTRA.get(nx, 0)})")
                    if 'f' in EXP: stamp(k)
                    k("s_barrier")
                    if 'f' in EXP: stamp(k)
                    reads(nx)
            if st >= 3:
                k(f"s_cmp_lg_u32 s3, 0\ns_cbranch_scc1 M_g2{half}_{st}")
                if half == 0:
                    if st + 3 < 10: k(wn1(st + 3, 0))
                else:
                    for t in wn_load(st+3): k(t)
                k.label(f"M_g2{half}_{st}")
            if half == 1 and st in (4, 5, 6, 7):
                for t in wn_load(10 + st): k(t)
            if half == 0 and st in (4, 5, 6):
                k((wn1(17,1), wn1(14,0), wn1(15,0))[st-4])
        if 'f' in EXP: stamp(k)
        k(f"""
        s_and_b32 s7, s4, 1
        s_cmp_eq_u32 s7, 0
        s_nop 6
        s_cbranch_scc1 M_Bx{half}_k0
        """)
        for kh in (1, 0):
            if kh == 0: k.label(f"M_Bx{half}_k0")
            keep = 72 + 12*kh; send = 72 + 12*(1-kh)
            for ct in range(n):
                k(f"ds_write_b128 v56, {vr(send+4*ct,4)} offset:{1024*ct}")
            k("s_waitcnt lgkmcnt(0)\ns_barrier")
            for ct in range(n):
                k(f"ds_read_b128 {vr(8+4*ct,4)}, v71 offset:{1024*ct}")
            for ct in range(n):
                k(f"s_waitcnt lgkmcnt({n-1-ct})")
                for h in range(2):
                    k(f"v_pk_add_f32 {vr(96+4*ct+2*h,2)}, {vr(keep+4*ct+2*h,2)}, {vr(8+4*ct+2*h,2)}")
            if kh == 1: k(f"s_branch M_Bx{half}_j")
        k.label(f"M_Bx{half}_j")
        stamp(k)
        T = lambda ct, i: 8 + 10*ct + i
        steps = [
            lambda ct, d, x: f"v_cvt_pk_bf16_f32 v{T(ct,8)}, v{d}, v{d+1}",
            lambda ct, d, x: f"v_cvt_pk_bf16_f32 v{T(ct,9)}, v{d+2}, v{d+3}",
            lambda ct, d, x: f"v_lshlrev_b32 v{T(ct,4)}, 16, v{x}",
            lambda ct, d, x: f"v_and_b32 v{T(ct,5)}, 0xffff0000, v{x}",
            lambda ct, d, x: f"v_lshlrev_b32 v{T(ct,6)}, 16, v{x+1}",
            lambda ct, d, x: f"v_and_b32 v{T(ct,7)}, 0xffff0000, v{x+1}",
            lambda ct, d, x: f"v_lshlrev_b32 v{T(ct,0)}, 16, v{T(ct,8)}",
            lambda ct, d, x: f"v_and_b32 v{T(ct,1)}, 0xffff0000, v{T(ct,8)}",
            lambda ct, d, x: f"v_lshlrev_b32 v{T(ct,2)}, 16, v{T(ct,9)}",
            lambda ct, d, x: f"v_and_b32 v{T(ct,3)}, 0xffff0000, v{T(ct,9)}",
            lambda ct, d, x: f"v_pk_add_f32 {vr(T(ct,0),2)}, {vr(T(ct,0),2)}, {vr(T(ct,4),2)}",
            lambda ct, d, x: f"v_pk_add_f32 {vr(T(ct,2),2)}, {vr(T(ct,2),2)}, {vr(T(ct,6),2)}",
            lambda ct, d, x: f"v_cvt_pk_bf16_f32 v{x}, v{T(ct,0)}, v{T(ct,1)}",
            lambda ct, d, x: f"v_cvt_pk_bf16_f32 v{x+1}, v{T(ct,2)}, v{T(ct,3)}",
        ]
        k(f"""
        s_mul_i32 s5, s3, {XSTR}
        s_add_u32 s5, s5, s24
        s_mul_i32 s6, s20, 9216
        s_add_u32 s5, s5, s6
        s_add_u32 s5, s5, {XSTR}
        """)
        for stp in steps:
            for ct in range(n): k(stp(ct, 96 + 4*ct, RES + 2*ct))
        k(f"""
        s_cmp_eq_u32 s3, 3
        s_cbranch_scc1 M_Bf{half}
        """)
        for ct in range(n):
            x = RES + 2*ct
            if half == 1 and ct == 1: k("s_mov_b64 exec, 0xffffffff")
            k(f"buffer_store_dwordx2 {vr(x,2)}, {vBO}, s[12:15], s5 offen sc1\ns_add_u32 s5, s5, 2048")
        k("s_mov_b64 exec, -1")
        if half == 1:
            k(f"""
            s_mov_b32 s6, 0
            s_mov_b32 s7, -1
            v_cndmask_b32 v40, v{RES+2}, 0, s[6:7]
            v_cndmask_b32 v41, v{RES+3}, 0, s[6:7]
            """)
        srcs = [(RES+2*ct if not (half == 1 and ct == 1) else 40) for ct in range(n)]
        k("v_mov_b32 v8, 0x3f803f80")
        regs = [x + i for x in srcs for i in range(2)]
        for i, r_ in enumerate(regs):
            k(f"v_dot2_f32_bf16 v28, v{r_}, v8, {'0' if i == 0 else 'v28'}")
            k(f"v_dot2_f32_bf16 v29, v{r_}, v{r_}, {'0' if i == 0 else 'v29'}")
        k(f"""
        s_nop 2
        v_mov_b32 v30, v28
        v_mov_b32 v31, v29
        s_lshl_b32 s5, s3, 18
        s_lshl_b32 s6, s21, 13
        v_permlane32_swap_b32 v28, v30
        v_permlane32_swap_b32 v29, v31
        v_pk_add_f32 v[28:29], v[28:29], v[30:31]
        v_mov_b32 v30, v28
        v_mov_b32 v31, v29
        s_add_u32 s5, s5, s6
        s_lshl_b32 s6, s20, 10
        v_permlane16_swap_b32 v28, v30
        v_permlane16_swap_b32 v29, v31
        v_pk_add_f32 v[28:29], v[28:29], v[30:31]
        s_add_u32 s5, s5, s6
        s_and_b32 s6, s4, 3
        s_lshl_b32 s6, s6, 7
        s_add_u32 s5, s5, s6
        s_add_u32 s5, s5, {PST + (1 << 18) + 512*half}
        v_lshlrev_b32 v30, 3, v0
        s_mov_b64 exec, 0xffff
        buffer_store_dwordx2 v[28:29], v30, s[12:15], s5 offen sc1
        s_mov_b64 exec, -1
        s_branch M_Bdone
        """)
        k.label(f"M_Bf{half}")
        for ct in range(n):
            x = RES + 2*ct
            if half == 1 and ct == 1: k("s_mov_b64 exec, 0xffffffff")
            k(f"buffer_store_dwordx2 {vr(x,2)}, {vBN}, s[92:95], 0 offen offset:{32*ct}")
        k("s_mov_b64 exec, -1\ns_branch M_fin")
    k.label("M_Bdone")
    stamp(k)
    k("s_add_u32 s91, s90, 4096")
    signal(k, "M_sigB")
    stamp(k)

    k(f"""
    s_add_u32 s3, s3, 1
    s_and_b32 s5, s3, 1
    s_cmp_eq_u32 s5, 0
    s_mov_b32 s28, {PQ[0]}
    s_cselect_b32 s28, {PQ[1]}, s28
    s_add_u32 s28, s28, s96
    s_cmp_eq_u32 s3, 3
    s_cselect_b32 s18, 0, s18
    """)
    x_setup(k)
    wo_setup(k)
    k("s_cmp_eq_u32 s4, 7\ns_cbranch_scc1 M_nowo")
    for i in range(6): wo_dma(k)
    k.label("M_nowo")
    poll(k, "M_pollB", True)
    stamp(k)
    if 'r' in EXP: k("s_add_u32 s84, s3, 1")
    rts(k, "s84", True)
    dispatch(k, "_loop")
    k.label("M_fin")
    if 'r' in EXP: k("s_waitcnt vmcnt(0)")
    rts(k, 5, True)
    if DBG:
        k(f"""
        s_waitcnt vmcnt(0)
        """)
        stamp(k)
        k(f"""
        s_lshl_b32 s5, s2, 3
        s_add_u32 s5, s5, s4
        s_lshl_b32 s5, s5, 8
        s_add_u32 s5, s5, {DBGO}
        v_lshlrev_b32 v2, 2, v0
        buffer_store_dword v68, v2, s[12:15], s5 offen
        """)


def kd(name, vgpr, sgpr=102):
    acc = (vgpr + 3)//4*4
    return f""".p2align 6
.amdhsa_kernel {name}
  .amdhsa_next_free_vgpr {vgpr}
  .amdhsa_next_free_sgpr {sgpr}
  .amdhsa_accum_offset {acc}
  .amdhsa_group_segment_fixed_size 0
  .amdhsa_kernarg_size 72
  .amdhsa_user_sgpr_count 2
  .amdhsa_user_sgpr_kernarg_segment_ptr 1
  .amdhsa_system_sgpr_workgroup_id_x 1
.end_amdhsa_kernel
"""

def main():
    out = sys.argv[1]
    global DBG
    DBG = len(sys.argv) > 2 and sys.argv[2] == '1'
    hdr = [f"; @launch kernel=p_kernel grid=({NP},1,1) block=(256,1,1) lds=16384",
           f"; @launch kernel=m_kernel grid=(256,1,1) block=(512,1,1) lds={LDSZ}"]
    k = K()
    k.raw('.amdgcn_target "amdgcn-amd-amdhsa--gfx950"\n.text')
    k.raw(f".globl p_kernel\n.p2align 8\n.type p_kernel,@function\np_kernel:")
    gen_P(k)
    k.raw(f".globl m_kernel\n.p2align 8\n.type m_kernel,@function\nm_kernel:")
    gen_M(k)
    k.raw('.section .rodata,"a"')
    k.raw(kd("p_kernel", 96))
    k.raw(kd("m_kernel", 256))
    open(out, "w").write("\n".join(hdr) + "\n" + k.text())
main()
```
